```python
import torch

def _softmax(x, axis=-1):
    return torch.softmax(x, dim=axis)
def _gelu(x):
    return torch.nn.functional.gelu(x, approximate="tanh")
def _silu(x):
    return torch.nn.functional.silu(x)
def _sigmoid(x):
    return torch.sigmoid(x)
def _layernorm(x, axis=-1, eps=1e-5):
    m = x.mean(dim=axis, keepdim=True)
    v = x.var(dim=axis, keepdim=True, unbiased=False)
    return (x - m) / torch.sqrt(v + eps)
def _scatter_add(tgt, idx, src, axis=0):
    return tgt.clone().index_add_(axis, idx, src)
def _segment_sum(src, seg, n):
    out = torch.zeros((n,) + src.shape[1:], dtype=src.dtype)
    return out.index_add_(0, seg, src)
def _pad(x, pw):
    flat = tuple(v for pair in reversed(pw) for v in pair)
    return torch.nn.functional.pad(x, flat)

kernel_name = 'sequential_preLN__linear_attn_block__geglu_ffn__prompt'

def setup_inputs():

    _w = (lambda a: (lambda t: t.to(torch.bfloat16) if t.is_floating_point() else t)(torch.as_tensor(a)))
    def _A_setup():
        B, S, D = 1, 2048, 640
        return {
            "x": _w((lambda *s: torch.randn(*s, dtype=torch.bfloat16) * 0.05)(B, S, D)),
            "wqkv": _w((lambda *s: torch.randn(*s, dtype=torch.bfloat16) * 0.05)(D, 3 * D)),
            "wo": _w((lambda *s: torch.randn(*s, dtype=torch.bfloat16) * 0.05)(D, D)),
        }
    _A_in = _A_setup()

    def _B_setup():
        B, S, D, F = 1, 2048, 640, 1728
        return {
            "x": _w((lambda *s: torch.randn(*s, dtype=torch.bfloat16) * 0.05)(B, S, D)),
            "w_gate": _w((lambda *s: torch.randn(*s, dtype=torch.bfloat16) * 0.05)(D, F)),
            "w_up": _w((lambda *s: torch.randn(*s, dtype=torch.bfloat16) * 0.05)(D, F)),
            "w_down": _w((lambda *s: torch.randn(*s, dtype=torch.bfloat16) * 0.05)(F, D)),
        }
    _B_in = _B_setup()

    return {
        "A_x": _A_in["x"],
        "A_wqkv": _A_in["wqkv"],
        "A_wo": _A_in["wo"],
        "B_x": _B_in["x"],
        "B_w_gate": _B_in["w_gate"],
        "B_w_up": _B_in["w_up"],
        "B_w_down": _B_in["w_down"],
    }

def reference(A_x, A_wqkv, A_wo, B_x, B_w_gate, B_w_up, B_w_down):
    def _A_ref(x, wqkv, wo):
        B, S, D = x.shape
        H = 32; Dh = D // H
        qkv = (lambda x, *d: x.permute(*d))((x @ wqkv).reshape(B, S, 3, H, Dh), 2, 0, 3, 1, 4)
        q, k, v = qkv[0], qkv[1], qkv[2]
        phi = lambda t: torch.where(t > 0, t + 1, torch.exp(t)) + 1e-6
        pq, pk = phi(q), phi(k)
        kv = torch.einsum("bhsd,bhse->bhde", pk, v)
        z = torch.einsum("bhsd->bhd", pk)
        num = torch.einsum("bhqd,bhde->bhqe", pq, kv)
        den = torch.einsum("bhqd,bhd->bhq", pq, z)[..., None] + 1e-6
        o = num / den
        return (lambda x, *d: x.permute(*d))(o, 0, 2, 1, 3).reshape(B, S, D) @ wo

    def _B_ref(x, w_gate, w_up, w_down):
        return (_gelu(x @ w_gate) * (x @ w_up)) @ w_down

    x = A_x
    h = x + _A_ref(_layernorm(x, axis=-1), A_wqkv, A_wo)
    h2 = h + _B_ref(_layernorm(h, axis=-1), B_w_gate, B_w_up, B_w_down)
    return h2
```

```python
import sys
from kb import *
from layouts import *

P_X, P_WQKV, P_WO, P_GATE, P_UP, P_DOWN, P_OUT, P_DBG, P_WS = 8, 10, 12, 16, 18, 20, 22, 24, 26

def prologue(kb, nwg):
    kb(f"""
    s_cmp_ge_u32 s2, {nwg}
    s_cbranch_scc1 {kb.name}_end
    s_load_dwordx16 s[8:23], s[0:1], 0
    s_load_dwordx4 s[24:27], s[0:1], 64
    v_lshrrev_b32 v2, 6, v0
    v_and_b32 v1, 63, v0
    v_readfirstlane_b32 s3, v2
    """)

def srd(kb, d, ptr, off, size):
    assert d % 4 == 0
    if off:
        kb(f"s_add_u32 s{d}, s{ptr}, {off}\n s_addc_u32 s{d+1}, s{ptr+1}, 0")
    else:
        kb(f"s_mov_b32 s{d}, s{ptr}\n s_mov_b32 s{d+1}, s{ptr+1}")
    kb(f"s_mov_b32 s{d+2}, {size}\n s_mov_b32 s{d+3}, 0x20000")

def relayout(kb, su, nxt):
    n = kb.name
    kb.fence()
    kb(f"""
    v_lshrrev_b32 v2, 3, v1          ; l>>3
    v_and_b32 v3, 7, v1              ; l&7
    v_lshlrev_b32 v3, 4, v3
    v_lshlrev_b32 v4, 4, v1
    v_bfe_u32 v5, v1, 2, 2           ; r
    v_and_b32 v6, 3, v1              ; c'
    v_lshrrev_b32 v7, 5, v1          ; hi (l>>5)
    v_bfe_u32 v8, v1, 4, 1
    s_lshl_b32 s44, s3, 10           ; wave*1024
    s_cmp_lt_u32 s{su}, 54
    s_cbranch_scc0 {n}_rl_notg
    """)
    kb(f"""
    s_lshr_b32 s41, s{su}, 1
    s_and_b32 s42, s{su}, 1
    v_mul_u32_u24 v9, 3456, v2
    v_add_u32 v9, v9, v3
    s_mul_i32 s43, s42, {320*3456}
    s_mul_i32 s45, s3, {8*3456}
    s_add_u32 s43, s43, s45
    s_lshl_b32 s45, s41, 7
    s_add_u32 s43, s43, s45
    """)
    srd(kb, 48, P_GATE, 0, 640*3456); srd(kb, 52, P_UP, 0, 640*3456); srd(kb, 56, P_WS, OFF_WGU, SZ_WGU)
    srd(kb, 60, P_WS, OFF_CS, SZ_CS)
    for i in range(10):
        for mtx in range(2):
            kb(f"s_add_u32 m0, s44, {i*4096 + mtx*40960}")
            kb(f"buffer_load_dwordx4 v9, s[{48+4*mtx}:{51+4*mtx}], s43 offen lds")
        if i < 9: kb(f"s_add_u32 s43, s43, {32*3456}")
    kb(f"""
    v_lshrrev_b32 v10, 1, v6
    v_mul_u32_u24 v10, 40960, v10    ; matrix
    v_lshl_add_u32 v11, v7, 2, v5    ; 4hi + r
    v_lshl_add_u32 v10, v11, 7, v10
    v_lshl_add_u32 v10, v8, 4, v10   ; + 8nb*2
    v_and_b32 v11, 1, v6
    v_lshl_add_u32 v10, v11, 3, v10  ; + 4(c'&1)*2
    s_lshl_b32 s45, s3, 5
    v_add_u32 v10, s45, v10          ; + 16w*2
    v_mov_b32 v12, 0x3f803f80
    v_mov_b32 v13, 0x3f803f80
    v_mov_b32 v14, 0x3f803f80
    v_mov_b32 v15, 0x3f803f80
    s_lshl_b32 s45, s41, 2
    s_add_u32 s45, s45, s3           ; chunk j
    s_mul_i32 s46, s45, {40*1024}
    s_mul_i32 s47, s42, {20*1024}
    s_add_u32 s46, s46, s47
    s_lshl_b32 s45, s45, 10
    s_waitcnt vmcnt(0)
    s_barrier
    """)
    NB = 6
    def rd(u):
        b = 32 + 4*(u % NB)
        kb(f"ds_read_b64_tr_b16 {V(b,2)}, v10 offset:{u*2048}")
        kb(f"ds_read_b64_tr_b16 {V(b+2,2)}, v10 offset:{u*2048+1024}")
    for u in range(NB-1): rd(u)
    for u in range(20):
        if u + NB - 1 < 20: rd(u + NB - 1)
        b = 32 + 4*(u % NB)
        kb(f"v_mfma_f32_32x32x16_bf16 v[16:31], v[12:15], {V(b,4)}, {'0' if u == 0 else 'v[16:31]'}")
        kb(f"buffer_store_dwordx4 {V(b,4)}, v4, s[56:59], s46 offen offset:{(u&3)*1024}")
        if (u & 3) == 3: kb("s_add_u32 s46, s46, 4096")
    kb(f"""
    v_cvt_pk_bf16_f32 v32, v16, v16
    v_lshlrev_b32 v32, 16, v32
    v_sub_f32 v33, v16, v32          ; r1
    v_cvt_pk_bf16_f32 v32, v33, v33
    v_lshlrev_b32 v32, 16, v32
    v_sub_f32 v34, v33, v32          ; r2
    v_cvt_pk_bf16_f32 v36, v16, v33
    v_cvt_pk_bf16_f32 v37, v34, v16
    v_cvt_pk_bf16_f32 v38, v33, v34
    v_mov_b32 v39, v36
    v_cmp_eq_u32 vcc, s42, v7
    s_and_saveexec_b64 s[46:47], vcc
    buffer_store_dwordx4 v[36:39], v4, s[60:63], s45 offen
    s_mov_b64 exec, s[46:47]
    s_branch {nxt}
    {n}_rl_notg:
    """)
    kb.fence()
    kb(f"""
    v_mul_u32_u24 v9, 1280, v2
    v_add_u32 v9, v9, v3
    s_cmp_lt_u32 s{su}, 84
    s_cbranch_scc0 {n}_rl_o
    """)
    kb(f"""
    s_sub_u32 s40, s{su}, 54
    s_mul_i32 s41, s40, 43691
    s_lshr_b32 s41, s41, 17          ; sigma = u/3
    s_mul_i32 s42, s41, 3
    s_sub_u32 s42, s40, s42          ; part
    s_mul_i32 s43, s42, {576*1280}
    s_mul_i32 s45, s3, {8*1280}
    s_add_u32 s43, s43, s45
    s_lshl_b32 s45, s41, 7
    s_add_u32 s43, s43, s45
    """)
    srd(kb, 48, P_DOWN, 0, 1728*1280); srd(kb, 56, P_WS, OFF_WD, SZ_WD)
    for i in range(18):
        kb(f"s_add_u32 m0, s44, {i*4096}")
        kb(f"buffer_load_dwordx4 v9, s[48:51], s43 offen lds")
        if i < 17: kb(f"s_add_u32 s43, s43, {32*1280}")
    kb(f"""
    v_lshlrev_b32 v10, 4, v7         ; 16*(c>>1)
    v_lshl_add_u32 v10, v8, 2, v10   ; + 4*(c&1)
    v_add_u32 v10, v10, v5
    v_lshlrev_b32 v10, 7, v10
    v_lshl_add_u32 v10, v6, 3, v10   ; + 4c'*2
    s_lshl_b32 s45, s3, 5
    v_add_u32 v10, s45, v10
    v_add_u32 v11, 0x10000, v10
    s_lshl_b32 s45, s41, 2
    s_add_u32 s45, s45, s3           ; nt
    s_mul_i32 s46, s45, 52429
    s_lshr_b32 s46, s46, 18
    s_mul_i32 s47, s46, 5
    s_sub_u32 s45, s45, s47          ; t
    s_mul_i32 s46, s46, 54
    s_mul_i32 s47, s42, 18
    s_add_u32 s46, s46, s47
    s_mul_i32 s46, s46, 5
    s_add_u32 s46, s46, s45
    s_lshl_b32 s46, s46, 10
    s_waitcnt vmcnt(0)
    s_barrier
    """)
    def rdD(T):
        b = 32 + 4*(T % NB)
        a, o = ("v10", T*4096) if T < 16 else ("v11", (T-16)*4096)
        kb(f"ds_read_b64_tr_b16 {V(b,2)}, {a} offset:{o}")
        kb(f"ds_read_b64_tr_b16 {V(b+2,2)}, {a} offset:{o+1024}")
    for T in range(NB-1): rdD(T)
    for T in range(18):
        if T + NB - 1 < 18: rdD(T + NB - 1)
        b = 32 + 4*(T % NB)
        kb(f"buffer_store_dwordx4 {V(b,4)}, v4, s[56:59], s46 offen")
        if T < 17: kb("s_add_u32 s46, s46, 5120")
    kb(f"s_branch {nxt}")
    kb(f"{n}_rl_o:")
    kb.fence()
    kb(f"""
    s_sub_u32 s41, s{su}, 84
    s_mul_i32 s43, s3, {8*1280}
    s_lshl_b32 s45, s41, 7
    s_add_u32 s43, s43, s45
    """)
    srd(kb, 48, P_WO, 0, 640*1280); srd(kb, 56, P_WS, OFF_WO, SZ_WO)
    for i in range(20):
        kb(f"s_add_u32 m0, s44, {i*4096}")
        kb(f"buffer_load_dwordx4 v9, s[48:51], s43 offen lds")
        if i < 19: kb(f"s_add_u32 s43, s43, {32*1280}")
    kb(f"""
    v_lshlrev_b32 v10, 7, v5         ; r*128
    v_lshl_add_u32 v10, v8, 5, v10   ; + 16nb*2
    v_lshl_add_u32 v10, v6, 3, v10   ; + 4c'*2
    s_mul_i32 s45, s3, {160*128}
    v_add_u32 v10, s45, v10
    v_mul_u32_u24 v11, {20*128}, v7
    v_add_u32 v11, v11, v10
    v_lshl_add_u32 v10, v7, 9, v10
    """)
    for b in range(2):
        kb(f"""
        s_lshl_b32 s45, s41, 1
        s_add_u32 s45, s45, {b}
        s_mul_i32 s42, s45, 52429
        s_lshr_b32 s42, s42, 18
        s_mul_i32 s40, s42, 5
        s_sub_u32 s45, s45, s40
        s_lshl_b32 s42, s42, 2
        s_add_u32 s42, s42, s3
        s_mul_i32 s42, s42, 50
        s_add_u32 s42, s42, s45
        s_lshl_b32 s{46+b}, s42, 10
        """)
    kb("s_waitcnt vmcnt(0)\n s_barrier")
    seq = [(kap, b) for kap in range(10) for b in range(2)]
    def rdO(i):
        kap, b = seq[i]; bb = 32 + 4*(i % NB)
        for h in range(2):
            pi, ss = divmod(2*kap + h, 5)
            a = "v11" if ss == 2 else "v10"
            kb(f"ds_read_b64_tr_b16 {V(bb+2*h,2)}, {a} offset:{(40*pi + LOFF[ss])*128 + b*64}")
    for i in range(NB-1): rdO(i)
    for i in range(20):
        if i + NB - 1 < 20: rdO(i + NB - 1)
        kap, b = seq[i]; bb = 32 + 4*(i % NB)
        kb(f"buffer_store_dwordx4 {V(bb,4)}, v4, s[56:59], s{46+b} offen")
        kb(f"s_add_u32 s{46+b}, s{46+b}, 5120")
    kb(f"s_branch {nxt}")

def k0_test():
    kb = KB("k0_kernel")
    prologue(kb, 94)
    kb("s_waitcnt lgkmcnt(0)")
    relayout(kb, 2, "k0_kernel_end")
    kb("k0_kernel_end:")
    return (kb, 94, 256, 81920)


BIG = 0x4000000

def k4():
    kb = KB("k4_kernel")
    prologue(kb, 256)
    kb(f"""
    s_and_b32 s28, s2, 7
    s_lshr_b32 s29, s2, 3
    s_lshr_b32 s30, s28, 1
    s_lshl_b32 s30, s30, 3
    s_and_b32 s31, s29, 7
    s_add_u32 s30, s30, s31          ; rb64
    s_and_b32 s31, s28, 1
    s_lshl_b32 s31, s31, 2
    s_lshr_b32 s32, s29, 3
    s_add_u32 s31, s31, s32          ; cb
    s_and_b32 s33, s29, 7
    s_lshl_b32 s33, s33, 1
    s_mul_i32 s34, s32, 3
    s_add_u32 s33, s33, s34
    s_add_u32 s33, s33, s28
    s_mul_i32 s34, s33, 18725
    s_lshr_b32 s34, s34, 18
    s_mul_i32 s34, s34, 14
    s_sub_u32 s33, s33, s34          ; rot
    s_mul_i32 s34, s3, 14            ; 14w
    s_mul_i32 s35, s30, {2*108*1024} ; g base
    s_mul_i32 s36, s31, {54*5120}
    v_and_b32 v2, 15, v1             ; m
    v_lshrrev_b32 v3, 4, v1          ; c
    v_lshlrev_b32 v4, 4, v2
    v_lshl_add_u32 v4, v3, 9, v4     ; voff g  (c*512 + m*16)
    v_add_u32 v5, {108*1024}, v4
    v_lshlrev_b32 v6, 4, v1
    v_add_u32 v7, 1024, v6
    s_waitcnt lgkmcnt(0)
    """)
    srd(kb, 40, P_WS, OFF_G, SZ_G); srd(kb, 44, P_WS, OFF_WD, SZ_WD); srd(kb, 48, P_WS, OFF_H, SZ_H)
    srd(kb, 52, P_OUT, 0, 2048*1280)
    NB = 4
    ACC = 32
    def loads(i):
        b = 36*(i % NB)
        kb(f"""
        s_add_u32 s37, s34, s33
        s_lshl_b32 s38, s37, 11
        s_add_u32 s38, s38, s35
        s_mul_i32 s39, s37, 5120
        s_add_u32 s39, s39, s36
        s_cmp_ge_u32 s37, 54
        s_cselect_b32 s38, {BIG}, s38
        s_cselect_b32 s39, {BIG}, s39
        s_add_u32 s33, s33, 1
        s_cmp_eq_u32 s33, 14
        s_cselect_b32 s33, 0, s33
        """)
        L = []
        L.append(f"buffer_load_dwordx4 {A(b+16,4)}, v6, s[44:47], s39 offen")
        L.append(f"buffer_load_dwordx4 {A(b,4)}, v4, s[40:43], s38 offen")
        L.append(f"buffer_load_dwordx4 {A(b+4,4)}, v4, s[40:43], s38 offen offset:256")
        L.append(f"buffer_load_dwordx4 {A(b+8,4)}, v5, s[40:43], s38 offen")
        L.append(f"buffer_load_dwordx4 {A(b+12,4)}, v5, s[40:43], s38 offen offset:256")
        for t in range(1, 5):
            L.append(f"buffer_load_dwordx4 {A(b+16+4*t,4)}, v7, s[44:47], s39 offen offset:{(t-1)*1024}")
        return L
    for i in range(NB-1):
        for l in loads(i): kb(l)
    kb(f"""
    v_lshrrev_b32 v8, 2, v1
    v_and_b32 v9, 3, v1              ; q0
    s_lshl_b32 s56, s3, 4
    v_add_u32 v8, s56, v8
    v_and_b32 v10, 31, v8
    v_lshlrev_b32 v10, 4, v10
    v_and_b32 v11, 1, v9
    v_lshl_add_u32 v10, v11, 9, v10
    v_lshrrev_b32 v11, 1, v9
    v_lshl_add_u32 v10, v11, 3, v10
    s_lshr_b32 s57, s3, 1
    s_lshl_b32 s58, s30, 1
    s_add_u32 s57, s57, s58          ; R
    s_mul_i32 s57, s57, 40
    s_mul_i32 s58, s31, 5
    s_add_u32 s57, s57, s58
    s_lshl_b32 s57, s57, 10
    s_add_u32 s58, s57, 4096
    """)
    for i in range(5):
        if i < 4: kb(f"buffer_load_dwordx2 {V(16+2*i,2)}, v10, s[48:51], s57 offen offset:{i*1024}")
        else: kb(f"buffer_load_dwordx2 {V(16+2*i,2)}, v10, s[48:51], s58 offen")
    kb(f"""
    v_mul_u32_u24 v11, 336, v8
    v_lshl_add_u32 v11, v9, 4, v11
    v_mul_u32_u24 v12, 336, v2
    v_lshl_add_u32 v12, v3, 4, v12
    s_mul_i32 s59, s3, 21504
    v_add_u32 v12, s59, v12
    v_mul_u32_u24 v13, 1280, v8
    v_lshl_add_u32 v13, v9, 3, v13
    s_mul_i32 s59, s30, {64*1280}
    s_mul_i32 s60, s31, 160
    s_add_u32 s59, s59, s60
    """)
    for i in range(14):
        L = loads(i + NB - 1) if i + NB - 1 < 14 else []
        b = 36*(i % NB)
        k = 0
        for t in range(5):
            for mt in range(4):
                d = V(ACC + (mt*5+t)*4, 4)
                kb(f"v_mfma_f32_16x16x32_bf16 {d}, {A(b+16+4*t,4)}, {A(b+4*mt,4)}, {'0' if i == 0 else d}")
                if k % 2 == 1 and L: kb(L.pop(0))
                k += 1
        assert not L
    for mt in range(4):
        for t in range(5):
            kb(f"ds_write_b128 v12, {V(ACC+(mt*5+t)*4,4)} offset:{mt*16*336 + t*64}")
    kb("s_waitcnt lgkmcnt(0)\n s_barrier")
    for i in range(5):
        for w in range(4):
            kb(f"ds_read_b128 {V(ACC+(i*4+w)*4,4)}, v11 offset:{w*21504 + i*64}")
    for i in range(5):
        a = ACC + i*16
        kb(f"""
        v_pk_add_f32 {V(a,2)}, {V(a,2)}, {V(a+4,2)}
        v_pk_add_f32 {V(a+2,2)}, {V(a+2,2)}, {V(a+6,2)}
        v_pk_add_f32 {V(a+8,2)}, {V(a+8,2)}, {V(a+12,2)}
        v_pk_add_f32 {V(a+10,2)}, {V(a+10,2)}, {V(a+14,2)}
        v_pk_add_f32 {V(a,2)}, {V(a,2)}, {V(a+8,2)}
        v_pk_add_f32 {V(a+2,2)}, {V(a+2,2)}, {V(a+10,2)}
        v_cvt_pk_bf16_f32 v{a+4}, v{a}, v{a+1}
        v_cvt_pk_bf16_f32 v{a+5}, v{a+2}, v{a+3}
        v_lshlrev_b32 v{a}, 16, v{a+4}
        v_and_b32 v{a+1}, 0xffff0000, v{a+4}
        v_lshlrev_b32 v{a+2}, 16, v{a+5}
        v_and_b32 v{a+3}, 0xffff0000, v{a+5}
        v_lshlrev_b32 v{a+8}, 16, v{16+2*i}
        v_and_b32 v{a+9}, 0xffff0000, v{16+2*i}
        v_lshlrev_b32 v{a+10}, 16, v{17+2*i}
        v_and_b32 v{a+11}, 0xffff0000, v{17+2*i}
        v_pk_add_f32 {V(a,2)}, {V(a,2)}, {V(a+8,2)}
        v_pk_add_f32 {V(a+2,2)}, {V(a+2,2)}, {V(a+10,2)}
        v_cvt_pk_bf16_f32 v{a+4}, v{a}, v{a+1}
        v_cvt_pk_bf16_f32 v{a+5}, v{a+2}, v{a+3}
        buffer_store_dwordx2 {V(a+4,2)}, v13, s[52:55], s59 offen offset:{i*32}
        """)
    kb("k4_kernel_end:")
    return (kb, 256, 256, 86016)

import struct
def f2u(x): return struct.unpack("<I", struct.pack("<f", x))[0]
LOG2E = 1.4426950408889634

def bf16r(kb, dst, src):
    kb(f"v_cvt_pk_bf16_f32 v{dst}, v{src}, v{src}\n v_and_b32 v{dst}, 0xffff0000, v{dst}")

def ln_scalars(kb, vs, vq, vmean, vrstd, t):
    kb(f"""
    v_mul_f32 v{vs}, {hex(f2u(1/640))}, v{vs}
    v_mul_f32 v{vq}, {hex(f2u(1/640))}, v{vq}
    v_fma_f32 v{vq}, -v{vs}, v{vs}, v{vq}
    v_max_f32 v{vq}, 0, v{vq}
    """)
    bf16r(kb, vmean, vs)
    bf16r(kb, t, vq)
    kb(f"v_add_f32 v{t}, {hex(f2u(1e-5))}, v{t}")
    bf16r(kb, t, t)
    kb(f"v_sqrt_f32 v{t}, v{t}")
    bf16r(kb, t, t)
    kb(f"v_rcp_f32 v{vrstd}, v{t}")

def k3(P1=3, packed=False, per_gap=5):
    kb = KB("k3_kernel")
    prologue(kb, 256)
    kb(f"""
    s_and_b32 s28, s2, 7
    s_lshr_b32 s29, s2, 3
    s_lshr_b32 s30, s28, 2
    s_lshl_b32 s30, s30, 3
    s_and_b32 s31, s29, 7
    s_add_u32 s30, s30, s31          ; rb
    s_cmp_eq_u32 s31, 7
    s_cselect_b32 s33, 0, s31
    s_and_b32 s31, s28, 3
    s_lshl_b32 s31, s31, 2
    s_lshr_b32 s32, s29, 3
    s_add_u32 s31, s31, s32          ; cb
    s_mul_i32 s31, s31, 7            ; j0
    s_lshl_b32 s34, s30, 2
    s_add_u32 s34, s34, s3           ; R
    s_lshl_b32 s35, s3, 10           ; w*1024
    v_lshlrev_b32 v2, 4, v1          ; l*16
    v_add_u32 v3, s35, v2
    v_add_u32 v4, 0x10000, v2
    v_and_b32 v5, 31, v1
    v_lshlrev_b32 v5, 7, v5
    v_lshrrev_b32 v6, 5, v1
    v_lshl_add_u32 v5, v6, 6, v5
    s_lshl_b32 s36, s34, 12
    s_mul_i32 s37, s34, {40*1024}    ; h soffset
    """)
    for c in range(7):
        kb(f"""
        s_add_u32 s{64+c}, s31, s33
        s_add_u32 s33, s33, 1
        s_cmp_eq_u32 s33, 7
        s_cselect_b32 s33, 0, s33
        s_mul_i32 s{72+c}, s{64+c}, {40*1024}
        s_mul_i32 s38, s34, 108
        s_add_u32 s38, s38, s{64+c}
        s_lshl_b32 s38, s38, 10
        s_cmp_ge_u32 s{64+c}, 108
        s_cselect_b32 s{80+c}, {BIG}, s38
        """)
    kb("s_waitcnt lgkmcnt(0)")
    srd(kb, 40, P_WS, OFF_H, SZ_H); srd(kb, 44, P_WS, OFF_WGU, SZ_WGU); srd(kb, 48, P_WS, OFF_CS, SZ_CS)
    srd(kb, 52, P_WS, OFF_ST, SZ_ST); srd(kb, 56, P_WS, OFF_G, SZ_G)
    SLOT = 24576; CSB = 5*SLOT
    slots = []
    if P1 > 0:
        for sg in range(5):
            slots.append(dict(steps=[(c, u, (c*8 + (u & 7))*1024) for u in range(8*sg, 8*sg+8) for c in range(P1)],
                              dma=[(c, 8*sg + 4*h, (c*8 + 4*h)*1024) for h in range(2) for c in range(P1)]))
    for c in range(P1, 7):
        for hf in range(2):
            slots.append(dict(steps=[(c, u, (u - 20*hf)*1024) for u in range(20*hf, 20*hf+20)],
                              dma=[(c, 20*hf + 4*i, 4*i*1024) for i in range(5)]))
    def dma(n):
        out = []
        for (c, u0, pos) in slots[n]["dma"]:
            out.append((f"s_add_u32 s39, s{72+c}, {u0*1024}\n s_add_u32 m0, s35, {(n%5)*SLOT + pos}\n"
                        f"buffer_load_dwordx4 v3, s[44:47], s39 offen lds", f"slot{n}"))
        return out
    def hload(u):
        t = ""
        if u % 4 == 0 and u > 0: t = "s_add_u32 s37, s37, 4096\n"
        return t + f"buffer_load_dwordx4 {A(4*u,4)}, v2, s[40:43], s37 offen offset:{(u&3)*1024}"
    for i in range(4): kb(f"buffer_load_dwordx4 {V(112+4*i,4)}, v5, s[52:55], s36 offen offset:{16*i}")
    hu = 0
    for n in range(4):
        for t, tag in dma(n): kb(t, tag)
        for _ in range(8): kb(hload(hu)); hu += 1
        if n == 0:
            kb(f"""
            s_cmp_eq_u32 s3, 0
            s_cselect_b32 s38, s64, s65
            s_cselect_b32 s39, s68, s69
            s_cmp_eq_u32 s3, 2
            s_cselect_b32 s38, s66, s38
            s_cselect_b32 s39, s70, s39
            s_cmp_eq_u32 s3, 3
            s_cselect_b32 s38, s67, s38
            s_cselect_b32 s39, s70, s39
            s_lshl_b32 s38, s38, 10
            s_lshl_b32 s39, s39, 10
            s_add_u32 m0, s35, {CSB}
            """)
            kb("buffer_load_dwordx4 v2, s[48:51], s38 offen lds", "slot0")
            kb(f"s_add_u32 m0, s35, {CSB+4096}")
            kb("buffer_load_dwordx4 v2, s[48:51], s39 offen lds", "slot0")
    kb("""
    v_pk_add_f32 v[112:113], v[112:113], v[114:115]
    v_pk_add_f32 v[116:117], v[116:117], v[118:119]
    v_pk_add_f32 v[120:121], v[120:121], v[122:123]
    v_pk_add_f32 v[124:125], v[124:125], v[126:127]
    v_pk_add_f32 v[112:113], v[112:113], v[116:117]
    v_pk_add_f32 v[120:121], v[120:121], v[124:125]
    v_pk_add_f32 v[8:9], v[112:113], v[120:121]
    v_mov_b32 v10, v8
    v_mov_b32 v11, v9
    v_permlane32_swap_b32 v8, v10
    v_permlane32_swap_b32 v9, v11
    v_add_f32 v8, v8, v10
    v_add_f32 v9, v9, v11
    """)
    RSTD = 6
    ln_scalars(kb, 8, 9, 10, RSTD, 11)
    kb(f"""
    v_xor_b32 v10, 0x80000000, v10
    v_lshrrev_b32 v17, 16, v10
    v_or_b32 v16, v10, v17
    v_mov_b32 v18, 0
    v_mov_b32 v19, 0
    v_mov_b32 v20, {hex(f2u(-2*LOG2E*0.7978845608028654))}
    v_mov_b32 v22, {hex(f2u(-2*LOG2E*0.7978845608028654*0.044715))}
    """)
    XE = 16; C1 = 20; C2 = 22
    ACC0 = 32; NACC = 5; TMP = 112
    NBF = 6; WF = 160
    steps = []
    for n, sl in enumerate(slots):
        for (c, u, pos) in sl["steps"]:
            steps.append((c, u, n, (n % 5)*SLOT + pos))
            if u == 39: steps.append((c, 40, None, CSB + (c if c < 4 else c)*1024))
    def epi(c):
        a = ACC0 + 16*(c % NACC); o = TMP + 16*(c % 2); L = []
        for p in range(4):
            g = a + (p >> 1)*8 + (p & 1)*2; u = g + 4; t = o + 4 + 2*(p % 2) * 2
            t2 = t + 2
            if packed:
                L += [f"v_pk_mul_f32 {V(g,2)}, {V(g,2)}, {V(RSTD,2)} op_sel_hi:[1,0]",
                      f"v_pk_mul_f32 {V(u,2)}, {V(u,2)}, {V(RSTD,2)} op_sel_hi:[1,0]",
                      f"v_pk_mul_f32 {V(t,2)}, {V(g,2)}, {V(g,2)}",
                      f"v_pk_fma_f32 {V(t,2)}, {V(t,2)}, {V(C2,2)}, {V(C1,2)} op_sel_hi:[1,0,0]",
                      f"v_pk_mul_f32 {V(t,2)}, {V(t,2)}, {V(g,2)}",
                      f"v_exp_f32 v{t}, v{t}", f"v_exp_f32 v{t+1}, v{t+1}",
                      f"v_pk_mul_f32 {V(g,2)}, {V(g,2)}, {V(u,2)}",
                      f"v_pk_add_f32 {V(t,2)}, {V(t,2)}, 1.0 op_sel_hi:[1,0]",
                      f"v_rcp_f32 v{t}, v{t}", f"v_rcp_f32 v{t+1}, v{t+1}",
                      "s_nop 0",
                      f"v_pk_mul_f32 {V(g,2)}, {V(g,2)}, {V(t,2)}",
                      f"v_cvt_pk_bf16_f32 v{o+p}, v{g}, v{g+1}"]
            else:
                for e in range(2): L.append(f"v_mul_f32 v{g+e}, v{RSTD}, v{g+e}")
                for e in range(2): L.append(f"v_mul_f32 v{t+e}, v{g+e}, v{g+e}")
                for e in range(2): L.append(f"v_fma_f32 v{t+e}, v{t+e}, v{C2}, v{C1}")
                for e in range(2): L.append(f"v_mul_f32 v{t+e}, v{t+e}, v{g+e}")
                for e in range(2): L.append(f"v_exp_f32 v{t+e}, v{t+e}")
                for e in range(2): L.append(f"v_mul_f32 v{u+e}, v{RSTD}, v{u+e}")
                for e in range(2): L.append(f"v_add_f32 v{t+e}, 1.0, v{t+e}")
                for e in range(2): L.append(f"v_rcp_f32 v{t+e}, v{t+e}")
                for e in range(2): L.append(f"v_mul_f32 v{g+e}, v{g+e}, v{u+e}")
                for e in range(2): L.append(f"v_mul_f32 v{g+e}, v{g+e}, v{t+e}")
                L.append(f"v_cvt_pk_bf16_f32 v{o+p}, v{g}, v{g+1}")
        L.append(f"buffer_store_dwordx4 {V(o,4)}, v2, s[56:59], s{80+c} offen")
        return L
    ready = -1
    fill = []
    def rd(s):
        nonlocal ready, hu
        c, u, n, off = steps[s]
        if n is not None and n > ready:
            ready = n
            kb.wait_vm(f"slot{n}")
            kb("s_waitcnt lgkmcnt(0)\n s_barrier")
            new = []
            if n + 4 < len(slots) and n >= 0:
                new += [(0, t, tag) for t, tag in dma(n + 4)] if n >= 1 else []
            if n == 0:
                new += [(0, t, tag) for t, tag in dma(4)]
                while hu < 40: new.append((0, hload(hu), None)); hu += 1
            fill[0:0] = new
        a, o = ("v2", off) if off < 65536 else ("v4", off - 65536)
        kb(f"ds_read_b128 {A(WF + 4*(s % NBF), 4)}, {a} offset:{o}")
    first = set()
    for s in range(NBF - 1): rd(s)
    for s, (c, u, n, off) in enumerate(steps):
        if s + NBF - 1 < len(steps): rd(s + NBF - 1)
        d = V(ACC0 + 16*(c % NACC), 16)
        b = A(4*u, 4) if u < 40 else V(XE, 4)
        kb(f"v_mfma_f32_32x32x16_bf16 {d}, {A(WF + 4*(s % NBF), 4)}, {b}, {d if c in first else '0'}")
        if c not in first: assert not any(tg == f"epi{c-NACC}" for _, _, tg in fill), "acc reuse"
        first.add(c)
        if u == 40: fill += [(s + 4, t, f"epi{c}") for t in epi(c)]
        k = 0
        while fill and fill[0][0] <= s and k < per_gap:
            _, t, tag = fill.pop(0); kb(t, tag); k += (2 if ("exp" in t or "rcp" in t) else 1)
    for _, t, tag in fill: kb(t, tag)
    kb("k3_kernel_end:")
    return (kb, 256, 256, CSB + 8192)

def k2():
    kb = KB("k2_kernel")
    prologue(kb, 256)
    kb(f"""
    s_and_b32 s28, s2, 7
    s_lshr_b32 s29, s2, 3
    s_lshl_b32 s30, s28, 3
    s_and_b32 s31, s29, 7
    s_add_u32 s30, s30, s31          ; R
    s_lshr_b32 s31, s29, 3           ; cb
    v_and_b32 v2, 31, v1             ; rho / m
    v_lshrrev_b32 v3, 5, v1          ; hi
    v_lshlrev_b32 v4, 4, v1          ; l*16
    v_mov_b32 v7, 0x100000
    v_cmp_gt_u32 vcc, 20, v2
    v_cndmask_b32 v5, v7, v2, vcc
    v_subrev_u32 v8, 4, v2
    v_cmp_gt_u32 vcc, 24, v2
    v_cndmask_b32 v6, v7, v8, vcc
    v_cmp_gt_u32 vcc, 20, v2
    v_cndmask_b32 v6, v6, v7, vcc
    v_cmp_gt_u32 vcc, 16, v2
    v_cndmask_b32 v6, v6, v2, vcc
    v_and_b32 v8, 27, v2
    v_cmp_eq_u32 vcc, 24, v8
    v_cndmask_b32 v5, v5, 20, vcc
    v_cndmask_b32 v6, v6, 20, vcc
    v_mul_u32_u24 v5, 80, v5
    v_mul_u32_u24 v6, 80, v6
    v_add_u32 v7, 64, v5
    v_add_u32 v8, 64, v6
    v_lshl_add_u32 v5, v3, 5, v5     ; kv main even
    v_lshl_add_u32 v6, v3, 5, v6     ; kv main odd
    v_lshl_add_u32 v7, v3, 26, v7    ; kv tail even (hi -> out of range)
    v_lshl_add_u32 v8, v3, 26, v8    ; kv tail odd
    v_lshlrev_b32 v9, 3, v2
    v_add_u32 v9, 1024, v9
    v_lshl_add_u32 v9, v3, 26, v9
    s_mul_i32 s32, s3, {8*1680}      ; kv soffset
    s_lshl_b32 s33, s30, 5
    s_lshl_b32 s34, s3, 3
    s_add_u32 s33, s33, s34
    s_mul_i32 s33, s33, 1280
    s_lshl_b32 s34, s31, 2
    s_add_u32 s34, s34, s3
    s_mul_i32 s34, s34, {50*1024}
    s_waitcnt lgkmcnt(0)
    """)
    srd(kb, 40, P_WS, OFF_KV, SZ_KV); srd(kb, 44, P_WS, OFF_PQ, SZ_PQ); srd(kb, 48, P_WS, OFF_WO, SZ_WO)
    srd(kb, 52, P_X, 0, 2048*1280); srd(kb, 56, P_WS, OFF_H, SZ_H); srd(kb, 60, P_WS, OFF_ST, SZ_ST)
    KVR = 128
    PQA = 200
    for h in range(8):
        o = (h & 1)*1680; b = KVR + 12*h
        kb(f"""
        buffer_load_dwordx4 {V(b,4)}, v{5+(h&1)}, s[40:43], s32 offen offset:{o}
        buffer_load_dwordx4 {V(b+4,4)}, v{5+(h&1)}, s[40:43], s32 offen offset:{o+16}
        buffer_load_dwordx4 {V(b+8,4)}, v{7+(h&1)}, s[40:43], s32 offen offset:{o}
        buffer_load_dwordx4 {A(PQA+6*h,4)}, v4, s[44:47], s33 offen offset:{(h&1)*1280}
        buffer_load_dwordx2 {A(PQA+6*h+4,2)}, v9, s[44:47], s33 offen offset:{(h&1)*1280}
        """)
        if h & 1: kb("s_add_u32 s32, s32, 3360\n s_add_u32 s33, s33, 2560")
    def wo_load(i):
        t = "s_add_u32 s34, s34, 4096\n" if (i % 4 == 0 and i > 0) else ""
        return t + f"buffer_load_dwordx4 {A(4*i,4)}, v4, s[48:51], s34 offen offset:{(i&3)*1024}"
    wl = [wo_load(i) for i in range(50)]
    for _ in range(20): kb(wl.pop(0))
    kb(f"""
    v_mul_u32_u24 v10, 1280, v2
    v_lshl_add_u32 v10, v3, 3, v10   ; x voffset
    s_mul_i32 s35, s30, {32*1280}
    s_mul_i32 s36, s31, 320
    s_add_u32 s35, s35, s36
    s_lshl_b32 s36, s3, 4            ; (w>>1)*32 + (w&1)*16 = w*16
    s_add_u32 s35, s35, s36          ; x soffset
    s_mul_i32 s36, s30, 40
    s_mul_i32 s37, s31, 10
    s_add_u32 s36, s36, s37
    s_lshr_b32 s37, s3, 1
    s_add_u32 s36, s36, s37
    s_lshl_b32 s36, s36, 10
    s_and_b32 s37, s3, 1
    s_lshl_b32 s37, s37, 3
    s_add_u32 s36, s36, s37          ; h soffset
    s_mul_i32 s37, s3, 20480
    v_add_u32 v11, s37, v4
    s_lshl_b32 s37, s3, 10
    v_add_u32 v12, s37, v4
    v_lshlrev_b32 v13, 7, v2
    v_lshl_add_u32 v13, v3, 2, v13
    s_lshl_b32 s38, s30, 12
    s_lshl_b32 s37, s31, 5
    s_add_u32 s38, s38, s37
    s_lshl_b32 s37, s3, 3
    s_add_u32 s38, s38, s37
    """)
    O = 16
    D0 = 56
    KB_ = 224
    def cvt(p):
        L = []
        for hh in range(2):
            b = KVR + 12*(2*p + hh); d = KB_ + 12*(p & 1) + 6*hh
            for i in range(6): L.append(f"v_cvt_pk_bf16_f32 v{d+i}, v{b+2*i}, v{b+2*i+1}")
        return L
    def mm(p, tail):
        for hh in range(2):
            d = V(D0 + 32*(p & 1) + 16*hh, 16); k = KB_ + 12*(p & 1) + 6*hh; q = PQA + 6*(2*p + hh)
            if not tail: kb(f"v_mfma_f32_32x32x16_bf16 {d}, {V(k,4)}, {A(q,4)}, 0")
            else: kb(f"v_mfma_f32_32x32x8_bf16 {d}, {V(k+4,2)}, {A(q+4,2)}, {d}")
    def post(p):
        e = D0 + 32*(p & 1); o = e + 16; L = []
        L += [f"v_add_f32 v{e+12}, {hex(f2u(1e-6))}, v{e+12}", f"v_add_f32 v{o+12}, {hex(f2u(1e-6))}, v{o+12}",
              f"v_rcp_f32 v{e+12}, v{e+12}", f"v_rcp_f32 v{o+12}, v{o+12}", "s_nop 0"]
        for i in range(0, 12, 2): L.append(f"v_pk_mul_f32 {V(e+i,2)}, {V(e+i,2)}, {V(e+12,2)} op_sel_hi:[1,0]")
        for i in range(0, 8, 2): L.append(f"v_pk_mul_f32 {V(o+i,2)}, {V(o+i,2)}, {V(o+12,2)} op_sel_hi:[1,0]")
        for i in range(8, 12, 2): L.append(f"v_pk_fma_f32 {V(e+i,2)}, {V(o+i,2)}, {V(o+12,2)}, {V(e+i,2)} op_sel_hi:[1,0,1]")
        dst = O + 10*p
        for j, src in enumerate([e, e+4, e+8, o, o+4]):
            L.append(f"v_cvt_pk_bf16_f32 v{dst+2*j}, v{src}, v{src+1}")
            L.append(f"v_cvt_pk_bf16_f32 v{dst+2*j+1}, v{src+2}, v{src+3}")
        return L
    for l in cvt(0): kb(l)
    for p in range(4):
        mm(p, False)
        if p < 3:
            for l in cvt(p+1): kb(l)
        for _ in range(4): kb(wl.pop(0))
        mm(p, True)
        if p > 0:
            for l in post(p-1): kb(l)
        for _ in range(3): kb(wl.pop(0))
    while wl: kb(wl.pop(0))
    XR = 236
    for i in range(5): kb(f"buffer_load_dwordx2 {V(XR+2*i,2)}, v10, s[52:55], s35 offen offset:{i*64}")
    for l in post(3): kb(l)
    ACC = 128
    for kap in range(10):
        for nt in range(5):
            d = V(ACC + 16*nt, 16)
            kb(f"v_mfma_f32_32x32x16_bf16 {d}, {A(4*(kap*5+nt),4)}, {V(O+4*kap,4)}, {d if kap else '0'}")
    for nt in range(5):
        for q in range(4):
            kb(f"ds_write_b128 v11, {V(ACC+16*nt+4*q,4)} offset:{(nt*4+q)*1024}")
    kb("s_waitcnt lgkmcnt(0)\n s_barrier")
    T = 16
    kb("v_add_u32 v14, 40960, v12")
    for i in range(5):
        for w in range(4):
            a, o = ("v12", w*20480) if w < 2 else ("v14", (w-2)*20480)
            kb(f"ds_read_b128 {V(T+(i*4+w)*4,4)}, {a} offset:{o + i*4096}")
    kb("v_mov_b32 v100, 0\n v_mov_b32 v101, 0\n v_mov_b32 v102, 0\n v_mov_b32 v103, 0")
    for i in range(5):
        a = T + i*16; x = XR + 2*i
        kb(f"""
        v_pk_add_f32 {V(a,2)}, {V(a,2)}, {V(a+4,2)}
        v_pk_add_f32 {V(a+2,2)}, {V(a+2,2)}, {V(a+6,2)}
        v_pk_add_f32 {V(a+8,2)}, {V(a+8,2)}, {V(a+12,2)}
        v_pk_add_f32 {V(a+10,2)}, {V(a+10,2)}, {V(a+14,2)}
        v_pk_add_f32 {V(a,2)}, {V(a,2)}, {V(a+8,2)}
        v_pk_add_f32 {V(a+2,2)}, {V(a+2,2)}, {V(a+10,2)}
        v_cvt_pk_bf16_f32 v{a+4}, v{a}, v{a+1}
        v_cvt_pk_bf16_f32 v{a+5}, v{a+2}, v{a+3}
        v_lshlrev_b32 v{a}, 16, v{a+4}
        v_and_b32 v{a+1}, 0xffff0000, v{a+4}
        v_lshlrev_b32 v{a+2}, 16, v{a+5}
        v_and_b32 v{a+3}, 0xffff0000, v{a+5}
        v_lshlrev_b32 v{a+8}, 16, v{x}
        v_and_b32 v{a+9}, 0xffff0000, v{x}
        v_lshlrev_b32 v{a+10}, 16, v{x+1}
        v_and_b32 v{a+11}, 0xffff0000, v{x+1}
        v_pk_add_f32 {V(a,2)}, {V(a,2)}, {V(a+8,2)}
        v_pk_add_f32 {V(a+2,2)}, {V(a+2,2)}, {V(a+10,2)}
        v_cvt_pk_bf16_f32 v{a+4}, v{a}, v{a+1}
        v_cvt_pk_bf16_f32 v{a+5}, v{a+2}, v{a+3}
        buffer_store_dwordx2 {V(a+4,2)}, v4, s[56:59], s36 offen offset:{(i&1)*2048}
        v_lshlrev_b32 v{a}, 16, v{a+4}
        v_and_b32 v{a+1}, 0xffff0000, v{a+4}
        v_lshlrev_b32 v{a+2}, 16, v{a+5}
        v_and_b32 v{a+3}, 0xffff0000, v{a+5}
        v_pk_add_f32 v[100:101], v[100:101], {V(a,2)}
        v_pk_fma_f32 v[102:103], {V(a,2)}, {V(a,2)}, v[102:103]
        v_pk_add_f32 v[100:101], v[100:101], {V(a+2,2)}
        v_pk_fma_f32 v[102:103], {V(a+2,2)}, {V(a+2,2)}, v[102:103]
        """)
        if i & 1: kb("s_add_u32 s36, s36, 4096")
    kb("""
    v_add_f32 v100, v100, v101
    v_add_f32 v102, v102, v103
    v_permlane32_swap_b32 v100, v102
    v_add_f32 v100, v100, v102
    buffer_store_dword v100, v13, s[60:63], s38 offen
    k2_kernel_end:
    """)
    return (kb, 256, 256, 81920)

EPS6 = hex(f2u(1e-6))
def k1_stats(kb, XX, SM, out_mean, out_rstd, tmp, vbp):
    for mt in range(2):
        x = XX + 4*mt
        kb(f"""
        v_cndmask_b32 v{x}, v{x}, v{x+1}, s[64:65]
        v_cndmask_b32 v{x}, v{x}, v{x+2}, s[66:67]
        v_cndmask_b32 v{x}, v{x}, v{x+3}, s[68:69]
        ds_bpermute_b32 v{x+1}, v{vbp}, v{x}
        """)
    for mt in range(2):
        ln_scalars(kb, SM + 4*mt, XX + 4*mt + 1, out_mean + mt, out_rstd + mt, tmp)
        kb(f"v_mul_f32 v{out_mean+mt}, v{out_mean+mt}, v{out_rstd+mt}")

def k1_main(kb, role):
    kv = role == "kv"
    NS = 5 if kv else 4
    SLOT = 20480 if kv else 16384
    NT = 10 if kv else 8
    ACC = 64
    XX = ACC + NT*8; SM = XX + 8; CSA = SM + 8
    ONES = 60
    NBF = 8; WF = 160
    def issue(P):
        L = []
        L.append((f"s_lshl_b32 s39, s38, 7\n s_add_u32 s39, s39, s36\n s_mul_i32 s40, s38, {64*3840}\n s_add_u32 s40, s40, s37\n"
                  f"s_add_u32 s38, s38, 1\n s_cmp_eq_u32 s38, 10\n s_cselect_b32 s38, 0, s38", None))
        nd = 5 if kv else 4
        for j in range(nd):
            L.append((f"s_add_u32 m0, s35, {(P % NS)*SLOT + j*1024}\n buffer_load_dwordx4 v{20+j}, s[48:51], s40 offen lds", f"slot{P}"))
        for ks in range(2):
            for mt in range(2):
                L.append((f"buffer_load_dwordx4 {A(16*P + 8*ks + 4*mt, 4)}, v{18+mt}, s[44:47], s39 offen offset:{64*ks}", None))
        return L
    steps = []
    for P in range(10):
        sb = (P % NS)*SLOT
        for ks in range(2):
            first = (P == 0 and ks == 0)
            xa = [A(16*P + 8*ks + 4*mt, 4) for mt in range(2)]
            def C(r, f=first): return "0" if f else V(r, 4)
            extra = []
            for mt in range(2):
                extra.append(f"v_mfma_f32_16x16x32_bf16 {V(XX+4*mt,4)}, {xa[mt]}, {xa[mt]}, {C(XX+4*mt)}")
                extra.append(f"v_mfma_f32_16x16x32_bf16 {V(SM+4*mt,4)}, {V(ONES,4)}, {xa[mt]}, {C(SM+4*mt)}")
            for t in range(NT):
                if kv:
                    hiset = sb >= 61440; so = sb - (61440 if hiset else 0) + ks*10240
                    if t < 8: rs = (26 + 4*hiset, so + (t >> 2)*5120 + 40*(t & 3), 1280)
                    else: rs = (27 + 4*hiset, so + (t - 8)*5120, 1280)
                    mm = [f"v_mfma_f32_16x16x32_bf16 {V(ACC+(t*2+mt)*4,4)}, {xa[mt]}, FR, {C(ACC+(t*2+mt)*4)}" for mt in range(2)]
                else:
                    rs = (26 + t, sb + ks*8192, 2048)
                    mm = [f"v_mfma_f32_16x16x32_bf16 {V(ACC+(t*2+mt)*4,4)}, FR, {xa[mt]}, {C(ACC+(t*2+mt)*4)}" for mt in range(2)]
                if t % 2 == 1 and extra and t >= 1: mm.append(extra.pop(0))
                steps.append((P, rs, mm))
                if t in (2, 5):
                    i = 0 if t == 2 else 1
                    if kv:
                        steps.append((P, (28 + 4*hiset, so + i*5120, 1280),
                                      [f"v_mfma_f32_16x16x32_bf16 {V(CSA+4*i,4)}, {V(ONES,4)}, FR, {C(CSA+4*i)}"]))
                    else:
                        steps.append((P, (34 + i, sb + ks*8192, 2048),
                                      [f"v_mfma_f32_16x16x32_bf16 {V(CSA+4*i,4)}, FR, {V(ONES,4)}, {C(CSA+4*i)}"]))
                if kv and t == 8 and ks == 0:
                    steps.append((P, (29 + 4*hiset, sb - (61440 if hiset else 0), 1280),
                                  [f"v_mfma_f32_16x16x32_bf16 {V(CSA+8,4)}, {V(ONES,4)}, FR, {C(CSA+8)}"]))
            assert not extra
    for P in range(NS - 1):
        for t, tag in issue(P): kb(t, tag)
    return dict(steps=steps, issue=issue, NS=NS, NBF=NBF, WF=WF, ACC=ACC, XX=XX, SM=SM, CSA=CSA, ONES=ONES)

def k1_loop(kb, M):
    steps, issue, NS, NBF, WF = M["steps"], M["issue"], M["NS"], M["NBF"], M["WF"]
    ready = -1; fill = []
    def rd(s):
        nonlocal ready
        P, (a, o, hs), _ = steps[s]
        if P > ready:
            ready = P
            kb.wait_vm(f"slot{P}")
            kb("s_waitcnt lgkmcnt(0)\n s_barrier")
            if P + NS - 1 < 10: fill.extend(issue(P + NS - 1))
        b = WF + 4*(s % NBF)
        kb(f"ds_read_b64_tr_b16 {A(b,2)}, v{a} offset:{o}")
        kb(f"ds_read_b64_tr_b16 {A(b+2,2)}, v{a} offset:{o+hs}")
    for s in range(NBF - 1): rd(s)
    for s, (P, _, mm) in enumerate(steps):
        if s + NBF - 1 < len(steps): rd(s + NBF - 1)
        for m in mm: kb(m.replace("FR", A(WF + 4*(s % NBF), 4)))
        if fill:
            t, tag = fill.pop(0); kb(t, tag)
    assert not fill

def k1():
    kb = KB("k1_kernel")
    n = kb.name
    prologue(kb, 256)
    kb(f"""
    s_and_b32 s28, s2, 7
    s_lshr_b32 s29, s2, 3
    s_cmp_ge_u32 s29, 26
    s_cbranch_scc1 {n}_rl
    s_and_b32 s30, s29, 1
    s_lshl_b32 s31, s28, 1
    s_add_u32 s30, s30, s31          ; rb
    s_lshr_b32 s31, s29, 1           ; cbi: 0..7 kv head quads, 8..12 q column blocks
    s_mul_i32 s38, s30, 5
    s_mul_i32 s39, s31, 6
    s_add_u32 s38, s38, s39
    s_lshr_b32 s38, s38, 3
    s_cmp_ge_u32 s38, 10
    s_cselect_b32 s39, 10, 0
    s_sub_u32 s38, s38, s39
    v_and_b32 v2, 15, v1             ; n / m
    v_lshrrev_b32 v3, 4, v1          ; c / g
    v_bfe_u32 v4, v1, 2, 2           ; r
    v_and_b32 v5, 3, v1              ; c'
    v_mul_u32_u24 v18, 1280, v2
    v_lshl_add_u32 v18, v3, 4, v18
    v_add_u32 v19, {16*1280}, v18
    s_lshl_b32 s36, s30, 2
    s_add_u32 s36, s36, s3           ; R = 4rb + w
    s_mul_i32 s34, s36, {32*1280}
    s_mov_b32 s36, s34
    ; p0 = 16(g>>1) + 4(g&1) + r
    v_lshrrev_b32 v6, 1, v3
    v_lshlrev_b32 v6, 4, v6
    v_and_b32 v7, 1, v3
    v_lshl_add_u32 v6, v7, 2, v6
    v_add_u32 v6, v6, v4
    v_mov_b32 v60, 0x3f803f80
    v_mov_b32 v61, 0x3f803f80
    v_mov_b32 v62, 0x3f803f80
    v_mov_b32 v63, 0x3f803f80
    v_cmp_eq_u32 s[64:65], 1, v5
    v_cmp_eq_u32 s[66:67], 2, v5
    v_cmp_eq_u32 s[68:69], 3, v5
    v_lshl_add_u32 v17, v4, 4, v2
    v_lshlrev_b32 v17, 2, v17
    s_waitcnt lgkmcnt(0)
    """)
    srd(kb, 44, P_X, 0, 2048*1280); srd(kb, 48, P_WQKV, 0, 640*3840)
    kb(f"s_cmp_ge_u32 s31, 8\n s_cbranch_scc1 {n}_q")
    KVL = 102400; CSX = KVL + 7168
    for j in range(5):
        kb(f"""
        v_add_u32 v8, {64*j}, v1
        v_mul_u32_u24 v9, 6554, v8
        v_lshrrev_b32 v9, 16, v9         ; p = q/10
        v_mul_u32_u24 v10, 10, v9
        v_sub_u32 v8, v8, v10            ; chunk
        v_and_b32 v10, 19, v9
        v_bfe_u32 v11, v9, 2, 1
        v_lshl_add_u32 v10, v11, 3, v10
        v_bfe_u32 v11, v9, 3, 1
        v_lshl_add_u32 v10, v11, 2, v10
        v_mul_u32_u24 v10, 3840, v10
        v_lshl_add_u32 v{20+j}, v8, 4, v10
        """)
    kb(f"""
    s_lshr_b32 s32, s3, 1
    s_and_b32 s33, s3, 1
    s_mul_i32 s37, s32, {32*3840}
    s_mul_i32 s41, s33, 1280
    s_add_u32 s37, s37, s41
    s_mul_i32 s41, s31, 160
    s_add_u32 s37, s37, s41
    s_add_u32 s37, s37, 1280
    s_mul_i32 s35, s3, 5120          ; (w>>1)*10240 + (w&1)*5120
    """)
    M = k1_main(kb, "kv")
    kb(f"""
    v_mul_u32_u24 v6, 160, v6
    v_lshl_add_u32 v26, v5, 3, v6    ; aN
    v_mul_u32_u24 v7, 40, v5
    v_add3_u32 v27, v6, v7, 32       ; aT
    s_mul_i32 s41, s3, 40
    v_add_u32 v28, s41, v26          ; aC
    s_mul_i32 s41, s33, 5120
    s_mul_i32 s42, s32, 10240
    s_add_u32 s41, s41, s42
    v_add_u32 v29, s41, v27          ; aC4
    v_add_u32 v30, 61440, v26
    v_add_u32 v31, 61440, v27
    v_add_u32 v32, 61440, v28
    v_add_u32 v33, 61440, v29
    ; zero the LDS kv accumulator
    v_mov_b32 v8, 0
    v_mov_b32 v9, 0
    v_mov_b32 v10, 0
    v_mov_b32 v11, 0
    v_lshlrev_b32 v12, 4, v0
    v_add_u32 v12, {65536}, v12
    ds_write_b128 v12, v[8:11] offset:{KVL-65536}
    v_cmp_gt_u32 vcc, 192, v0
    s_and_saveexec_b64 s[42:43], vcc
    s_cbranch_execz {n}_nz
    ds_write_b128 v12, v[8:11] offset:{KVL-65536+4096}
    {n}_nz:
    s_mov_b64 exec, s[42:43]
    """)
    k1_loop(kb, M)
    ACC, XX, SM, CSA, ONES = M["ACC"], M["XX"], M["SM"], M["CSA"], M["ONES"]
    srd(kb, 52, P_DBG, 0, 256)
    kb(f"""
    v_mov_b32 v16, 0
    buffer_load_dword v59, v16, s[52:55], 0 offen sc1
    v_lshlrev_b32 v8, 2, v2
    s_lshl_b32 s41, s3, 6
    s_add_u32 s41, s41, {CSX}
    v_add_u32 v9, s41, v8
    ds_write_b32 v9, v{CSA}
    ds_write_b32 v9, v{CSA+4} offset:256
    s_lshl_b32 s41, s33, 7
    s_lshl_b32 s42, s32, 6
    s_add_u32 s41, s41, s42
    s_add_u32 s41, s41, {CSX+512}
    v_add_u32 v9, s41, v8
    ds_write_b32 v9, v{CSA+8}
    """)
    k1_stats(kb, XX, SM, 34, 36, 38, 17)
    kb(f"""
    v_mul_u32_u24 v10, 80, v3        ; (16c + 4c)*4
    """)
    RS = 40; MR = 48
    for mt in range(2):
        for r in range(4):
            kb(f"ds_bpermute_b32 v{RS+4*mt+r}, v10, v{36+mt} offset:{4*r}")
            kb(f"ds_bpermute_b32 v{MR+4*mt+r}, v10, v{34+mt} offset:{4*r}")
    kb(f"s_waitcnt lgkmcnt(0)\n s_barrier\n v_add_u32 v9, {CSX}, v8")
    CS = 160
    for t in range(8): kb(f"ds_read_b32 v{CS+2*t}, v9 offset:{64*t}")
    for i in range(2):
        kb(f"ds_read_b32 v{CS+16+2*i}, v9 offset:{512+128*i}\n ds_read_b32 v{CS+17+2*i}, v9 offset:{512+128*i+64}")
    for i in range(2): kb(f"v_add_f32 v{CS+16+2*i}, v{CS+16+2*i}, v{CS+17+2*i}")
    kb(f"v_mov_b32 v56, {EPS6}\n v_mov_b32 v58, {hex(f2u(LOG2E))}")
    FR = 184
    T0 = 224
    order = [0, 1, 2, 3, 8, 4, 5, 6, 7, 9]
    for t in order:
        isk = t < 4 or t == 8
        for mt in range(2):
            a = ACC + (t*2+mt)*4
            for p in range(2):
                tt = T0 + 2*p
                if isk: kb(f"v_pk_fma_f32 {V(tt,2)}, {V(MR+4*mt+2*p,2)}, {V(CS+2*t,2)}, {V(56,2)} op_sel_hi:[1,0,0] neg_lo:[1,0,0] neg_hi:[1,0,0]")
                else: kb(f"v_pk_mul_f32 {V(tt,2)}, {V(MR+4*mt+2*p,2)}, {V(CS+2*t,2)} op_sel_hi:[1,0] neg_lo:[1,0] neg_hi:[1,0]")
            for p in range(2):
                kb(f"v_pk_fma_f32 {V(a+2*p,2)}, {V(a+2*p,2)}, {V(RS+4*mt+2*p,2)}, {V(T0+2*p,2)}")
            if isk:
                for p in range(2): kb(f"v_pk_mul_f32 {V(T0+2*p,2)}, {V(a+2*p,2)}, {V(58,2)} op_sel_hi:[1,0]")
                for r in range(4): kb(f"v_exp_f32 v{T0+r}, v{T0+r} clamp")
                for r in range(4): kb(f"v_max_f32 v{a+r}, v56, v{a+r}")
                for p in range(2): kb(f"v_pk_add_f32 {V(a+2*p,2)}, {V(a+2*p,2)}, {V(T0+2*p,2)}")
            for p in range(2): kb(f"v_cvt_pk_bf16_f32 v{FR+4*t+2*mt+p}, v{a+2*p}, v{a+2*p+1}")
    prods = []
    for h in range(4): prods += [("A", h, 4+h, h), ("B", h, 4+h, 8), ("C", h, 9, h), ("Z", h, None, h)]
    prods += [("D", 0, 9, 8), ("E", 0, None, 8)]
    for i, (k, h, ta, tb) in enumerate(prods):
        a = V(ONES, 4) if ta is None else V(FR + 4*ta, 4)
        kb(f"v_mfma_f32_16x16x32_bf16 {V(ACC+4*i,4)}, {a}, {V(FR+4*tb,4)}, 0")
    kb(f"""
    v_mul_u32_u24 v9, 320, v3
    v_add3_u32 v10, v9, v8, {0}
    v_add_u32 v10, {KVL}, v10        ; aA
    v_lshlrev_b32 v12, 2, v5
    v_add3_u32 v11, v9, v12, 64
    v_add_u32 v11, {KVL}, v11        ; aB
    v_add_u32 v13, {KVL}, v8         ; aC
    v_mul_u32_u24 v14, 1680, v3
    v_add3_u32 v14, v14, v12, 64
    v_add_u32 v14, {KVL}, v14        ; aD
    v_mul_u32_u24 v15, 1680, v4
    v_add3_u32 v15, v15, v12, 64
    v_add_u32 v15, {KVL}, v15        ; aE
    """)
    def setexec(m): kb(f"s_mov_b32 exec_lo, {hex(m & 0xffffffff)}\n s_mov_b32 exec_hi, {hex(m >> 32)}")
    for i, (k, h, ta, tb) in enumerate(prods):
        d = ACC + 4*i
        if k == "A":
            setexec(2**64-1)
            for r in range(4): kb(f"ds_add_f32 v10, v{d+r} offset:{h*1680+r*80}")
        elif k == "B":
            setexec(0x000F000F000F000F << (4*h))
            for r in range(4): kb(f"ds_add_f32 v11, v{d+r} offset:{h*1680+r*80}")
        elif k == "C":
            setexec(0xFFFF << (16*h))
            for r in range(4): kb(f"ds_add_f32 v13, v{d+r} offset:{h*1680+1280+r*80}")
        elif k == "Z":
            setexec(0xFFFF)
            kb(f"ds_add_f32 v13, v{d} offset:{h*1680+1600}")
        elif k == "D":
            setexec(0xF0000F0000F0000F)
            for r in range(4): kb(f"ds_add_f32 v14, v{d+r} offset:{1280+r*80}")
        else:
            setexec(0xFFFF)
            kb(f"ds_add_f32 v15, v{d} offset:1600")
    setexec(2**64-1)
    kb(f"""
    s_mov_b32 s41, 0
    s_waitcnt vmcnt(0)
    {n}_poll:
    v_readfirstlane_b32 s42, v59
    s_cmp_lg_u32 s42, 0
    s_cbranch_scc1 {n}_go
    s_sleep 4
    buffer_load_dword v59, v16, s[52:55], 0 offen sc1
    s_add_u32 s41, s41, 1
    s_cmp_lt_u32 s41, 0x100000
    s_waitcnt vmcnt(0)
    s_cbranch_scc1 {n}_poll
    {n}_go:
    s_mul_i32 s41, s31, 6720
    s_add_u32 s41, s41, {OFF_KV}
    s_add_u32 s56, s{P_WS}, s41
    s_addc_u32 s57, s{P_WS+1}, 0
    s_mov_b32 s58, 6720
    s_mov_b32 s59, 0x20000
    v_lshlrev_b32 v9, 2, v0
    v_add_u32 v10, {KVL}, v9
    v_add_u32 v11, 4096, v9
    s_waitcnt lgkmcnt(0)
    s_barrier
    """)
    for i in range(7): kb(f"ds_read_b32 v{20+i}, v10 offset:{1024*i}")
    for i in range(7):
        kb(f"buffer_atomic_add_f32 v{20+i}, v{9 if i < 4 else 11}, s[56:59], 0 offen offset:{1024*(i&3)}")
    kb(f"s_branch {n}_end")
    kb(f"{n}_q:")
    kb.fence()
    CSQ = 65536
    for j in range(4):
        kb(f"""
        v_add_u32 v8, {4*(j&1)}, v3
        v_lshlrev_b32 v8, 1, v8
        v_xor_b32 v8, v8, v2             ; chunk
        v_add_u32 v9, {8*(j&1) + 4*(j>>1)}, v3
        v_mul_u32_u24 v9, 3840, v9
        v_lshl_add_u32 v{20+j}, v8, 4, v9
        """)
    kb(f"""
    s_sub_u32 s31, s31, 8            ; qc
    s_mul_i32 s37, s3, {16*3840}
    s_lshl_b32 s41, s31, 8
    s_add_u32 s37, s37, s41
    s_lshl_b32 s35, s3, 12
    """)
    M = k1_main(kb, "q")
    kb(f"""
    v_and_b32 v7, 7, v6
    v_lshlrev_b32 v7, 1, v7          ; f = 2(p0&7)
    v_lshlrev_b32 v6, 8, v6
    v_and_b32 v8, 1, v5
    v_lshl_add_u32 v6, v8, 3, v6
    v_lshrrev_b32 v8, 1, v5
    v_lshl_add_u32 v6, v8, 4, v6     ; p0*256 + b*16 + (c'&1)*8
    """)
    for t in range(8):
        kb(f"v_xor_b32 v9, {2*t}, v7\n v_lshl_add_u32 v{26+t}, v9, 4, v6")
    kb(f"""
    s_lshl_b32 s41, s3, 1
    v_xor_b32 v9, s41, v7
    v_lshl_add_u32 v34, v9, 4, v6
    s_add_u32 s41, s41, 8
    v_xor_b32 v9, s41, v7
    v_lshl_add_u32 v35, v9, 4, v6
    s_lshl_b32 s41, s31, 5
    """)
    SA = 36
    for t in range(8):
        kb(f"""
        v_add_u32 v8, {4*t}, v3
        v_add_u32 v8, s41, v8            ; G
        v_mul_u32_u24 v9, 52429, v8
        v_lshrrev_b32 v9, 18, v9         ; H
        v_mul_u32_u24 v10, 5, v9
        v_sub_u32 v8, v8, v10            ; gi
        v_mul_u32_u24 v9, 1280, v9
        v_lshrrev_b32 v10, 1, v8
        v_lshl_add_u32 v9, v10, 9, v9
        v_and_b32 v10, 1, v8
        v_lshl_add_u32 v9, v10, 3, v9
        v_lshrrev_b32 v10, 2, v8
        v_sub_u32 v10, 4, v10
        v_lshlrev_b32 v11, v10, v2
        v_add_u32 v{SA+2*t}, v9, v11
        v_lshlrev_b32 v11, v10, 16
        v_add_u32 v{SA+2*t+1}, v{SA+2*t}, v11
        """)
    k1_loop(kb, M)
    ACC, XX, SM, CSA = M["ACC"], M["XX"], M["SM"], M["CSA"]
    srd(kb, 52, P_WS, OFF_PQ, SZ_PQ)
    kb(f"""
    v_lshlrev_b32 v8, 4, v3
    v_add_u32 v8, {CSQ}, v8
    s_lshl_b32 s41, s3, 6
    v_add_u32 v9, s41, v8
    ds_write_b128 v9, {V(CSA,4)}
    ds_write_b128 v9, {V(CSA+4,4)} offset:256
    """)
    k1_stats(kb, XX, SM, 52, 54, 56, 17)
    kb(f"""
    v_mov_b32 v160, v52
    v_mov_b32 v162, v53
    v_mov_b32 v164, v54
    v_mov_b32 v166, v55
    v_mov_b32 v56, {EPS6}
    v_mov_b32 v58, {hex(f2u(LOG2E))}
    s_waitcnt lgkmcnt(0)
    s_barrier
    """)
    CS = 168
    for t in range(8): kb(f"ds_read_b128 {V(CS+4*t,4)}, v8 offset:{64*t}")
    T0 = 224
    for t in range(8):
        for mt in range(2):
            a = ACC + (t*2+mt)*4
            for p in range(2):
                kb(f"v_pk_fma_f32 {V(T0+2*p,2)}, {V(CS+4*t+2*p,2)}, {V(160+2*mt,2)}, {V(56,2)} op_sel_hi:[1,0,0] neg_lo:[1,0,0] neg_hi:[1,0,0]")
            for p in range(2):
                kb(f"v_pk_fma_f32 {V(a+2*p,2)}, {V(a+2*p,2)}, {V(164+2*mt,2)}, {V(T0+2*p,2)} op_sel_hi:[1,0,1]")
            for p in range(2): kb(f"v_pk_mul_f32 {V(T0+2*p,2)}, {V(a+2*p,2)}, {V(58,2)} op_sel_hi:[1,0]")
            for r in range(4): kb(f"v_exp_f32 v{T0+r}, v{T0+r} clamp")
            for r in range(4): kb(f"v_max_f32 v{a+r}, v56, v{a+r}")
            for p in range(2): kb(f"v_pk_add_f32 {V(a+2*p,2)}, {V(a+2*p,2)}, {V(T0+2*p,2)}")
            for p in range(2): kb(f"v_cvt_pk_bf16_f32 v{a+p}, v{a+2*p}, v{a+2*p+1}")
            kb(f"buffer_store_dwordx2 {V(a,2)}, v{SA+2*t+mt}, s[52:55], s34 offen")
    kb(f"s_branch {n}_end")
    kb(f"{n}_rl:")
    kb.fence()
    kb(f"""
    s_sub_u32 s29, s29, 26
    s_lshl_b32 s29, s29, 3
    s_add_u32 s29, s29, s28          ; unit
    s_waitcnt lgkmcnt(0)
    s_cmp_eq_u32 s29, 47
    s_cbranch_scc0 {n}_rl_unit
    """)
    srd(kb, 48, P_WS, OFF_KV, SZ_KV); srd(kb, 52, P_DBG, 0, 256)
    kb("v_mov_b32 v8, 0\n v_mov_b32 v9, 0\n v_mov_b32 v10, 0\n v_mov_b32 v11, 0\n v_lshlrev_b32 v12, 4, v0\n s_mov_b32 s41, 0")
    for i in range(14):
        kb(f"buffer_store_dwordx4 v[8:11], v12, s[48:51], s41 offen sc1\n s_add_u32 s41, s41, 4096")
    kb(f"""
    s_waitcnt vmcnt(0)
    s_barrier
    v_mov_b32 v9, 1
    v_cmp_eq_u32 vcc, 0, v0
    s_and_saveexec_b64 s[42:43], vcc
    s_cbranch_execz {n}_rl_f
    buffer_store_dword v9, v8, s[52:55], 0 offen sc1
    {n}_rl_f:
    s_mov_b64 exec, s[42:43]
    {n}_rl_unit:
    """)
    relayout(kb, 29, f"{n}_rl_next")
    kb(f"""
    {n}_rl_next:
    s_add_u32 s29, s29, 48
    s_cmp_lt_u32 s29, 94
    s_cbranch_scc0 {n}_end
    s_barrier
    s_branch {n}_rl_unit
    {n}_end:
    """)
    return (kb, 256, 256, CSX + 1024)
```

```python
import re

TRANS = ("v_exp_f32", "v_log_f32", "v_rcp_f32", "v_rsq_f32", "v_sqrt_f32", "v_sin_f32", "v_cos_f32")
MFMA_PASS = {"v_mfma_f32_16x16x32_bf16": 4, "v_mfma_f32_32x32x16_bf16": 8, "v_mfma_f32_32x32x8_bf16": 8,
             "v_mfma_f32_16x16x16_bf16": 4}

def split_ops(s):
    out, depth, cur = [], 0, ""
    for ch in s:
        if ch in "[(": depth += 1
        if ch in "])": depth -= 1
        if ch == "," and depth == 0:
            out.append(cur.strip()); cur = ""
        else:
            cur += ch
    if cur.strip(): out.append(cur.strip())
    return out

_REG = re.compile(r"^-?\|?(?:abs\()?([vas])(?:(\d+)|\[(\d+):(\d+)\])\)?\|?$")
def regs_of(tok):
    tok = tok.strip()
    if tok in ("vcc", "exec", "m0", "scc"): return {tok}
    if tok in ("vcc_lo", "vcc_hi"): return {"vcc"}
    if tok in ("exec_lo", "exec_hi"): return {"exec"}
    m = _REG.match(tok)
    if not m: return set()
    k = m.group(1)
    if m.group(2) is not None: return {(k, int(m.group(2)))}
    return {(k, i) for i in range(int(m.group(3)), int(m.group(4)) + 1)}

class Ins:
    def __init__(self, text, tag=None):
        self.text = text.strip(); self.tag = tag
        t = self.text.split(";")[0].strip()
        parts = t.split(None, 1)
        self.mn = parts[0]
        rest = parts[1] if len(parts) > 1 else ""
        ops = split_ops(rest)
        self.mods = ""
        if ops:
            lt = ops[-1].split(None, 1)
            ops[-1] = lt[0]
            if len(lt) > 1: self.mods = lt[1]
        self.ops = ops
        self.rd = set(); self.wr = set(); self.kind = "other"; self.srcC = set(); self.srcAB = set()
        self.stdata = set(); self.dpp = False; self.const_rd = set()
        self.classify()
    def classify(s):
        mn, ops = s.mn, s.ops
        R = lambda i: regs_of(ops[i]) if i < len(ops) else set()
        base = re.sub(r"_(e32|e64|dpp|sdwa)$", "", mn)
        if mn.startswith("v_mfma"):
            s.kind = "mfma"; s.wr = R(0); s.srcAB = R(1) | R(2); s.srcC = R(3); s.rd = s.srcAB | s.srcC
            s.passes = MFMA_PASS[mn]
        elif mn.startswith("v_"):
            s.kind = "trans" if base in TRANS else "valu"
            s.dpp = mn.endswith("_dpp") or "row_" in s.mods or "quad_perm" in s.mods
            if mn.startswith("v_permlane") :
                s.wr = R(0) | R(1); s.rd = R(0) | R(1); s.kind = "permlane"
            elif mn.startswith("v_nop"):
                pass
            else:
                s.wr = R(0)
                for i in range(1, len(ops)): s.rd |= R(i)
                if base in ("v_fmac_f32", "v_dot2c_f32_bf16", "v_pk_fmac_f16") or s.dpp: s.rd |= R(0)
                if base.startswith("v_cmp") and not base.startswith("v_cmpx"): pass
                if base in ("v_readfirstlane_b32", "v_readlane_b32"): s.kind = "readlane"
                if base in ("v_add_co_u32", "v_addc_co_u32", "v_sub_co_u32"): s.wr |= R(1)
            s.const_rd = {r for r in s.rd if r == "vcc" or (isinstance(r, tuple) and r[0] == "s")}
        elif mn.startswith("ds_"):
            s.kind = "ds"
            if mn.startswith("ds_read") or mn.startswith("ds_bpermute") or mn.startswith("ds_permute") or mn.startswith("ds_swizzle"):
                s.wr = R(0)
                for i in range(1, len(ops)): s.rd |= R(i)
            else:
                for i in range(len(ops)): s.rd |= R(i)
        elif mn.startswith("buffer_") or mn.startswith("global_"):
            s.kind = "vmem"
            allm = " " + s.mods + " "
            if mn in ("buffer_wbl2", "buffer_inv"):
                pass
            elif mn.startswith("buffer_load") and " lds " in allm:
                for i in range(len(ops)): s.rd |= R(i)
                s.rd.add("m0"); s.kind = "dma"
            elif mn.startswith("buffer_load"):
                s.wr = R(0)
                for i in range(1, len(ops)): s.rd |= R(i)
            else:
                for i in range(len(ops)): s.rd |= R(i)
                if "atomic" in mn and " sc0 " in allm: s.wr = R(0)
                if mn.endswith("x4") or mn.endswith("x3"): s.stdata = R(0)
        elif mn.startswith("s_load") or mn in ("s_memtime", "s_memrealtime"):
            s.kind = "smem"; s.wr = R(0)
            for i in range(1, len(ops)): s.rd |= R(i)
        elif mn.startswith("s_"):
            s.kind = "salu"
            if mn in ("s_waitcnt", "s_nop", "s_barrier", "s_endpgm", "s_sleep", "s_setprio", "s_branch") or mn.startswith("s_cbranch"):
                s.kind = "ctl"
            elif mn.startswith("s_cmp"):
                for i in range(len(ops)): s.rd |= R(i)
            else:
                s.wr = R(0)
                for i in range(1, len(ops)): s.rd |= R(i)
                if "saveexec" in mn: s.wr |= {"exec"}; s.rd |= {"exec"}
        else:
            raise ValueError("unknown instr " + s.text)
    @property
    def is_valu(s): return s.kind in ("valu", "trans", "permlane", "readlane")
    @property
    def states(s):
        if s.mn == "s_nop": return int(s.ops[0], 0) + 1
        return 1

def isv(r): return isinstance(r, tuple) and r[0] in "va"
def iss(r): return r == "vcc" or (isinstance(r, tuple) and r[0] == "s")

def need_states(p, c):
    n = 0
    if p.kind == "mfma":
        big = p.passes == 8
        D = p.wr
        if c.kind == "mfma":
            if c.srcAB & D: n = max(n, 12 if big else 8)
            if c.srcC & D:
                if not (c.srcC == D and c.mn == p.mn): n = max(n, 10 if big else 6)
            elif c.wr & D: n = max(n, 10 if big else 6)
        elif c.is_valu or c.kind in ("ds", "vmem", "dma"):
            if (c.rd | c.wr) & D: n = max(n, 12 if big else 8)
        if c.is_valu and (c.wr & p.srcC): n = max(n, 7 if big else 3)
    if p.is_valu:
        vw = {r for r in p.wr if isv(r)}; sw = {r for r in p.wr if iss(r)}
        if c.kind == "mfma" and (c.rd & vw): n = max(n, 2)
        if p.kind == "trans" and (c.rd & vw) and c.kind != "trans": n = max(n, 1)
        if c.kind == "readlane" and (c.rd & vw): n = max(n, 1)
        if c.kind == "permlane" and (c.rd & vw): n = max(n, 2)
        if c.is_valu and c.dpp and (c.rd & vw): n = max(n, 2)
        if sw:
            if c.kind in ("vmem", "dma") and (c.rd & sw): n = max(n, 5)
            if c.is_valu and (c.const_rd & sw): n = max(n, 4 if c.kind == "readlane" else 2)
            if c.kind in ("salu", "ctl", "smem") and (c.rd & sw): n = max(n, 2)
            if c.mn.startswith("s_cbranch_vcc") and "vcc" in sw: n = max(n, 5)
    if p.stdata and (c.wr & p.stdata): n = max(n, 2)
    if p.kind == "salu" and "m0" in p.wr and c.kind == "dma": n = max(n, 1)
    return n

class KB:
    def __init__(self, name):
        self.name = name; self.items = []
    def e(self, text, tag=None):
        for l in text.split("\n"):
            l = l.strip()
            if not l or l.startswith(";"): continue
            if l.endswith(":"): self.items.append(("label", l[:-1]))
            else: self.items.append(("ins", Ins(l, tag)))
    __call__ = e
    def label(self, l): self.items.append(("label", l))
    def wait_vm(self, tag): self.items.append(("waitvm", tag))
    def fence(self): self.items.append(("fence", None))
    def comment(self, t): self.items.append(("comment", t))
    def finalize(self):
        out = []; hist = []
        vmq = []; lgq = []; smem = set()
        self.maxv = self.maxa = self.maxs = -1
        def emit(ins):
            need = 0; dist = 0
            for p in reversed(hist):
                if dist >= 13: break
                n = need_states(p, ins) - dist
                if n > need: need = n
                dist += p.states
            while need > 0:
                k = min(need, 16)
                nop = Ins(f"s_nop {k-1}"); out.append("    " + nop.text); hist.append(nop); need -= k
            out.append("    " + ins.text); hist.append(ins)
            if len(hist) > 40: del hist[:20]
        def do_wait(vm=None, lg=None):
            t = "s_waitcnt"
            if vm is not None:
                vm = min(vm, 63); t += f" vmcnt({vm})"
                del vmq[:max(0, len(vmq) - vm)]
            if lg is not None:
                lg = min(lg, 15); t += f" lgkmcnt({lg})"
                del lgq[:max(0, len(lgq) - lg)]
                if lg == 0: smem.clear()
            emit(Ins(t))
        for kind, it in self.items:
            if kind == "label":
                out.append(it + ":"); continue
            if kind == "comment":
                out.append("    ; " + it); continue
            if kind == "fence":
                hist.clear(); vmq.clear(); lgq.clear(); smem.clear(); continue
            if kind == "waitvm":
                idx = [i for i, o in enumerate(vmq) if o.tag == it]
                if idx: do_wait(vm=len(vmq) - 1 - idx[-1])
                continue
            ins = it
            for r in ins.rd | ins.wr:
                if isinstance(r, tuple):
                    if r[0] == "v": self.maxv = max(self.maxv, r[1])
                    elif r[0] == "a": self.maxa = max(self.maxa, r[1])
                    else: self.maxs = max(self.maxs, r[1])
            if ins.mn == "s_waitcnt":
                m = re.search(r"vmcnt\((\d+)\)", ins.text)
                if m: del vmq[:max(0, len(vmq) - int(m.group(1)))]
                m = re.search(r"lgkmcnt\((\d+)\)", ins.text)
                if m:
                    del lgq[:max(0, len(lgq) - int(m.group(1)))]
                    if int(m.group(1)) == 0: smem.clear()
                emit(ins); continue
            touch = ins.rd | ins.wr
            wv = wl = None
            for i, o in enumerate(vmq):
                if o.wr & touch: wv = len(vmq) - 1 - i
            for i, o in enumerate(lgq):
                if o.wr & touch: wl = len(lgq) - 1 - i
            if smem & touch: wl = 0
            if wl is not None and smem: wl = 0
            if wv is not None or wl is not None: do_wait(wv, wl)
            emit(ins)
            if ins.kind in ("vmem", "dma"): vmq.append(ins)
            elif ins.kind == "ds": lgq.append(ins)
            elif ins.kind == "smem": smem.update(ins.wr)
        return "\n".join(out)

class Alloc:
    def __init__(self, kind, start, end):
        self.kind = kind; self.free = list(range(start, end))
    def get(self, n=1, align=1):
        if n > 1 and align == 1: align = 2
        fs = set(self.free)
        for b in self.free:
            if b % align == 0 and all((b + i) in fs for i in range(n)):
                for i in range(n): self.free.remove(b + i)
                return b
        raise RuntimeError(f"out of {self.kind} regs for {n}")
    def put(self, b, n=1):
        self.free = sorted(set(self.free) | set(range(b, b + n)))

def rr(kind, b, n=1):
    return f"{kind}{b}" if n == 1 else f"{kind}[{b}:{b+n-1}]"
def V(b, n=1): return rr("v", b, n)
def A(b, n=1): return rr("a", b, n)
def S(b, n=1): return rr("s", b, n)

def make_file(kernels, header=""):
    out = []
    out += ["; " + l for l in header.strip().split("\n")] if header else []
    for kb, g, b, lds in kernels:
        out.append(f"; @launch kernel={kb.name} grid=({g},1,1) block=({b},1,1) lds={lds}")
    out.append('.amdgcn_target "amdgcn-amd-amdhsa--gfx950"')
    out.append(".text")
    descs = []; seen = set()
    for kb, g, b, lds in kernels:
        if kb.name in seen: continue
        seen.add(kb.name)
        body = kb.finalize()
        out += [f".globl {kb.name}", ".p2align 8", f".type {kb.name},@function", f"{kb.name}:", body, "    s_endpgm"]
        acc = max(4, (kb.maxv + 1 + 3) // 4 * 4)
        nfv = acc + kb.maxa + 1 if kb.maxa >= 0 else kb.maxv + 1
        assert acc <= 256 and nfv <= 512, (acc, nfv)
        descs.append(f""".p2align 6
.amdhsa_kernel {kb.name}
  .amdhsa_next_free_vgpr {nfv}
  .amdhsa_next_free_sgpr {max(kb.maxs + 1, 16)}
  .amdhsa_accum_offset {acc}
  .amdhsa_group_segment_fixed_size 0
  .amdhsa_kernarg_size 80
  .amdhsa_user_sgpr_count 2
  .amdhsa_user_sgpr_kernarg_segment_ptr 1
  .amdhsa_system_sgpr_workgroup_id_x 1
  .amdhsa_float_denorm_mode_32 3
.end_amdhsa_kernel""")
    out.append('.section .rodata,"a"')
    out += descs
    return "\n".join(out) + "\n"
```

```python
import numpy as np
S_, D_, F_ = 2048, 640, 1728
OFF_WGU = 0
SZ_WGU = 108*40*1024
OFF_CS = OFF_WGU + SZ_WGU
SZ_CS = 108*1024
OFF_WD = OFF_CS + SZ_CS
SZ_WD = 8*54*5*1024
OFF_WO = OFF_WD + SZ_WD
SZ_WO = 4*4*10*5*1024
OFF_KV = OFF_WO + SZ_WO
SZ_KV = 32*1680
OFF_ST = OFF_KV + 54*1024
SZ_ST = 2048*64
OFF_PQ = OFF_ST + SZ_ST
SZ_PQ = 64*32*1280
OFF_H = OFF_PQ + SZ_PQ
SZ_H = 64*40*1024
OFF_G = OFF_H + SZ_H
SZ_G = 64*108*1024
OFF_FL = OFF_G + SZ_G
SZ_FL = 98304
OFF_TS = OFF_FL + SZ_FL

def f32_layout(a):
    rows, cols = a.shape
    R, U = rows//32, cols//16
    x = a.reshape(R, 32, U, 2, 2, 4)
    x = x.transpose(0, 2, 4, 1, 3, 5)
    return np.ascontiguousarray(x).reshape(-1)
def f32_unlayout(flat, rows, cols):
    R, U = rows//32, cols//16
    x = flat.reshape(R, U, 2, 32, 2, 4).transpose(0, 3, 1, 4, 2, 5)
    return np.ascontiguousarray(x).reshape(rows, cols)

def wgu_layout(wg, wu):
    out = np.zeros((108, 40, 64, 8), np.uint16)
    l = np.arange(64); n = l & 31; hi = l >> 5
    q = n >> 3; hp = (n >> 2) & 1; ip = n & 3
    for j in range(108):
        f = 16*j + 8*(q >> 1) + 4*hp + ip
        for u in range(40):
            for s in range(8):
                k = 16*u + 8*(s >> 2) + 4*hi + (s & 3)
                out[j, u, :, s] = np.where(q & 1, wu[k, f], wg[k, f])
    return out.reshape(-1)
def cs_cols():
    l = np.arange(32); q = l >> 3; hp = (l >> 2) & 1; ip = l & 3
    return (q & 1), 8*(q >> 1) + 4*hp + ip
def wd_layout(wd):
    out = np.zeros((8, 54, 5, 64, 8), np.uint16)
    l = np.arange(64); n = l & 15; c = l >> 4
    for cb in range(8):
        for t in range(5):
            col = 80*cb + 16*t + n
            for T in range(54):
                for s in range(8):
                    k = 32*T + 16*(c >> 1) + 8*(s >> 2) + 4*(c & 1) + (s & 3)
                    out[cb, T, t, :, s] = wd[k, col]
    return out.reshape(-1)
LOFF = [0, 8, 16, 20, 28]; UOFF = [4, 12, 36, 24, 32]
def wo_layout(wo):
    out = np.zeros((4, 4, 10, 5, 64, 8), np.uint16)
    l = np.arange(64); n = l & 31; hi = l >> 5
    for cb in range(4):
        for nt in range(5):
            col = 160*cb + 32*nt + n
            for w in range(4):
                for kap in range(10):
                    for s in range(8):
                        sidx = 2*kap + (s >> 2); pi, ss = divmod(sidx, 5)
                        row = 160*w + 40*pi + np.where(hi, UOFF[ss], LOFF[ss]) + (s & 3)
                        out[cb, w, kap, nt, :, s] = wo[row, col]
    return out.reshape(-1)
def pq_layout(pq):
    x = pq.reshape(64, 32, 32, 20)
    main = x[..., :16].reshape(64, 32, 32, 2, 8).transpose(0, 2, 3, 1, 4).reshape(64, 32, 512)
    tail = x[..., 16:].transpose(0, 2, 1, 3).reshape(64, 32, 128)
    return np.ascontiguousarray(np.concatenate([main, tail], axis=2)).reshape(-1)
def pq_unlayout(flat):
    y = flat.reshape(64, 32, 640)
    main = y[..., :512].reshape(64, 32, 2, 32, 8).transpose(0, 3, 1, 2, 4).reshape(64, 32, 32, 16)
    tail = y[..., 512:].reshape(64, 32, 32, 4).transpose(0, 2, 1, 3)
    return np.concatenate([main, tail], axis=3).reshape(2048, 640)
def bf2f(u): return (u.astype(np.uint32) << 16).view(np.float32)
def f2bf(f):
    u = np.ascontiguousarray(f, dtype=np.float32).view(np.uint32)
    return ((u + 0x7FFF + ((u >> 16) & 1)) >> 16).astype(np.uint16)
```

```python
import sys
from gen import *
HEADER = open("sequential_preLN__linear_attn_block__geglu_ffn__prompt.s.ref").read().split("; Override launch")[0]
HEADER = "\n".join(l[2:] if l.startswith("; ") else l[1:] for l in HEADER.strip().split("\n"))
ks = [k1(), k2(), k3(), k4()]
out = sys.argv[1] if len(sys.argv) > 1 else "sequential_preLN__linear_attn_block__geglu_ffn__prompt.s"
open(out, "w").write(make_file(ks, HEADER))
print("wrote", out)
```

```python
import sys
from gen import *
def empty():
    kb = KB("e_kernel"); kb("s_nop 0\n v_mov_b32 v1, 0"); return (kb, 256, 256, 0)
ks = [k1(), k2(), k3(), k4()]
e = empty()
open("v_plus16.s", "w").write(make_file(ks + [e]*16))
open("v_mid16.s", "w").write(make_file(ks[:1] + [e]*16 + ks[1:]))
open("v_base.s", "w").write(make_file(ks))
```

```python
import sys
from kb import *
from layouts import *

P_X, P_WQKV, P_WO, P_GATE, P_UP, P_DOWN, P_OUT, P_DBG, P_WS = 8, 10, 12, 16, 18, 20, 22, 24, 26

DIAG = False
OPT = dict(rot1=1, rot3=0, rot4=0, pf2=0, pf3=0, map1=0, look3=3, vp3=32, map34=1, norl=0, st1=1, st2=0, st3=1, st4=0)
STM = ['', ' sc1', ' nt', ' sc0 sc1']
def stamp(kb, i):
    if DIAG: kb(f"{'s_memtime' if DIAG == 2 else 's_memrealtime'} s[{88+2*i}:{89+2*i}]")
def finish(kb, kidx):
    n = kb.name
    kb(f"{n}_fin:")
    if DIAG:
        kb.fence()
        kb(f"s_waitcnt vmcnt(0) lgkmcnt(0)\n {'s_memtime' if DIAG == 2 else 's_memrealtime'} s[86:87]\n s_memtime s[84:85]\n s_mov_b64 exec, -1\n s_waitcnt lgkmcnt(0)\n s_sub_u32 s100, s84, s100")
        srd(kb, 40, P_WS, OFF_TS + kidx*65536, 65536)
        kb("s_lshl_b32 s44, s2, 2\n s_add_u32 s44, s44, s3\n s_lshl_b32 s44, s44, 5\n s_waitcnt lgkmcnt(0)")
        for i in range(7): kb(f"v_mov_b32 v{8+i}, s{88+2*i}")
        kb("v_mov_b32 v15, s86\n v_mov_b32 v2, s44\n s_mov_b64 exec, 1")
        kb("buffer_store_dwordx4 v[8:11], v2, s[40:43], 0 offen\n buffer_store_dwordx4 v[12:15], v2, s[40:43], 0 offen offset:16")
    kb(f"{n}_end:")

def prologue(kb, nwg):
    if DIAG:
        for i in range(1, 6): kb(f"s_mov_b32 s{88+2*i}, 0")
        kb("s_memtime s[100:101]")
    stamp(kb, 0)
    kb(f"""
    s_cmp_ge_u32 s2, {nwg}
    s_cbranch_scc1 {kb.name}_end
    s_load_dwordx16 s[8:23], s[0:1], 0
    s_load_dwordx4 s[24:27], s[0:1], 64
    v_lshrrev_b32 v2, 6, v0
    v_and_b32 v1, 63, v0
    v_readfirstlane_b32 s3, v2
    """)

def srd(kb, d, ptr, off, size):
    assert d % 4 == 0
    if off:
        kb(f"s_add_u32 s{d}, s{ptr}, {off}\n s_addc_u32 s{d+1}, s{ptr+1}, 0")
    else:
        kb(f"s_mov_b32 s{d}, s{ptr}\n s_mov_b32 s{d+1}, s{ptr+1}")
    kb(f"s_mov_b32 s{d+2}, {size}\n s_mov_b32 s{d+3}, 0x20000")

def relayout(kb, su, nxt, sbase):
    n = kb.name
    kb.fence()
    kb(f"""
    v_lshrrev_b32 v2, 3, v1          ; l>>3
    v_and_b32 v3, 7, v1              ; l&7
    v_lshlrev_b32 v3, 4, v3
    v_lshlrev_b32 v4, 4, v1
    v_bfe_u32 v5, v1, 2, 2           ; r
    v_and_b32 v6, 3, v1              ; c'
    v_lshrrev_b32 v7, 5, v1          ; hi (l>>5)
    v_bfe_u32 v8, v1, 4, 1
    s_lshl_b32 s44, s3, 10           ; wave*1024
    s_add_u32 s44, s44, s{sbase}
    s_cmp_lt_u32 s{su}, 54
    s_cbranch_scc0 {n}_rl_notg
    """)
    kb(f"""
    s_lshr_b32 s41, s{su}, 1
    s_and_b32 s42, s{su}, 1
    v_mul_u32_u24 v9, 3456, v2
    v_add_u32 v9, v9, v3
    s_mul_i32 s43, s42, {320*3456}
    s_mul_i32 s45, s3, {8*3456}
    s_add_u32 s43, s43, s45
    s_lshl_b32 s45, s41, 7
    s_add_u32 s43, s43, s45
    """)
    srd(kb, 48, P_GATE, 0, 640*3456); srd(kb, 52, P_UP, 0, 640*3456); srd(kb, 56, P_WS, OFF_WGU, SZ_WGU)
    srd(kb, 60, P_WS, OFF_CS, SZ_CS)
    for i in range(10):
        for mtx in range(2):
            kb(f"s_add_u32 m0, s44, {i*4096 + mtx*40960}")
            kb(f"buffer_load_dwordx4 v9, s[{48+4*mtx}:{51+4*mtx}], s43 offen lds")
        if i < 9: kb(f"s_add_u32 s43, s43, {32*3456}")
    kb(f"""
    v_lshrrev_b32 v10, 1, v6
    v_mul_u32_u24 v10, 40960, v10    ; matrix
    v_lshl_add_u32 v11, v7, 2, v5    ; 4hi + r
    v_lshl_add_u32 v10, v11, 7, v10
    v_lshl_add_u32 v10, v8, 4, v10   ; + 8nb*2
    v_and_b32 v11, 1, v6
    v_lshl_add_u32 v10, v11, 3, v10  ; + 4(c'&1)*2
    s_lshl_b32 s45, s3, 5
    s_add_u32 s45, s45, s{sbase}
    v_add_u32 v10, s45, v10          ; + 16w*2
    v_mov_b32 v12, 0x3f803f80
    v_mov_b32 v13, 0x3f803f80
    v_mov_b32 v14, 0x3f803f80
    v_mov_b32 v15, 0x3f803f80
    s_lshl_b32 s45, s41, 2
    s_add_u32 s45, s45, s3           ; chunk j
    s_mul_i32 s46, s45, {40*1024}
    s_mul_i32 s47, s42, {20*1024}
    s_add_u32 s46, s46, s47
    s_lshl_b32 s45, s45, 10
    s_waitcnt vmcnt(0)
    s_barrier
    """)
    NB = 6
    def rd(u):
        b = 32 + 4*(u % NB)
        kb(f"ds_read_b64_tr_b16 {V(b,2)}, v10 offset:{u*2048}")
        kb(f"ds_read_b64_tr_b16 {V(b+2,2)}, v10 offset:{u*2048+1024}")
    for u in range(NB-1): rd(u)
    for u in range(20):
        if u + NB - 1 < 20: rd(u + NB - 1)
        b = 32 + 4*(u % NB)
        kb(f"v_mfma_f32_32x32x16_bf16 v[16:31], v[12:15], {V(b,4)}, {'0' if u == 0 else 'v[16:31]'}")
        kb(f"buffer_store_dwordx4 {V(b,4)}, v4, s[56:59], s46 offen offset:{(u&3)*1024}{STM[OPT['st1']]}")
        if (u & 3) == 3: kb("s_add_u32 s46, s46, 4096")
    kb(f"""
    v_cvt_pk_bf16_f32 v32, v16, v16
    v_lshlrev_b32 v32, 16, v32
    v_sub_f32 v33, v16, v32          ; r1
    v_cvt_pk_bf16_f32 v32, v33, v33
    v_lshlrev_b32 v32, 16, v32
    v_sub_f32 v34, v33, v32          ; r2
    v_cvt_pk_bf16_f32 v36, v16, v33
    v_cvt_pk_bf16_f32 v37, v34, v16
    v_cvt_pk_bf16_f32 v38, v33, v34
    v_mov_b32 v39, v36
    v_cmp_eq_u32 vcc, s42, v7
    s_and_saveexec_b64 s[46:47], vcc
    buffer_store_dwordx4 v[36:39], v4, s[60:63], s45 offen
    s_mov_b64 exec, s[46:47]
    s_branch {nxt}
    {n}_rl_notg:
    """)
    kb.fence()
    kb(f"""
    v_mul_u32_u24 v9, 1280, v2
    v_add_u32 v9, v9, v3
    s_cmp_lt_u32 s{su}, 84
    s_cbranch_scc0 {n}_rl_o
    """)
    kb(f"""
    s_sub_u32 s40, s{su}, 54
    s_mul_i32 s41, s40, 43691
    s_lshr_b32 s41, s41, 17          ; sigma = u/3
    s_mul_i32 s42, s41, 3
    s_sub_u32 s42, s40, s42          ; part
    s_mul_i32 s43, s42, {576*1280}
    s_mul_i32 s45, s3, {8*1280}
    s_add_u32 s43, s43, s45
    s_lshl_b32 s45, s41, 7
    s_add_u32 s43, s43, s45
    """)
    srd(kb, 48, P_DOWN, 0, 1728*1280); srd(kb, 56, P_WS, OFF_WD, SZ_WD)
    for i in range(18):
        kb(f"s_add_u32 m0, s44, {i*4096}")
        kb(f"buffer_load_dwordx4 v9, s[48:51], s43 offen lds")
        if i < 17: kb(f"s_add_u32 s43, s43, {32*1280}")
    kb(f"""
    v_lshlrev_b32 v10, 4, v7         ; 16*(c>>1)
    v_lshl_add_u32 v10, v8, 2, v10   ; + 4*(c&1)
    v_add_u32 v10, v10, v5
    v_lshlrev_b32 v10, 7, v10
    v_lshl_add_u32 v10, v6, 3, v10   ; + 4c'*2
    s_lshl_b32 s45, s3, 5
    s_add_u32 s45, s45, s{sbase}
    v_add_u32 v10, s45, v10
    v_add_u32 v11, 0x10000, v10
    s_lshl_b32 s45, s41, 2
    s_add_u32 s45, s45, s3           ; nt
    s_mul_i32 s46, s45, 52429
    s_lshr_b32 s46, s46, 18
    s_mul_i32 s47, s46, 5
    s_sub_u32 s45, s45, s47          ; t
    s_mul_i32 s46, s46, 54
    s_mul_i32 s47, s42, 18
    s_add_u32 s46, s46, s47
    s_mul_i32 s46, s46, 5
    s_add_u32 s46, s46, s45
    s_lshl_b32 s46, s46, 10
    s_waitcnt vmcnt(0)
    s_barrier
    """)
    def rdD(T):
        b = 32 + 4*(T % NB)
        a, o = ("v10", T*4096) if T < 16 else ("v11", (T-16)*4096)
        kb(f"ds_read_b64_tr_b16 {V(b,2)}, {a} offset:{o}")
        kb(f"ds_read_b64_tr_b16 {V(b+2,2)}, {a} offset:{o+1024}")
    for T in range(NB-1): rdD(T)
    for T in range(18):
        if T + NB - 1 < 18: rdD(T + NB - 1)
        b = 32 + 4*(T % NB)
        kb(f"buffer_store_dwordx4 {V(b,4)}, v4, s[56:59], s46 offen{STM[OPT['st1']]}")
        if T < 17: kb("s_add_u32 s46, s46, 5120")
    kb(f"s_branch {nxt}")
    kb(f"{n}_rl_o:")
    kb.fence()
    kb(f"""
    s_sub_u32 s41, s{su}, 84
    s_mul_i32 s43, s3, {8*1280}
    s_lshl_b32 s45, s41, 7
    s_add_u32 s43, s43, s45
    """)
    srd(kb, 48, P_WO, 0, 640*1280); srd(kb, 56, P_WS, OFF_WO, SZ_WO)
    for i in range(20):
        kb(f"s_add_u32 m0, s44, {i*4096}")
        kb(f"buffer_load_dwordx4 v9, s[48:51], s43 offen lds")
        if i < 19: kb(f"s_add_u32 s43, s43, {32*1280}")
    kb(f"""
    v_lshlrev_b32 v10, 7, v5         ; r*128
    v_lshl_add_u32 v10, v8, 5, v10   ; + 16nb*2
    v_lshl_add_u32 v10, v6, 3, v10   ; + 4c'*2
    s_mul_i32 s45, s3, {160*128}
    s_add_u32 s45, s45, s{sbase}
    v_add_u32 v10, s45, v10
    v_mul_u32_u24 v11, {20*128}, v7
    v_add_u32 v11, v11, v10
    v_lshl_add_u32 v10, v7, 9, v10
    """)
    for b in range(2):
        kb(f"""
        s_lshl_b32 s45, s41, 1
        s_add_u32 s45, s45, {b}
        s_mul_i32 s42, s45, 52429
        s_lshr_b32 s42, s42, 18
        s_mul_i32 s40, s42, 5
        s_sub_u32 s45, s45, s40
        s_lshl_b32 s42, s42, 2
        s_add_u32 s42, s42, s3
        s_mul_i32 s42, s42, 50
        s_add_u32 s42, s42, s45
        s_lshl_b32 s{46+b}, s42, 10
        """)
    kb("s_waitcnt vmcnt(0)\n s_barrier")
    seq = [(kap, b) for kap in range(10) for b in range(2)]
    def rdO(i):
        kap, b = seq[i]; bb = 32 + 4*(i % NB)
        for h in range(2):
            pi, ss = divmod(2*kap + h, 5)
            a = "v11" if ss == 2 else "v10"
            kb(f"ds_read_b64_tr_b16 {V(bb+2*h,2)}, {a} offset:{(40*pi + LOFF[ss])*128 + b*64}")
    for i in range(NB-1): rdO(i)
    for i in range(20):
        if i + NB - 1 < 20: rdO(i + NB - 1)
        kap, b = seq[i]; bb = 32 + 4*(i % NB)
        kb(f"buffer_store_dwordx4 {V(bb,4)}, v4, s[56:59], s{46+b} offen{STM[OPT['st1']]}")
        kb(f"s_add_u32 s{46+b}, s{46+b}, 5120")
    kb(f"s_branch {nxt}")

def k0_test():
    kb = KB("k0_kernel")
    prologue(kb, 94)
    kb("s_waitcnt lgkmcnt(0)")
    relayout(kb, 2, "k0_kernel_end")
    kb("k0_kernel_end:")
    return (kb, 94, 256, 81920)


K3MAP = ["""
    s_lshl_b32 s30, s28, 1
    s_and_b32 s31, s29, 1
    s_add_u32 s30, s30, s31          ; rb
    s_lshr_b32 s31, s29, 1           ; cb
""", """
    s_lshr_b32 s30, s28, 1
    s_lshl_b32 s30, s30, 2
    s_and_b32 s31, s29, 3
    s_add_u32 s30, s30, s31          ; rb = 4(x>>1) + (i&3)
    s_and_b32 s31, s28, 1
    s_lshl_b32 s31, s31, 3
    s_lshr_b32 s32, s29, 2
    s_add_u32 s31, s31, s32          ; cb = 8(x&1) + (i>>2)
""", """
    s_lshr_b32 s30, s28, 2
    s_lshl_b32 s30, s30, 3
    s_and_b32 s31, s29, 7
    s_add_u32 s30, s30, s31          ; rb = 8(x>>2) + (i&7)
    s_and_b32 s31, s28, 3
    s_lshl_b32 s31, s31, 2
    s_lshr_b32 s32, s29, 3
    s_add_u32 s31, s31, s32          ; cb = 4(x&3) + (i>>3)
"""]
K4MAP = ["""
    s_lshl_b32 s30, s28, 2
    s_and_b32 s33, s29, 3
    s_add_u32 s30, s30, s33          ; rb64
    s_lshr_b32 s31, s29, 2           ; cb
""", """
    s_lshr_b32 s30, s28, 1
    s_lshl_b32 s30, s30, 3
    s_and_b32 s33, s29, 7
    s_add_u32 s30, s30, s33          ; rb64 = 8(x>>1) + (i&7)
    s_and_b32 s31, s28, 1
    s_lshl_b32 s31, s31, 2
    s_lshr_b32 s32, s29, 3
    s_add_u32 s31, s31, s32          ; cb = 4(x&1) + (i>>3)
    s_and_b32 s33, s33, 3
"""]
K4MAP.append(K4MAP[1])

def prefetch(kb, srdreg, base_expr_sreg, vtmp, vdst, n):
    L = [f"v_lshlrev_b32 v{vtmp}, 7, v1"]
    for i in range(n):
        L.append(f"buffer_load_dword v{vdst+i}, v{vtmp}, s[{srdreg}:{srdreg+3}], s{base_expr_sreg} offen" + (f"\n s_add_u32 s{base_expr_sreg}, s{base_expr_sreg}, 8192" if i < n-1 else ""))
    return L

BIG = 0x4000000

def k4():
    kb = KB("k4_kernel")
    prologue(kb, 256)
    kb(f"""
    s_and_b32 s28, s2, 7
    s_lshr_b32 s29, s2, 3
    {K4MAP[OPT['map34']]}
    s_mul_i32 s33, s33, {3 if OPT['rot4'] else 0}
    s_mul_i32 s34, s3, 14            ; 14w
    s_mul_i32 s35, s30, {2*108*1024} ; g base
    s_mul_i32 s36, s31, {54*5120}
    v_and_b32 v2, 15, v1             ; m
    v_lshrrev_b32 v3, 4, v1          ; c
    v_lshlrev_b32 v4, 4, v2
    v_lshl_add_u32 v4, v3, 9, v4     ; voff g  (c*512 + m*16)
    v_add_u32 v5, {108*1024}, v4
    v_lshlrev_b32 v6, 4, v1
    v_add_u32 v7, 1024, v6
    s_waitcnt lgkmcnt(0)
    """)
    srd(kb, 40, P_WS, OFF_G, SZ_G); srd(kb, 44, P_WS, OFF_WD, SZ_WD); srd(kb, 48, P_WS, OFF_H, SZ_H)
    srd(kb, 52, P_OUT, 0, 2048*1280)
    NB = 4
    ACC = 32
    def loads(i):
        b = 36*(i % NB)
        kb(f"""
        s_add_u32 s37, s34, s33
        s_lshl_b32 s38, s37, 11
        s_add_u32 s38, s38, s35
        s_mul_i32 s39, s37, 5120
        s_add_u32 s39, s39, s36
        s_cmp_ge_u32 s37, 54
        s_cselect_b32 s38, {BIG}, s38
        s_cselect_b32 s39, {BIG}, s39
        s_add_u32 s33, s33, 1
        s_cmp_eq_u32 s33, 14
        s_cselect_b32 s33, 0, s33
        """)
        L = []
        L.append(f"buffer_load_dwordx4 {A(b+16,4)}, v6, s[44:47], s39 offen")
        L.append(f"buffer_load_dwordx4 {A(b,4)}, v4, s[40:43], s38 offen")
        L.append(f"buffer_load_dwordx4 {A(b+4,4)}, v4, s[40:43], s38 offen offset:256")
        L.append(f"buffer_load_dwordx4 {A(b+8,4)}, v5, s[40:43], s38 offen")
        L.append(f"buffer_load_dwordx4 {A(b+12,4)}, v5, s[40:43], s38 offen offset:256")
        for t in range(1, 5):
            L.append(f"buffer_load_dwordx4 {A(b+16+4*t,4)}, v7, s[44:47], s39 offen offset:{(t-1)*1024}")
        return L
    for i in range(NB-1):
        for l in loads(i): kb(l)
    kb(f"""
    v_lshrrev_b32 v8, 2, v1
    v_and_b32 v9, 3, v1              ; q0
    s_lshl_b32 s56, s3, 4
    v_add_u32 v8, s56, v8
    v_and_b32 v10, 31, v8
    v_lshlrev_b32 v10, 4, v10
    v_and_b32 v11, 1, v9
    v_lshl_add_u32 v10, v11, 9, v10
    v_lshrrev_b32 v11, 1, v9
    v_lshl_add_u32 v10, v11, 3, v10
    s_lshr_b32 s57, s3, 1
    s_lshl_b32 s58, s30, 1
    s_add_u32 s57, s57, s58          ; R
    s_mul_i32 s57, s57, 40
    s_mul_i32 s58, s31, 5
    s_add_u32 s57, s57, s58
    s_lshl_b32 s57, s57, 10
    s_add_u32 s58, s57, 4096
    """)
    for i in range(5):
        if i < 4: kb(f"buffer_load_dwordx2 {V(16+2*i,2)}, v10, s[48:51], s57 offen offset:{i*1024}")
        else: kb(f"buffer_load_dwordx2 {V(16+2*i,2)}, v10, s[48:51], s58 offen")
    kb(f"""
    v_mul_u32_u24 v11, 336, v8
    v_lshl_add_u32 v11, v9, 4, v11
    v_mul_u32_u24 v12, 336, v2
    v_lshl_add_u32 v12, v3, 4, v12
    s_mul_i32 s59, s3, 21504
    v_add_u32 v12, s59, v12
    v_mul_u32_u24 v13, 1280, v8
    v_lshl_add_u32 v13, v9, 3, v13
    s_mul_i32 s59, s30, {64*1280}
    s_mul_i32 s60, s31, 160
    s_add_u32 s59, s59, s60
    """)
    stamp(kb, 1)
    for i in range(14):
        if i in (1, 7): stamp(kb, {1: 2, 7: 3}[i])
        L = loads(i + NB - 1) if i + NB - 1 < 14 else []
        b = 36*(i % NB)
        k = 0
        for t in range(5):
            for mt in range(4):
                d = V(ACC + (mt*5+t)*4, 4)
                kb(f"v_mfma_f32_16x16x32_bf16 {d}, {A(b+16+4*t,4)}, {A(b+4*mt,4)}, {'0' if i == 0 else d}")
                if k % 2 == 1 and L: kb(L.pop(0))
                k += 1
        assert not L
    stamp(kb, 4)
    for mt in range(4):
        for t in range(5):
            kb(f"ds_write_b128 v12, {V(ACC+(mt*5+t)*4,4)} offset:{mt*16*336 + t*64}")
    kb("s_waitcnt lgkmcnt(0)\n s_barrier")
    for i in range(5):
        for w in range(4):
            kb(f"ds_read_b128 {V(ACC+(i*4+w)*4,4)}, v11 offset:{w*21504 + i*64}")
    for i in range(5):
        a = ACC + i*16
        kb(f"""
        v_pk_add_f32 {V(a,2)}, {V(a,2)}, {V(a+4,2)}
        v_pk_add_f32 {V(a+2,2)}, {V(a+2,2)}, {V(a+6,2)}
        v_pk_add_f32 {V(a+8,2)}, {V(a+8,2)}, {V(a+12,2)}
        v_pk_add_f32 {V(a+10,2)}, {V(a+10,2)}, {V(a+14,2)}
        v_pk_add_f32 {V(a,2)}, {V(a,2)}, {V(a+8,2)}
        v_pk_add_f32 {V(a+2,2)}, {V(a+2,2)}, {V(a+10,2)}
        v_cvt_pk_bf16_f32 v{a+4}, v{a}, v{a+1}
        v_cvt_pk_bf16_f32 v{a+5}, v{a+2}, v{a+3}
        v_lshlrev_b32 v{a}, 16, v{a+4}
        v_and_b32 v{a+1}, 0xffff0000, v{a+4}
        v_lshlrev_b32 v{a+2}, 16, v{a+5}
        v_and_b32 v{a+3}, 0xffff0000, v{a+5}
        v_lshlrev_b32 v{a+8}, 16, v{16+2*i}
        v_and_b32 v{a+9}, 0xffff0000, v{16+2*i}
        v_lshlrev_b32 v{a+10}, 16, v{17+2*i}
        v_and_b32 v{a+11}, 0xffff0000, v{17+2*i}
        v_pk_add_f32 {V(a,2)}, {V(a,2)}, {V(a+8,2)}
        v_pk_add_f32 {V(a+2,2)}, {V(a+2,2)}, {V(a+10,2)}
        v_cvt_pk_bf16_f32 v{a+4}, v{a}, v{a+1}
        v_cvt_pk_bf16_f32 v{a+5}, v{a+2}, v{a+3}
        buffer_store_dwordx2 {V(a+4,2)}, v13, s[52:55], s59 offen offset:{i*32}{STM[OPT['st4']]}
        """)
    finish(kb, 3)
    return (kb, 256, 256, 86016)

import struct
def f2u(x): return struct.unpack("<I", struct.pack("<f", x))[0]
LOG2E = 1.4426950408889634

def bf16r(kb, dst, src):
    kb(f"v_cvt_pk_bf16_f32 v{dst}, v{src}, v{src}\n v_and_b32 v{dst}, 0xffff0000, v{dst}")

def ln_scalars(kb, vs, vq, vmean, vrstd, t):
    kb(f"""
    v_mul_f32 v{vs}, {hex(f2u(1/640))}, v{vs}
    v_mul_f32 v{vq}, {hex(f2u(1/640))}, v{vq}
    v_fma_f32 v{vq}, -v{vs}, v{vs}, v{vq}
    v_max_f32 v{vq}, 0, v{vq}
    """)
    bf16r(kb, vmean, vs)
    bf16r(kb, t, vq)
    kb(f"v_add_f32 v{t}, {hex(f2u(1e-5))}, v{t}")
    bf16r(kb, t, t)
    kb(f"v_sqrt_f32 v{t}, v{t}")
    bf16r(kb, t, t)
    kb(f"v_rcp_f32 v{vrstd}, v{t}")

def k3(P1=3, per_gap=4):
    LOOK = OPT['look3']
    kb = KB("k3_kernel")
    prologue(kb, 256)
    kb(f"""
    s_and_b32 s28, s2, 7
    s_lshr_b32 s29, s2, 3
    {K3MAP[OPT['map34']]}
    s_mov_b32 s33, 0
    s_mul_i32 s31, s31, 7            ; j0
    s_lshl_b32 s34, s30, 2
    s_add_u32 s34, s34, s3           ; R
    s_lshl_b32 s35, s3, 10           ; w*1024
    v_lshlrev_b32 v2, 4, v1          ; l*16
    v_add_u32 v3, s35, v2
    v_add_u32 v4, 0x10000, v2
    v_and_b32 v5, 31, v1
    v_lshlrev_b32 v5, 4, v5
    v_lshrrev_b32 v6, 5, v1
    v_lshl_add_u32 v5, v6, 10, v5
    s_lshl_b32 s36, s34, 11
    s_mul_i32 s37, s34, {40*1024}    ; h soffset
    """)
    for c in range(7):
        kb(f"""
        s_add_u32 s{64+c}, s31, s33
        s_add_u32 s33, s33, 1
        s_cmp_eq_u32 s33, 7
        s_cselect_b32 s33, 0, s33
        s_mul_i32 s{72+c}, s{64+c}, {40*1024}
        s_mul_i32 s38, s34, 108
        s_add_u32 s38, s38, s{64+c}
        s_lshl_b32 s38, s38, 10
        s_cmp_ge_u32 s{64+c}, 108
        s_cselect_b32 s{80+c}, {BIG}, s38
        """)
    kb("s_waitcnt lgkmcnt(0)")
    srd(kb, 40, P_WS, OFF_H, SZ_H); srd(kb, 44, P_WS, OFF_WGU, SZ_WGU); srd(kb, 48, P_WS, OFF_CS, SZ_CS)
    srd(kb, 52, P_WS, OFF_ST, SZ_ST); srd(kb, 56, P_WS, OFF_G, SZ_G)
    SLOT = 24576; CSB = 5*SLOT
    slots = []
    if P1 > 0:
        for sg in range(5):
            slots.append(dict(steps=[(c, u, (c*8 + (u & 7))*1024) for u in range(8*sg, 8*sg+8) for c in range(P1)],
                              dma=[(c, 8*sg + 4*h, (c*8 + 4*h)*1024) for h in range(2) for c in range(P1)]))
    for c in range(P1, 7):
        for hf in range(2):
            slots.append(dict(steps=[(c, u, (u - 20*hf)*1024) for u in range(20*hf, 20*hf+20)],
                              dma=[(c, 20*hf + 4*i, 4*i*1024) for i in range(5)]))
    def dma(n):
        out = []
        for (c, u0, pos) in slots[n]["dma"]:
            out.append((f"s_add_u32 m0, s35, {(n%5)*SLOT + pos}\n s_add_u32 s39, s{72+c}, {u0*1024}\n"
                        f"buffer_load_dwordx4 v3, s[44:47], s39 offen lds", f"slot{n}"))
        return out
    def hload(u):
        t = ""
        if u % 4 == 0 and u > 0: t = "s_add_u32 s37, s37, 4096\n"
        return t + f"buffer_load_dwordx4 {A(4*u,4)}, v2, s[40:43], s37 offen offset:{(u&3)*1024}"
    for i in range(2): kb(f"buffer_load_dwordx4 {V(112+4*i,4)}, v5, s[52:55], s36 offen offset:{512*i}")
    hu = 0
    def hneed(n):
        return max(u for (c, u, pos) in slots[n]["steps"]) + 1
    for n in range(2):
        for t, tag in dma(n): kb(t, tag)
        while hu < hneed(n): kb(hload(hu)); hu += 1
    issued = 2
    csl = [(f"""
    s_cmp_eq_u32 s3, 0
    s_cselect_b32 s38, s64, s65
    s_cselect_b32 s63, s68, s69
    s_cmp_eq_u32 s3, 2""", None), (f"""
    s_cselect_b32 s38, s66, s38
    s_cselect_b32 s63, s70, s63
    s_cmp_eq_u32 s3, 3
    s_cselect_b32 s38, s67, s38""", None), (f"""
    s_cselect_b32 s63, s70, s63
    s_lshl_b32 s38, s38, 10
    s_lshl_b32 s63, s63, 10""", None),
    (f"s_add_u32 m0, s35, {CSB}\n buffer_load_dwordx4 v2, s[48:51], s38 offen lds", "slot2"),
    (f"s_add_u32 m0, s35, {CSB+4096}\n buffer_load_dwordx4 v2, s[48:51], s63 offen lds", "slot2")]
    for t, _ in csl[:3]: kb(t)
    csl = csl[3:]
    kb("""
    v_pk_add_f32 v[112:113], v[112:113], v[114:115]
    v_pk_add_f32 v[116:117], v[116:117], v[118:119]
    v_pk_add_f32 v[8:9], v[112:113], v[116:117]
    v_mov_b32 v10, v8
    v_mov_b32 v11, v9
    v_permlane32_swap_b32 v8, v10
    v_permlane32_swap_b32 v9, v11
    v_add_f32 v8, v8, v10
    v_add_f32 v9, v9, v11
    """)
    RSTD = 6
    ln_scalars(kb, 8, 9, 10, RSTD, 11)
    K1_, K2_, IR2 = 20, 21, 22
    kb(f"""
    v_xor_b32 v10, 0x80000000, v10
    v_lshrrev_b32 v17, 16, v10
    v_or_b32 v16, v10, v17
    v_mov_b32 v18, 0
    v_mov_b32 v19, 0
    v_mul_f32 v{K1_}, {hex(f2u(-2*LOG2E*0.7978845608028654))}, v{RSTD}
    v_mul_f32 v{K2_}, v{RSTD}, v{RSTD}
    v_mul_f32 v{K2_}, v{K2_}, v{K1_}
    v_mul_f32 v{K2_}, {hex(f2u(0.044715))}, v{K2_}
    v_mul_f32 v{IR2}, v11, v11
    """)
    XE = 16
    ACC0 = 32; NACC = 5; TMP = 112
    NBF = 8; WF = 160
    steps = []
    for n, sl in enumerate(slots):
        for (c, u, pos) in sl["steps"]:
            steps.append((c, u, n, (n % 5)*SLOT + pos))
            if u == 39: steps.append((c, 40, None, CSB + c*1024))
    def epi(c):
        a = ACC0 + 16*(c % NACC); o = TMP + 16*(c % 2); L = []
        for p in range(4):
            g = a + (p >> 1)*8 + (p & 1)*2; u = g + 4; t = o + 4 + 4*(p % 2)
            for e in range(2): L.append(f"v_mul_f32 v{t+e}, v{g+e}, v{g+e}")
            for e in range(2): L.append(f"v_fma_f32 v{t+e}, v{t+e}, v{K2_}, v{K1_}")
            for e in range(2): L.append(f"v_mul_f32 v{t+e}, v{t+e}, v{g+e}")
            for e in range(2): L.append(f"v_exp_f32 v{t+e}, v{t+e}")
            for e in range(2): L.append(f"v_mul_f32 v{g+e}, v{g+e}, v{u+e}")
            for e in range(2): L.append(f"v_fma_f32 v{t+e}, v{t+e}, v{IR2}, v{IR2}")
            for e in range(2): L.append(f"v_rcp_f32 v{t+e}, v{t+e}")
            if p > 0: L.append(pend)
            else: L.append("v_nop")
            for e in range(2): L.append(f"v_mul_f32 v{g+e}, v{g+e}, v{t+e}")
            pend = f"v_cvt_pk_bf16_f32 v{o+p}, v{g}, v{g+1}"
        L.append(pend)
        L.append(f"buffer_store_dwordx4 {V(o,4)}, v2, s[56:59], s{80+c} offen{STM[OPT['st3']]}")
        return L
    def weight(t): return sum(2 if ("exp" in l or "rcp" in l) else 1 for l in t.strip().split("\n"))
    ready = -1
    fill = []
    vmq = []; vm_next = 0
    def rd(s):
        nonlocal ready, hu, issued
        c, u, n, off = steps[s]
        if n is not None and n > ready:
            ready = n
            while any(tg == f"slot{n}" for _, _, tg in vmq):
                _, t, tg = vmq.pop(0); kb(t, tg)
            kb.wait_vm(f"slot{n}")
            kb("s_waitcnt lgkmcnt(0)\n s_barrier")
            if n in (0, 5, 9): stamp(kb, {0: 2, 5: 3, 9: 4}[n])
            new = []
            while issued <= n + LOOK and issued < len(slots):
                new += [(0, t, tag) for t, tag in dma(issued)]
                while hu < hneed(issued): new.append((0, hload(hu), None)); hu += 1
                if issued == 2: new += [(0, t, tag) for t, tag in csl]
                issued += 1
            vmq.extend(new)
        a, o = ("v2", off) if off < 65536 else ("v4", off - 65536)
        return f"ds_read_b128 {A(WF + 4*(s % NBF), 4)}, {a} offset:{o}"
    first = set()
    stamp(kb, 1)
    for s in range(NBF - 1): kb(rd(s))
    for s, (c, u, n, off) in enumerate(steps):
        R = rd(s + NBF - 1) if s + NBF - 1 < len(steps) else None
        d = V(ACC0 + 16*(c % NACC), 16)
        b = A(4*u, 4) if u < 40 else V(XE, 4)
        while u < 40 and any(b + "," in t for _, t, _ in vmq):
            _, t, tg = vmq.pop(0); kb(t, tg)
        if c not in first: assert not any(tg == f"epi{c-NACC}" for _, _, tg in fill), "acc reuse"
        kb(f"v_mfma_f32_32x32x16_bf16 {d}, {A(WF + 4*(s % NBF), 4)}, {b}, {d if c in first else '0'}")
        if R: kb(R)
        first.add(c)
        if u == 40: fill += [(s + 4, t, f"epi{c}") for t in epi(c)]
        k = 0; budget = per_gap + (s & 1)
        if vmq and s*16 >= vm_next:
            _, t, tag = vmq.pop(0); kb(t, tag); k += weight(t); vm_next = max(vm_next, s*16 - 16) + OPT['vp3']
        while fill and fill[0][0] <= s and k + weight(fill[0][1]) <= max(budget, weight(fill[0][1]) if k == 0 else 0):
            _, t, tag = fill.pop(0); kb(t, tag); k += weight(t)
        if s % 2 == 0 and s + NBF + 1 < len(steps): kb(f"s_waitcnt lgkmcnt({NBF-3})")
    stamp(kb, 5)
    for _, t, tag in fill: kb(t, tag)
    if OPT['pf3']:
        srd(kb, 60, P_WS, OFF_WD, SZ_WD)
        kb(f"s_lshl_b32 s38, s29, 2\n s_add_u32 s38, s38, s3\n s_mul_i32 s38, s38, 17280")
        pf = prefetch(kb, 60, 38, 24, 25, 3)
        kb(pf[0]); kb(pf[1]); kb(pf[2]); kb("s_mov_b32 exec_hi, 0\n s_mov_b32 exec_lo, 127"); kb(pf[3])
    finish(kb, 2)
    return (kb, 256, 256, CSB + 8192)

def k2():
    kb = KB("k2_kernel")
    prologue(kb, 256)
    kb(f"""
    s_and_b32 s28, s2, 7
    s_lshr_b32 s29, s2, 3
    s_lshl_b32 s30, s28, 3
    s_and_b32 s31, s29, 7
    s_add_u32 s30, s30, s31          ; R
    s_lshr_b32 s31, s29, 3           ; cb
    v_and_b32 v2, 31, v1             ; rho / m
    v_lshrrev_b32 v3, 5, v1          ; hi
    v_lshlrev_b32 v4, 4, v1          ; l*16
    v_mov_b32 v7, 0x100000
    v_cmp_gt_u32 vcc, 20, v2
    v_cndmask_b32 v5, v7, v2, vcc
    v_subrev_u32 v8, 4, v2
    v_cmp_gt_u32 vcc, 24, v2
    v_cndmask_b32 v6, v7, v8, vcc
    v_cmp_gt_u32 vcc, 20, v2
    v_cndmask_b32 v6, v6, v7, vcc
    v_cmp_gt_u32 vcc, 16, v2
    v_cndmask_b32 v6, v6, v2, vcc
    v_and_b32 v8, 27, v2
    v_cmp_eq_u32 vcc, 24, v8
    v_cndmask_b32 v5, v5, 20, vcc
    v_cndmask_b32 v6, v6, 20, vcc
    v_lshlrev_b32 v5, 4, v5
    v_lshlrev_b32 v6, 4, v6
    v_lshl_add_u32 v7, v3, 26, v5    ; kv tail even (hi -> out of range)
    v_lshl_add_u32 v8, v3, 26, v6    ; kv tail odd
    v_mul_u32_u24 v9, 672, v3
    v_add_u32 v5, v5, v9             ; kv main even
    v_add_u32 v6, v6, v9             ; kv main odd
    v_lshlrev_b32 v9, 3, v2
    v_add_u32 v9, 1024, v9
    v_lshl_add_u32 v9, v3, 26, v9
    s_mul_i32 s32, s3, {8*1680}      ; kv soffset
    s_lshl_b32 s33, s30, 5
    s_lshl_b32 s34, s3, 3
    s_add_u32 s33, s33, s34
    s_mul_i32 s33, s33, 1280
    s_lshl_b32 s34, s31, 2
    s_add_u32 s34, s34, s3
    s_mul_i32 s34, s34, {50*1024}
    s_waitcnt lgkmcnt(0)
    """)
    srd(kb, 40, P_WS, OFF_KV, SZ_KV); srd(kb, 44, P_WS, OFF_PQ, SZ_PQ); srd(kb, 48, P_WS, OFF_WO, SZ_WO)
    srd(kb, 52, P_X, 0, 2048*1280); srd(kb, 56, P_WS, OFF_H, SZ_H); srd(kb, 60, P_WS, OFF_ST, SZ_ST)
    KVR = 128
    PQA = 200
    for h in range(8):
        o = (h & 1)*1680; b = KVR + 12*h
        kb(f"""
        buffer_load_dwordx4 {V(b,4)}, v{5+(h&1)}, s[40:43], s32 offen offset:{o}
        buffer_load_dwordx4 {V(b+4,4)}, v{5+(h&1)}, s[40:43], s32 offen offset:{o+336}
        buffer_load_dwordx4 {V(b+8,4)}, v{7+(h&1)}, s[40:43], s32 offen offset:{o+1344}
        buffer_load_dwordx4 {A(PQA+6*h,4)}, v4, s[44:47], s33 offen offset:{(h&1)*1280}
        buffer_load_dwordx2 {A(PQA+6*h+4,2)}, v9, s[44:47], s33 offen offset:{(h&1)*1280}
        """)
        if h & 1: kb("s_add_u32 s32, s32, 3360\n s_add_u32 s33, s33, 2560")
    def wo_load(i):
        t = "s_add_u32 s34, s34, 4096\n" if (i % 4 == 0 and i > 0) else ""
        return t + f"buffer_load_dwordx4 {A(4*i,4)}, v4, s[48:51], s34 offen offset:{(i&3)*1024}"
    wl = [wo_load(i) for i in range(50)]
    for _ in range(20): kb(wl.pop(0))
    kb(f"""
    v_lshrrev_b32 v10, 2, v1
    s_and_b32 s37, s3, 1
    s_lshl_b32 s37, s37, 4
    v_add_u32 v14, s37, v10          ; row
    v_and_b32 v15, 3, v1             ; q0
    v_mul_u32_u24 v10, 1280, v14
    v_lshl_add_u32 v10, v15, 3, v10  ; x voffset
    s_lshr_b32 s39, s3, 1            ; w>>1
    s_mul_i32 s35, s30, {32*1280}
    s_mul_i32 s36, s31, 320
    s_add_u32 s35, s35, s36
    s_mul_i32 s36, s39, 160
    s_add_u32 s35, s35, s36          ; x soffset
    s_mul_i32 s36, s30, 40
    s_mul_i32 s37, s31, 10
    s_add_u32 s36, s36, s37
    s_mul_i32 s37, s39, 5
    s_add_u32 s36, s36, s37
    s_lshl_b32 s36, s36, 10          ; h soffset
    s_mul_i32 s37, s3, 20480
    v_add_u32 v11, s37, v4
    v_lshlrev_b32 v13, 4, v14
    v_and_b32 v2, 1, v15
    v_lshl_add_u32 v2, v2, 9, v13    ; row*16 + (q0&1)*512
    v_lshrrev_b32 v3, 1, v15
    v_lshl_add_u32 v12, v3, 10, v2
    s_mul_i32 s37, s39, 10240
    v_add_u32 v12, s37, v12
    v_lshl_add_u32 v2, v3, 3, v2     ; h voffset
    s_lshl_b32 s38, s30, 11
    s_lshl_b32 s37, s31, 9
    s_add_u32 s38, s38, s37
    s_lshl_b32 s37, s39, 3
    s_add_u32 s38, s38, s37
    """)
    O = 16
    D0 = 56
    KB_ = 224
    def cvt(p):
        L = []
        for hh in range(2):
            b = KVR + 12*(2*p + hh); d = KB_ + 12*(p & 1) + 6*hh
            for i in range(6): L.append(f"v_cvt_pk_bf16_f32 v{d+i}, v{b+2*i}, v{b+2*i+1}")
        return L
    def mm(p, tail):
        for hh in range(2):
            d = V(D0 + 32*(p & 1) + 16*hh, 16); k = KB_ + 12*(p & 1) + 6*hh; q = PQA + 6*(2*p + hh)
            if not tail: kb(f"v_mfma_f32_32x32x16_bf16 {d}, {V(k,4)}, {A(q,4)}, 0")
            else: kb(f"v_mfma_f32_32x32x8_bf16 {d}, {V(k+4,2)}, {A(q+4,2)}, {d}")
    def post(p):
        e = D0 + 32*(p & 1); o = e + 16; L = []
        L += [f"v_add_f32 v{e+12}, {hex(f2u(1e-6))}, v{e+12}", f"v_add_f32 v{o+12}, {hex(f2u(1e-6))}, v{o+12}",
              f"v_rcp_f32 v{e+12}, v{e+12}", f"v_rcp_f32 v{o+12}, v{o+12}", "s_nop 0"]
        for i in range(0, 12, 2): L.append(f"v_pk_mul_f32 {V(e+i,2)}, {V(e+i,2)}, {V(e+12,2)} op_sel_hi:[1,0]")
        for i in range(0, 8, 2): L.append(f"v_pk_mul_f32 {V(o+i,2)}, {V(o+i,2)}, {V(o+12,2)} op_sel_hi:[1,0]")
        for i in range(8, 12, 2): L.append(f"v_pk_fma_f32 {V(e+i,2)}, {V(o+i,2)}, {V(o+12,2)}, {V(e+i,2)} op_sel_hi:[1,0,1]")
        dst = O + 10*p
        for j, src in enumerate([e, e+4, e+8, o, o+4]):
            L.append(f"v_cvt_pk_bf16_f32 v{dst+2*j}, v{src}, v{src+1}")
            L.append(f"v_cvt_pk_bf16_f32 v{dst+2*j+1}, v{src+2}, v{src+3}")
        return L
    stamp(kb, 1)
    for l in cvt(0): kb(l)
    stamp(kb, 2)
    for p in range(4):
        mm(p, False)
        if p < 3:
            for l in cvt(p+1): kb(l)
        for _ in range(4): kb(wl.pop(0))
        mm(p, True)
        if p > 0:
            for l in post(p-1): kb(l)
        for _ in range(3): kb(wl.pop(0))
    while wl: kb(wl.pop(0))
    XR = 236
    for i in range(5): kb(f"buffer_load_dwordx2 {V(XR+2*i,2)}, v10, s[52:55], s35 offen offset:{i*32}")
    for l in post(3): kb(l)
    stamp(kb, 3)
    ACC = 128
    for kap in range(10):
        for nt in range(5):
            d = V(ACC + 16*nt, 16)
            kb(f"v_mfma_f32_32x32x16_bf16 {d}, {A(4*(kap*5+nt),4)}, {V(O+4*kap,4)}, {d if kap else '0'}")
    stamp(kb, 4)
    for nt in range(5):
        for q in range(4):
            kb(f"ds_write_b128 v11, {V(ACC+16*nt+4*q,4)} offset:{(nt*4+q)*1024}")
    kb("s_waitcnt lgkmcnt(0)\n s_barrier")
    T = 16
    kb("v_add_u32 v14, 40960, v12")
    for i in range(5):
        for w in range(4):
            a, o = ("v12", w*20480) if w < 2 else ("v14", (w-2)*20480)
            kb(f"ds_read_b128 {V(T+(i*4+w)*4,4)}, {a} offset:{o + i*2048}")
    kb("v_mov_b32 v100, 0\n v_mov_b32 v101, 0\n v_mov_b32 v102, 0\n v_mov_b32 v103, 0")
    for i in range(5):
        a = T + i*16; x = XR + 2*i
        kb(f"""
        v_pk_add_f32 {V(a,2)}, {V(a,2)}, {V(a+4,2)}
        v_pk_add_f32 {V(a+2,2)}, {V(a+2,2)}, {V(a+6,2)}
        v_pk_add_f32 {V(a+8,2)}, {V(a+8,2)}, {V(a+12,2)}
        v_pk_add_f32 {V(a+10,2)}, {V(a+10,2)}, {V(a+14,2)}
        v_pk_add_f32 {V(a,2)}, {V(a,2)}, {V(a+8,2)}
        v_pk_add_f32 {V(a+2,2)}, {V(a+2,2)}, {V(a+10,2)}
        v_cvt_pk_bf16_f32 v{a+4}, v{a}, v{a+1}
        v_cvt_pk_bf16_f32 v{a+5}, v{a+2}, v{a+3}
        v_lshlrev_b32 v{a}, 16, v{a+4}
        v_and_b32 v{a+1}, 0xffff0000, v{a+4}
        v_lshlrev_b32 v{a+2}, 16, v{a+5}
        v_and_b32 v{a+3}, 0xffff0000, v{a+5}
        v_lshlrev_b32 v{a+8}, 16, v{x}
        v_and_b32 v{a+9}, 0xffff0000, v{x}
        v_lshlrev_b32 v{a+10}, 16, v{x+1}
        v_and_b32 v{a+11}, 0xffff0000, v{x+1}
        v_pk_add_f32 {V(a,2)}, {V(a,2)}, {V(a+8,2)}
        v_pk_add_f32 {V(a+2,2)}, {V(a+2,2)}, {V(a+10,2)}
        v_cvt_pk_bf16_f32 v{a+4}, v{a}, v{a+1}
        v_cvt_pk_bf16_f32 v{a+5}, v{a+2}, v{a+3}
        buffer_store_dwordx2 {V(a+4,2)}, v2, s[56:59], s36 offen offset:{(i&3)*1024}{STM[OPT['st2']]}
        v_lshlrev_b32 v{a}, 16, v{a+4}
        v_and_b32 v{a+1}, 0xffff0000, v{a+4}
        v_lshlrev_b32 v{a+2}, 16, v{a+5}
        v_and_b32 v{a+3}, 0xffff0000, v{a+5}
        v_pk_add_f32 v[100:101], v[100:101], {V(a,2)}
        v_pk_fma_f32 v[102:103], {V(a,2)}, {V(a,2)}, v[102:103]
        v_pk_add_f32 v[100:101], v[100:101], {V(a+2,2)}
        v_pk_fma_f32 v[102:103], {V(a+2,2)}, {V(a+2,2)}, v[102:103]
        """)
        if i == 3: kb("s_add_u32 s36, s36, 4096")
    kb("""
    v_add_f32 v100, v100, v101
    v_add_f32 v101, v102, v103
    v_add_f32_dpp v100, v100, v100 quad_perm:[1,0,3,2] row_mask:0xf bank_mask:0xf
    v_add_f32_dpp v101, v101, v101 quad_perm:[1,0,3,2] row_mask:0xf bank_mask:0xf
    v_add_f32_dpp v100, v100, v100 quad_perm:[2,3,0,1] row_mask:0xf bank_mask:0xf
    v_add_f32_dpp v101, v101, v101 quad_perm:[2,3,0,1] row_mask:0xf bank_mask:0xf
    s_mov_b32 exec_lo, 0x11111111
    s_mov_b32 exec_hi, 0x11111111
    buffer_store_dwordx2 v[100:101], v13, s[60:63], s38 offen
    s_mov_b64 exec, -1
    """)
    if OPT['pf2']:
        srd(kb, 64, P_WS, OFF_WGU, SZ_WGU)
        kb(f"""
        s_lshr_b32 s68, s29, 1
        s_mul_i32 s68, s68, {7*40*1024}
        s_and_b32 s69, s29, 1
        s_lshl_b32 s69, s69, 2
        s_add_u32 s69, s69, s3
        s_mul_i32 s69, s69, 15360
        s_add_u32 s68, s68, s69
        """)
        for t in prefetch(kb, 64, 68, 120, 121, 2): kb(t)
    finish(kb, 1)
    return (kb, 256, 256, 81920)

EPS6 = hex(f2u(1e-6))
class Rec:
    def __init__(self): self.L = []
    def __call__(self, t, tag=None): self.L.append(t)

def k1_stats(kb, XX, SM, out_mean, out_rstd, tmp, vbp):
    for mt in range(2):
        x = XX + 4*mt
        kb(f"""
        v_cndmask_b32 v{x}, v{x}, v{x+1}, s[64:65]
        v_cndmask_b32 v{x}, v{x}, v{x+2}, s[66:67]
        v_cndmask_b32 v{x}, v{x}, v{x+3}, s[68:69]
        ds_bpermute_b32 v{x+1}, v{vbp}, v{x}
        """)
    recs = []
    for mt in range(2):
        r = Rec()
        ln_scalars(r, SM + 4*mt, XX + 4*mt + 1, out_mean + mt, out_rstd + mt, tmp + mt)
        r(f"v_mul_f32 v{out_mean+mt}, v{out_mean+mt}, v{out_rstd+mt}")
        recs.append([l.strip() for t in r.L for l in t.split("\n") if l.strip()])
    for a_, b_ in zip(*recs): kb(a_); kb(b_)

K1_NS = {"kv": 4, "q": 4}
def k1_main(kb, role):
    kv = role == "kv"
    NS = K1_NS[role]
    WSL = 20480 if kv else 16384
    SLOT = WSL + 16384
    NT = 10 if kv else 8
    ACC = 64
    XX = ACC + NT*8; SM = XX + 8; CSA = SM + 8
    ONES = 60
    NBF = 8; WF = 32
    def issue(P):
        L = []
        L.append((f"s_lshl_b32 s39, s38, 7\n s_add_u32 s39, s39, s36\n s_mul_i32 s40, s38, {64*3840}\n s_add_u32 s40, s40, s37", None))
        L.append((f"s_add_u32 s38, s38, 1\n s_cmp_eq_u32 s38, 10\n s_cselect_b32 s38, 0, s38", None))
        nd = 5 if kv else 4
        for j in range(4):
            L.append((f"s_add_u32 m0, s43, {(P % NS)*SLOT + j*1024}\n s_add_u32 s41, s39, {j*8*1280}\n buffer_load_dwordx4 v18, s[44:47], s41 offen lds", f"slot{P}"))
        for j in range(nd):
            L.append((f"s_add_u32 m0, s35, {(P % NS)*SLOT + j*1024}\n buffer_load_dwordx4 v{20+j}, s[48:51], s40 offen lds", f"slot{P}"))
        return L
    SETSPAN = SLOT * (65536 // SLOT)
    steps = []
    for P in range(10):
        sb = (P % NS)*SLOT; st = sb // SETSPAN; so0 = sb - st*SETSPAN
        for ks in range(2):
            first = (P == 0 and ks == 0)
            xa = [A(16*(P & 1) + 8*ks + 4*mt, 4) for mt in range(2)]
            def C(r, f=first): return "0" if f else V(r, 4)
            extra = []
            for mt in range(2):
                extra.append(f"v_mfma_f32_16x16x32_bf16 {V(XX+4*mt,4)}, {xa[mt]}, {xa[mt]}, {C(XX+4*mt)}")
                extra.append(f"v_mfma_f32_16x16x32_bf16 {V(SM+4*mt,4)}, {V(ONES,4)}, {xa[mt]}, {C(SM+4*mt)}")
            for t in range(NT):
                if kv:
                    so = so0 + ks*10240
                    if t < 8: rs = (("N", st), so + (t >> 2)*5120 + 40*(t & 3), 1280)
                    else: rs = (("T", st), so + (t - 8)*5120, 1280)
                    mm = [f"v_mfma_f32_16x16x32_bf16 {V(ACC+(t*2+mt)*4,4)}, {xa[mt]}, FR, {C(ACC+(t*2+mt)*4)}" for mt in range(2)]
                else:
                    rs = ((t, st), so0 + ks*8192, 2048)
                    mm = [f"v_mfma_f32_16x16x32_bf16 {V(ACC+(t*2+mt)*4,4)}, FR, {xa[mt]}, {C(ACC+(t*2+mt)*4)}" for mt in range(2)]
                steps.append((P, rs, mm))
                if t in (2, 5):
                    i = 0 if t == 2 else 1
                    if kv:
                        steps.append((P, (("C", st), so + i*5120, 1280),
                                      [f"v_mfma_f32_16x16x32_bf16 {V(CSA+4*i,4)}, {V(ONES,4)}, FR, {C(CSA+4*i)}", extra.pop(0)]))
                    else:
                        steps.append((P, ((8 + i, st), so0 + ks*8192, 2048),
                                      [f"v_mfma_f32_16x16x32_bf16 {V(CSA+4*i,4)}, FR, {V(ONES,4)}, {C(CSA+4*i)}", extra.pop(0)]))
                if kv and t == 8 and ks == 0:
                    steps.append((P, (("C4", st), so0, 1280),
                                  [f"v_mfma_f32_16x16x32_bf16 {V(CSA+8,4)}, {V(ONES,4)}, FR, {C(CSA+8)}", extra.pop(0)]))
                if t in (4, 7) and extra and not (kv and ks == 0 and t == 7): steps[-1][2].append(extra.pop(0))
            assert not extra
    last = [st for st in steps if st[0] == 9]; steps = [st for st in steps if st[0] != 9]
    side = []; main = []
    for (P, rs, mm) in last:
        if "ONES" in mm[0].replace(V(ONES,4), "ONES"): side.append((P, rs, mm))
        else:
            if len(mm) == 3: side[-1][2].append(mm.pop())
            main.append((P, rs, mm))
    steps += side + main
    nside = len(steps) - len(main)
    nsets = (NS*SLOT + SETSPAN - 1) // SETSPAN
    return dict(steps=steps, issue=issue, NS=NS, NBF=NBF, WF=WF, ACC=ACC, XX=XX, SM=SM, CSA=CSA, ONES=ONES,
                SLOT=SLOT, WSL=WSL, SETSPAN=SETSPAN, nsets=nsets, nside=nside)

def k1_loader(kb, M):
    NS, issue = M["NS"], M["issue"]
    nxt = 2
    for P in range(2):
        for t, tag in issue(P): kb(t, tag)
    for P in range(10):
        kb.wait_vm(f"slot{P}")
        kb("s_barrier")
        while nxt <= P + NS - 1 and nxt < 10 and nxt <= 2*P + 2:
            for t, tag in issue(nxt): kb(t, tag)
            nxt += 1
    kb(f"s_branch {kb.name}_end")

def k1_loop(kb, M, areg, tail):
    steps, NS, NBF, WF = M["steps"], M["NS"], M["NBF"], M["WF"]
    SLOT, SETSPAN = M["SLOT"], M["SETSPAN"]
    nxt = areg["_free"]; amap = {}
    for k, r in areg.items():
        if k == "_free": continue
        amap[(k, 0)] = r
        for st in range(1, M["nsets"]):
            kb(f"v_add_u32 v{nxt}, {st*SETSPAN}, v{r}"); amap[(k, st)] = nxt; nxt += 1
    M["_vnext"] = nxt
    stamp(kb, 1)
    ready = -1
    def sync(P):
        nonlocal ready
        ready = P
        kb("s_waitcnt lgkmcnt(0)\n s_barrier")
        if P == 0: stamp(kb, 2)
        sb = (P % NS)*SLOT; st = sb // SETSPAN; so0 = sb - st*SETSPAN
        for ks in range(2):
            for mt in range(2):
                kb(f"ds_read_b128 {A(16*(P & 1) + 8*ks + 4*mt, 4)}, v{amap[(f'X{ks}', st)]} offset:{so0 + mt*2048}")
    def rds(s):
        P, (key, o, hs), _ = steps[s]
        if P > ready: sync(P)
        b = WF + 4*(s % NBF); a = amap[key]
        return [f"ds_read_b64_tr_b16 {A(b,2)}, v{a} offset:{o}", f"ds_read_b64_tr_b16 {A(b+2,2)}, v{a} offset:{o+hs}"]
    for s in range(NBF - 1):
        for t in rds(s): kb(t)
    tail = [l.strip() for t in tail for l in t.split("\n") if l.strip()]
    for s, (P, _, mm) in enumerate(steps):
        R = rds(s + NBF - 1) if s + NBF - 1 < len(steps) else []
        for i, m in enumerate(mm):
            kb(m.replace("FR", A(WF + 4*(s % NBF), 4)))
            k = 2
            if R: kb(R.pop(0)); k = 1
            if s >= M["nside"] + 2:
                for _ in range(k):
                    if tail: kb(tail.pop(0))
    for t in tail: kb(t)

K1MAP = ["""
    s_and_b32 s30, s29, 1
    s_lshl_b32 s31, s28, 1
    s_add_u32 s30, s30, s31          ; rb
    s_lshr_b32 s31, s29, 1           ; cbi: 0..7 kv head quads, 8..12 q column blocks
""", """    ; XCD x: row-block group x>>1 (4 row blocks), column half x&1
    s_and_b32 s30, s29, 3
    s_lshr_b32 s31, s28, 1
    s_lshl_b32 s31, s31, 2
    s_add_u32 s30, s30, s31          ; rb
    s_and_b32 s32, s28, 1            ; half
    s_lshr_b32 s31, s29, 2           ; 0..3 kv, 4,5 q, 6 q(shared block)
    s_lshl_b32 s33, s32, 2
    s_add_u32 s33, s33, s31          ; kv: hq = 4*half + (i>>2)
    s_mul_i32 s34, s32, 3
    s_add_u32 s34, s34, s31
    s_add_u32 s34, s34, 4
    s_cmp_lt_u32 s31, 4
    s_cselect_b32 s33, s33, s34
    s_lshl_b32 s34, s32, 1
    s_add_u32 s34, s34, s30
    s_cmp_eq_u32 s31, 6
    s_cselect_b32 s30, s34, s30
    s_cselect_b32 s31, 10, s33       ; cbi: 0..7 kv head quads, 8..12 q column blocks
"""]
def k1():
    kb = KB("k1_kernel")
    n = kb.name
    prologue(kb, 256)
    kb(f"""
    s_and_b32 s28, s2, 7
    s_lshr_b32 s29, s2, 3
    s_lshr_b32 s4, s3, 2
    s_and_b32 s3, s3, 3
    s_cmp_ge_u32 s29, 26
    s_cbranch_scc1 {n}_rl
    {K1MAP[OPT['map1']]}
    s_mul_i32 s38, s30, {5 if OPT['rot1'] else 0}
    s_mul_i32 s39, s31, {6 if OPT['rot1'] else 0}
    s_add_u32 s38, s38, s39
    s_lshr_b32 s38, s38, 3
    s_cmp_ge_u32 s38, 10
    s_cselect_b32 s39, 10, 0
    s_sub_u32 s38, s38, s39
    v_and_b32 v2, 15, v1             ; n / m
    v_lshrrev_b32 v3, 4, v1          ; c / g
    v_lshrrev_b32 v8, 3, v1
    v_and_b32 v9, 7, v1
    v_xor_b32 v9, v9, v8
    v_mul_u32_u24 v18, 1280, v8
    v_lshl_add_u32 v18, v9, 4, v18
    s_lshl_b32 s36, s30, 2
    s_add_u32 s36, s36, s3           ; R = 4rb + w
    s_mul_i32 s34, s36, {32*1280}
    s_mov_b32 s36, s34
    s_lshl_b32 s43, s3, 12
    s_cmp_ge_u32 s31, 8
    s_cbranch_scc1 {n}_q
    """)
    def common2(WSL):
        kb(f"""
        v_bfe_u32 v4, v1, 2, 2           ; r
        v_and_b32 v5, 3, v1              ; c'
        v_lshrrev_b32 v6, 1, v3
        v_lshlrev_b32 v6, 4, v6
        v_and_b32 v7, 1, v3
        v_lshl_add_u32 v6, v7, 2, v6
        v_add_u32 v6, v6, v4             ; p0 = 16(g>>1) + 4(g&1) + r
        v_mov_b32 v60, 0x3f803f80
        v_mov_b32 v61, 0x3f803f80
        v_mov_b32 v62, 0x3f803f80
        v_mov_b32 v63, 0x3f803f80
        v_cmp_eq_u32 s[64:65], 1, v5
        v_cmp_eq_u32 s[66:67], 2, v5
        v_cmp_eq_u32 s[68:69], 3, v5
        v_lshl_add_u32 v17, v4, 4, v2
        v_lshlrev_b32 v17, 2, v17
        v_and_b32 v8, 7, v2
        v_xor_b32 v8, v8, v3
        v_lshlrev_b32 v9, 7, v2
        v_add_u32 v9, s43, v9
        v_lshl_add_u32 v25, v8, 4, v9    ; X0
        v_xor_b32 v8, 4, v8
        v_lshl_add_u32 v19, v8, 4, v9    ; X1
        """)
    kb(f"""
    s_lshr_b32 s32, s3, 1
    s_and_b32 s33, s3, 1
    s_add_u32 s43, s43, 20480
    s_cmp_eq_u32 s4, 0
    s_cbranch_scc1 {n}_kvc
    """)
    for j in range(5):
        kb(f"""
        v_add_u32 v8, {64*j}, v1
        v_mul_u32_u24 v9, 6554, v8
        v_lshrrev_b32 v9, 16, v9         ; p = q/10
        v_mul_u32_u24 v10, 10, v9
        v_sub_u32 v8, v8, v10            ; chunk
        v_and_b32 v10, 19, v9
        v_bfe_u32 v11, v9, 2, 1
        v_lshl_add_u32 v10, v11, 3, v10
        v_bfe_u32 v11, v9, 3, 1
        v_lshl_add_u32 v10, v11, 2, v10
        v_mul_u32_u24 v10, 3840, v10
        v_lshl_add_u32 v{20+j}, v8, 4, v10
        """)
    kb(f"""
    s_mul_i32 s37, s32, {32*3840}
    s_mul_i32 s41, s33, 1280
    s_add_u32 s37, s37, s41
    s_mul_i32 s41, s31, 160
    s_add_u32 s37, s37, s41
    s_add_u32 s37, s37, 1280
    s_mul_i32 s35, s3, 5120          ; (w>>1)*10240 + (w&1)*5120
    s_waitcnt lgkmcnt(0)
    """)
    srd(kb, 44, P_X, 0, 2048*1280); srd(kb, 48, P_WQKV, 0, 640*3840)
    M = k1_main(kb, "kv")
    k1_loader(kb, M)
    kb(f"{n}_kvc:"); kb.fence()
    CSX = M["NS"]*M["SLOT"]
    common2(20480)
    kb(f"""
    v_mul_u32_u24 v6, 160, v6
    v_lshl_add_u32 v26, v5, 3, v6    ; aN
    v_mul_u32_u24 v7, 40, v5
    v_add3_u32 v27, v6, v7, 32       ; aT
    s_mul_i32 s41, s3, 40
    v_add_u32 v28, s41, v26          ; aC
    s_mul_i32 s41, s33, 5120
    s_mul_i32 s42, s32, 10240
    s_add_u32 s41, s41, s42
    v_add_u32 v29, s41, v27          ; aC4
    """)
    ACC, XX, SM, CSA, ONES = M["ACC"], M["XX"], M["SM"], M["CSA"], M["ONES"]
    kb(f"""
    v_lshlrev_b32 v8, 2, v2
    s_lshl_b32 s41, s3, 6
    s_add_u32 s41, s41, {CSX}
    v_add_u32 v9, s41, v8
    s_lshl_b32 s41, s33, 7
    s_lshl_b32 s42, s32, 6
    s_add_u32 s41, s41, s42
    s_add_u32 s41, s41, {CSX+512}
    v_add_u32 v11, s41, v8
    v_mul_u32_u24 v10, 80, v3        ; (16c + 4c)*4
    v_mov_b32 v16, 0
    s_waitcnt lgkmcnt(0)
    """)
    srd(kb, 52, P_DBG, 0, 256)
    tl = Rec()
    tl(f"""
    buffer_load_dword v59, v16, s[52:55], 0 offen sc1
    ds_write_b32 v9, v{CSA}
    ds_write_b32 v9, v{CSA+4} offset:256
    ds_write_b32 v11, v{CSA+8}
    """)
    k1_stats(tl, XX, SM, 12, 14, 20, 17)
    RS = 172; MR = 48
    for mt in range(2):
        for r in range(4):
            tl(f"ds_bpermute_b32 v{RS+4*mt+r}, v10, v{14+mt} offset:{4*r}")
            tl(f"ds_bpermute_b32 v{MR+4*mt+r}, v10, v{12+mt} offset:{4*r}")
    k1_loop(kb, M, {"N": 26, "T": 27, "C": 28, "C4": 29, "X0": 25, "X1": 19, "_free": 30}, tl.L)
    assert M["_vnext"] <= 48
    stamp(kb, 3)
    kb(f"s_waitcnt lgkmcnt(0)\n s_barrier\n v_add_u32 v9, {CSX}, v8")
    CS = 26
    for t in range(8): kb(f"ds_read_b32 v{CS+2*t}, v9 offset:{64*t}")
    for i in range(2):
        kb(f"ds_read_b32 v{CS+16+2*i}, v9 offset:{512+128*i}\n ds_read_b32 v{CS+17+2*i}, v9 offset:{512+128*i+64}")
    for i in range(2): kb(f"v_add_f32 v{CS+16+2*i}, v{CS+16+2*i}, v{CS+17+2*i}")
    kb(f"""
    v_mov_b32 v56, {EPS6}
    v_mov_b32 v58, {hex(f2u(LOG2E))}
    v_lshlrev_b32 v11, 4, v1         ; l*16
    s_mul_i32 s41, s3, 10240
    v_add_u32 v12, s41, v11
    s_lshl_b32 s41, s3, 10
    v_add_u32 v13, s41, v11
    """)
    fr = 188
    for t in range(10):
        isk = t < 4 or t == 8
        LL = []
        for mt in range(2):
            a = ACC + (t*2+mt)*4; T0 = 180 + 4*mt; L = []
            for p in range(2):
                tt = T0 + 2*p
                if isk: L.append(f"v_pk_fma_f32 {V(tt,2)}, {V(MR+4*mt+2*p,2)}, {V(CS+2*t,2)}, {V(56,2)} op_sel_hi:[1,0,0] neg_lo:[1,0,0] neg_hi:[1,0,0]")
                else: L.append(f"v_pk_mul_f32 {V(tt,2)}, {V(MR+4*mt+2*p,2)}, {V(CS+2*t,2)} op_sel_hi:[1,0] neg_lo:[1,0] neg_hi:[1,0]")
            for p in range(2):
                L.append(f"v_pk_fma_f32 {V(a+2*p,2)}, {V(a+2*p,2)}, {V(RS+4*mt+2*p,2)}, {V(T0+2*p,2)}")
            if isk:
                for p in range(2): L.append(f"v_pk_mul_f32 {V(T0+2*p,2)}, {V(a+2*p,2)}, {V(58,2)} op_sel_hi:[1,0]")
                for r in range(4): L.append(f"v_exp_f32 v{T0+r}, v{T0+r} clamp")
                for r in range(4): L.append(f"v_max_f32 v{a+r}, v56, v{a+r}")
                for p in range(2): L.append(f"v_pk_add_f32 {V(a+2*p,2)}, {V(a+2*p,2)}, {V(T0+2*p,2)}")
            for p in range(2): L.append(f"v_cvt_pk_bf16_f32 v{fr+2*mt+p}, v{a+2*p}, v{a+2*p+1}")
            LL.append(L)
        for x, y in zip(*LL): kb(x); kb(y)
        kb(f"ds_write_b128 v12, {V(fr,4)} offset:{t*1024}")
    stamp(kb, 4)
    kb("s_waitcnt lgkmcnt(0)\n s_barrier")
    for w in range(4):
        b = 16*w
        kb(f"""
        ds_read_b128 {A(b,4)}, v13 offset:{w*10240}
        ds_read_b128 {A(b+4,4)}, v13 offset:{w*10240+4096}
        ds_read_b128 {A(b+8,4)}, v11 offset:{w*10240+8192}
        ds_read_b128 {A(b+12,4)}, v11 offset:{w*10240+9216}
        """)
    kb(f"""
    v_mul_u32_u24 v9, 336, v3
    s_lshl_b32 s41, s3, 11
    s_add_u32 s41, s41, 40960
    v_add_u32 v9, s41, v9            ; stage + c*336
    v_lshl_add_u32 v10, v2, 4, v9    ; A: + e*16
    v_lshl_add_u32 v14, v5, 4, v9    ; C: + (n&3)*16 (+256)
    v_lshlrev_b32 v15, 4, v2
    v_add_u32 v15, s41, v15          ; B: + e*16 (+1344)
    v_lshlrev_b32 v20, 4, v5
    v_add_u32 v20, s41, v20
    v_lshlrev_b32 v21, 2, v1
    v_add_u32 v22, s41, v21
    s_lshl_b32 s41, s3, 4
    s_mov_b64 s[70:71], 0xffff
    s_lshl_b64 s[70:71], s[70:71], s41
    s_lshl_b32 s41, s3, 2
    s_mov_b32 s72, 0x000f000f
    s_lshl_b32 s72, s72, s41
    s_mov_b32 s73, s72
    s_mov_b32 s74, 0x00010001
    s_mov_b32 s75, 0x00010001               ; column 0
    """)
    for w in range(4):
        b = 16*w
        for i, (x, y) in enumerate([(A(b,4), A(b+4,4)), (A(b+8,4), A(b+4,4)), (A(b,4), A(b+12,4)), (A(b+8,4), A(b+12,4)),
                                    (A(b,4), V(ONES,4)), (A(b+8,4), V(ONES,4))]):
            d = V(ACC + 4*i, 4)
            kb(f"v_mfma_f32_16x16x32_bf16 {d}, {x}, {y}, {d if w else '0'}")
    kb(f"""
    s_lshl_b32 s41, s31, 2
    s_add_u32 s41, s41, s3
    s_mul_i32 s41, s41, 1680
    s_add_u32 s41, s41, {OFF_KV}
    s_add_u32 s56, s{P_WS}, s41
    s_addc_u32 s57, s{P_WS+1}, 0
    s_mov_b32 s58, 1680
    s_mov_b32 s59, 0x20000
    ds_write_b128 v10, {V(ACC,4)}
    s_mov_b64 exec, s[70:71]
    ds_write_b128 v15, {V(ACC+4,4)} offset:1344
    s_mov_b64 exec, s[72:73]
    ds_write_b128 v14, {V(ACC+8,4)} offset:256
    s_and_b64 exec, s[70:71], s[72:73]
    ds_write_b128 v20, {V(ACC+12,4)} offset:{1344+256}
    s_mov_b64 exec, s[74:75]
    ds_write_b128 v9, {V(ACC+16,4)} offset:320
    s_and_b64 exec, s[70:71], s[74:75]
    ds_write_b128 v20, {V(ACC+20,4)} offset:{1344+320}
    s_mov_b64 exec, -1
    """)
    for i in range(7): kb(f"ds_read_b32 v{24+i}, v22 offset:{256*i}")
    kb(f"""
    s_mov_b32 s41, 0
    s_waitcnt vmcnt(0)
    {n}_poll:
    v_readfirstlane_b32 s42, v59
    s_cmp_lg_u32 s42, 0
    s_cbranch_scc1 {n}_go
    s_sleep 4
    buffer_load_dword v59, v16, s[52:55], 0 offen sc1
    s_add_u32 s41, s41, 1
    s_cmp_lt_u32 s41, 0x100000
    s_waitcnt vmcnt(0)
    s_cbranch_scc1 {n}_poll
    {n}_go:
    """)
    stamp(kb, 5)
    for i in range(7):
        kb(f"buffer_atomic_add_f32 v{24+i}, v21, s[56:59], 0 offen offset:{256*i}")
    kb(f"s_branch {n}_fin")
    kb(f"{n}_q:")
    kb.fence()
    kb(f"""
    s_sub_u32 s31, s31, 8            ; qc
    s_add_u32 s43, s43, 16384
    s_cmp_eq_u32 s4, 0
    s_cbranch_scc1 {n}_qc
    """)
    for j in range(4):
        kb(f"""
        v_add_u32 v8, {4*(j&1)}, v3
        v_lshlrev_b32 v8, 1, v8
        v_xor_b32 v8, v8, v2             ; chunk
        v_add_u32 v9, {8*(j&1) + 4*(j>>1)}, v3
        v_mul_u32_u24 v9, 3840, v9
        v_lshl_add_u32 v{20+j}, v8, 4, v9
        """)
    kb(f"""
    s_mul_i32 s37, s3, {16*3840}
    s_lshl_b32 s41, s31, 8
    s_add_u32 s37, s37, s41
    s_lshl_b32 s35, s3, 12
    s_waitcnt lgkmcnt(0)
    """)
    srd(kb, 44, P_X, 0, 2048*1280); srd(kb, 48, P_WQKV, 0, 640*3840)
    M = k1_main(kb, "q")
    k1_loader(kb, M)
    kb(f"{n}_qc:"); kb.fence()
    CSQ = M["NS"]*M["SLOT"]
    common2(16384)
    kb(f"""
    v_and_b32 v7, 7, v6
    v_lshlrev_b32 v7, 1, v7          ; f = 2(p0&7)
    v_lshlrev_b32 v6, 8, v6
    v_and_b32 v8, 1, v5
    v_lshl_add_u32 v6, v8, 3, v6
    v_lshrrev_b32 v8, 1, v5
    v_lshl_add_u32 v6, v8, 4, v6     ; p0*256 + b*16 + (c'&1)*8
    """)
    for t in range(8):
        kb(f"v_xor_b32 v9, {2*t}, v7\n v_lshl_add_u32 v{26+t}, v9, 4, v6")
    kb(f"""
    s_lshl_b32 s41, s3, 1
    v_xor_b32 v9, s41, v7
    v_lshl_add_u32 v34, v9, 4, v6
    s_add_u32 s41, s41, 8
    v_xor_b32 v9, s41, v7
    v_lshl_add_u32 v35, v9, 4, v6
    s_lshl_b32 s42, s31, 5
    """)
    SA = 160
    for t in range(8):
        kb(f"""
        v_add_u32 v8, {4*t}, v3
        v_add_u32 v8, s42, v8            ; G
        v_mul_u32_u24 v9, 52429, v8
        v_lshrrev_b32 v9, 18, v9         ; H
        v_mul_u32_u24 v10, 5, v9
        v_sub_u32 v8, v8, v10            ; gi
        v_mul_u32_u24 v9, 1280, v9
        v_lshrrev_b32 v10, 1, v8
        v_lshl_add_u32 v9, v10, 9, v9
        v_and_b32 v10, 1, v8
        v_lshl_add_u32 v9, v10, 3, v9
        v_lshrrev_b32 v10, 2, v8
        v_sub_u32 v10, 4, v10
        v_lshlrev_b32 v11, v10, v2
        v_add_u32 v{SA+2*t}, v9, v11
        v_lshlrev_b32 v11, v10, 16
        v_add_u32 v{SA+2*t+1}, v{SA+2*t}, v11
        """)
    ACC, XX, SM, CSA = M["ACC"], M["XX"], M["SM"], M["CSA"]
    kb(f"""
    v_lshlrev_b32 v8, 4, v3
    v_add_u32 v8, {CSQ}, v8
    s_lshl_b32 s41, s3, 6
    v_add_u32 v9, s41, v8
    s_waitcnt lgkmcnt(0)
    """)
    srd(kb, 52, P_WS, OFF_PQ, SZ_PQ)
    tl = Rec()
    tl(f"ds_write_b128 v9, {V(CSA,4)}\n ds_write_b128 v9, {V(CSA+4,4)} offset:256")
    k1_stats(tl, XX, SM, 52, 54, 56, 17)
    ar = {t: 26 + t for t in range(10)}; ar.update({"X0": 25, "X1": 19, "_free": 36})
    k1_loop(kb, M, ar, tl.L)
    assert M["_vnext"] <= 52
    stamp(kb, 3)
    kb(f"""
    v_mov_b32 v20, v52
    v_mov_b32 v22, v53
    v_mov_b32 v24, v54
    v_mov_b32 v26, v55
    v_mov_b32 v56, {EPS6}
    v_mov_b32 v58, {hex(f2u(LOG2E))}
    s_waitcnt lgkmcnt(0)
    s_barrier
    """)
    CS = 128
    for t in range(8): kb(f"ds_read_b128 {V(CS+4*t,4)}, v8 offset:{64*t}")
    for t in range(8):
        LL = []
        for mt in range(2):
            a = ACC + (t*2+mt)*4; T0 = 28 + 4*mt; L = []
            for p in range(2):
                L.append(f"v_pk_fma_f32 {V(T0+2*p,2)}, {V(CS+4*t+2*p,2)}, {V(20+2*mt,2)}, {V(56,2)} op_sel_hi:[1,0,0] neg_lo:[1,0,0] neg_hi:[1,0,0]")
            for p in range(2):
                L.append(f"v_pk_fma_f32 {V(a+2*p,2)}, {V(a+2*p,2)}, {V(24+2*mt,2)}, {V(T0+2*p,2)} op_sel_hi:[1,0,1]")
            for p in range(2): L.append(f"v_pk_mul_f32 {V(T0+2*p,2)}, {V(a+2*p,2)}, {V(58,2)} op_sel_hi:[1,0]")
            for r in range(4): L.append(f"v_exp_f32 v{T0+r}, v{T0+r} clamp")
            for r in range(4): L.append(f"v_max_f32 v{a+r}, v56, v{a+r}")
            for p in range(2): L.append(f"v_pk_add_f32 {V(a+2*p,2)}, {V(a+2*p,2)}, {V(T0+2*p,2)}")
            for p in range(2): L.append(f"v_cvt_pk_bf16_f32 v{a+p}, v{a+2*p}, v{a+2*p+1}")
            L.append(f"buffer_store_dwordx2 {V(a,2)}, v{SA+2*t+mt}, s[52:55], s34 offen")
            LL.append(L)
        for x, y in zip(*LL): kb(x); kb(y)
    kb(f"s_branch {n}_fin")
    kb(f"{n}_rl:")
    kb.fence()
    kb(f"""
    s_sub_u32 s29, s29, 26
    s_lshl_b32 s29, s29, 3
    s_add_u32 s29, s29, s28
    s_mul_i32 s30, s4, 48
    s_add_u32 s29, s29, s30          ; unit
    s_mul_i32 s30, s4, 81920
    s_waitcnt lgkmcnt(0)
    s_cmp_lt_u32 s29, {0 if OPT['norl'] else 94}
    s_cbranch_scc1 {n}_rl_unit
    s_cmp_eq_u32 s29, 95
    s_cbranch_scc0 {n}_end
    s_cmp_eq_u32 s3, 0
    s_cbranch_scc0 {n}_end
    """)
    srd(kb, 48, P_WS, OFF_KV, SZ_KV); srd(kb, 52, P_DBG, 0, 256)
    kb("v_mov_b32 v8, 0\n v_mov_b32 v9, 0\n v_mov_b32 v10, 0\n v_mov_b32 v11, 0\n v_lshlrev_b32 v12, 4, v1\n s_mov_b32 s41, 0")
    for i in range(53):
        kb(f"buffer_store_dwordx4 v[8:11], v12, s[48:51], s41 offen offset:{(i&3)*1024} sc1")
        if i & 3 == 3: kb("s_add_u32 s41, s41, 4096")
    kb(f"""
    s_waitcnt vmcnt(0)
    v_mov_b32 v9, 1
    s_mov_b64 exec, 1
    buffer_store_dword v9, v8, s[52:55], 0 offen sc1
    s_branch {n}_end
    {n}_rl_unit:
    """)
    relayout(kb, 29, f"{n}_rl_x", 30)
    kb(f"""
    {n}_rl_x:
    s_cmp_eq_u32 s4, 0
    s_cbranch_scc0 {n}_end
    """)
    finish(kb, 0)
    return (kb, 256, 512, 163840)
```

```python
import sys
from kb import *
from layouts import *

P_X, P_WQKV, P_WO, P_GATE, P_UP, P_DOWN, P_OUT, P_DBG, P_WS = 8, 10, 12, 16, 18, 20, 22, 24, 26

DIAG = False
OPT = dict(rot1=10, rot3=0, rot4=0, pf2=0, pf3=0, map1=1, look3=3, vp3=32, h0_3=16, noepi=0, epw=2, pg3=4, map34=1, norl=0, qpf=1, ldiag=0, cpf=1, st1=1, st2=0, st3=1, st4=0)
STM = ['', ' sc1', ' nt', ' sc0 sc1']
def stamp(kb, i):
    if DIAG: kb(f"{'s_memtime' if DIAG == 2 else 's_memrealtime'} s[{88+2*i}:{89+2*i}]")
def finish(kb, kidx):
    n = kb.name
    kb(f"{n}_fin:")
    if OPT['ldiag'] and kidx == 0: kb(f"s_branch {n}_end\n {n}_fin2:")
    if DIAG:
        kb.fence()
        kb(f"s_waitcnt vmcnt(0) lgkmcnt(0)\n {'s_memtime' if DIAG == 2 else 's_memrealtime'} s[86:87]\n s_memtime s[84:85]\n s_mov_b64 exec, -1\n s_waitcnt lgkmcnt(0)\n s_sub_u32 s100, s84, s100")
        srd(kb, 40, P_WS, OFF_TS + kidx*65536, 65536)
        kb("s_lshl_b32 s44, s2, 2\n s_add_u32 s44, s44, s3\n s_lshl_b32 s44, s44, 5\n s_waitcnt lgkmcnt(0)")
        for i in range(7): kb(f"v_mov_b32 v{8+i}, s{88+2*i}")
        kb("v_mov_b32 v15, s86\n v_mov_b32 v2, s44\n s_mov_b64 exec, 1")
        kb("buffer_store_dwordx4 v[8:11], v2, s[40:43], 0 offen\n buffer_store_dwordx4 v[12:15], v2, s[40:43], 0 offen offset:16")
    kb(f"{n}_end:")

def prologue(kb, nwg):
    if DIAG:
        for i in range(1, 6): kb(f"s_mov_b32 s{88+2*i}, 0")
        kb("s_memtime s[100:101]")
    stamp(kb, 0)
    kb(f"""
    s_cmp_ge_u32 s2, {nwg}
    s_cbranch_scc1 {kb.name}_end
    s_load_dwordx16 s[8:23], s[0:1], 0
    s_load_dwordx4 s[24:27], s[0:1], 64
    v_lshrrev_b32 v2, 6, v0
    v_and_b32 v1, 63, v0
    v_readfirstlane_b32 s3, v2
    """)

def srd(kb, d, ptr, off, size):
    assert d % 4 == 0
    if off:
        kb(f"s_add_u32 s{d}, s{ptr}, {off}\n s_addc_u32 s{d+1}, s{ptr+1}, 0")
    else:
        kb(f"s_mov_b32 s{d}, s{ptr}\n s_mov_b32 s{d+1}, s{ptr+1}")
    kb(f"s_mov_b32 s{d+2}, {size}\n s_mov_b32 s{d+3}, 0x20000")

def relayout(kb, su, nxt, sbase):
    n = kb.name
    kb.fence()
    kb(f"""
    v_lshrrev_b32 v2, 3, v1          ; l>>3
    v_and_b32 v3, 7, v1              ; l&7
    v_lshlrev_b32 v3, 4, v3
    v_lshlrev_b32 v4, 4, v1
    v_bfe_u32 v5, v1, 2, 2           ; r
    v_and_b32 v6, 3, v1              ; c'
    v_lshrrev_b32 v7, 5, v1          ; hi (l>>5)
    v_bfe_u32 v8, v1, 4, 1
    s_lshl_b32 s44, s3, 10           ; wave*1024
    s_add_u32 s44, s44, s{sbase}
    s_cmp_lt_u32 s{su}, 54
    s_cbranch_scc0 {n}_rl_notg
    """)
    kb(f"""
    s_lshr_b32 s41, s{su}, 1
    s_and_b32 s42, s{su}, 1
    v_mul_u32_u24 v9, 3456, v2
    v_add_u32 v9, v9, v3
    s_mul_i32 s43, s42, {320*3456}
    s_mul_i32 s45, s3, {8*3456}
    s_add_u32 s43, s43, s45
    s_lshl_b32 s45, s41, 7
    s_add_u32 s43, s43, s45
    """)
    srd(kb, 48, P_GATE, 0, 640*3456); srd(kb, 52, P_UP, 0, 640*3456); srd(kb, 56, P_WS, OFF_WGU, SZ_WGU)
    srd(kb, 60, P_WS, OFF_CS, SZ_CS)
    for i in range(10):
        for mtx in range(2):
            kb(f"s_add_u32 m0, s44, {i*4096 + mtx*40960}")
            kb(f"buffer_load_dwordx4 v9, s[{48+4*mtx}:{51+4*mtx}], s43 offen lds")
        if i < 9: kb(f"s_add_u32 s43, s43, {32*3456}")
    kb(f"""
    v_lshrrev_b32 v10, 1, v6
    v_mul_u32_u24 v10, 40960, v10    ; matrix
    v_lshl_add_u32 v11, v7, 2, v5    ; 4hi + r
    v_lshl_add_u32 v10, v11, 7, v10
    v_lshl_add_u32 v10, v8, 4, v10   ; + 8nb*2
    v_and_b32 v11, 1, v6
    v_lshl_add_u32 v10, v11, 3, v10  ; + 4(c'&1)*2
    s_lshl_b32 s45, s3, 5
    s_add_u32 s45, s45, s{sbase}
    v_add_u32 v10, s45, v10          ; + 16w*2
    v_mov_b32 v12, 0x3f803f80
    v_mov_b32 v13, 0x3f803f80
    v_mov_b32 v14, 0x3f803f80
    v_mov_b32 v15, 0x3f803f80
    s_lshl_b32 s45, s41, 2
    s_add_u32 s45, s45, s3           ; chunk j
    s_mul_i32 s46, s45, {40*1024}
    s_mul_i32 s47, s42, {20*1024}
    s_add_u32 s46, s46, s47
    s_lshl_b32 s45, s45, 10
    s_waitcnt vmcnt(0)
    s_barrier
    """)
    NB = 6
    def rd(u):
        b = 32 + 4*(u % NB)
        kb(f"ds_read_b64_tr_b16 {V(b,2)}, v10 offset:{u*2048}")
        kb(f"ds_read_b64_tr_b16 {V(b+2,2)}, v10 offset:{u*2048+1024}")
    for u in range(NB-1): rd(u)
    for u in range(20):
        if u + NB - 1 < 20: rd(u + NB - 1)
        b = 32 + 4*(u % NB)
        kb(f"v_mfma_f32_32x32x16_bf16 v[16:31], v[12:15], {V(b,4)}, {'0' if u == 0 else 'v[16:31]'}")
        kb(f"buffer_store_dwordx4 {V(b,4)}, v4, s[56:59], s46 offen offset:{(u&3)*1024}{STM[OPT['st1']]}")
        if (u & 3) == 3: kb("s_add_u32 s46, s46, 4096")
    kb(f"""
    v_cvt_pk_bf16_f32 v32, v16, v16
    v_lshlrev_b32 v32, 16, v32
    v_sub_f32 v33, v16, v32          ; r1
    v_cvt_pk_bf16_f32 v32, v33, v33
    v_lshlrev_b32 v32, 16, v32
    v_sub_f32 v34, v33, v32          ; r2
    v_cvt_pk_bf16_f32 v36, v16, v33
    v_cvt_pk_bf16_f32 v37, v34, v16
    v_cvt_pk_bf16_f32 v38, v33, v34
    v_mov_b32 v39, v36
    v_cmp_eq_u32 vcc, s42, v7
    s_and_saveexec_b64 s[46:47], vcc
    buffer_store_dwordx4 v[36:39], v4, s[60:63], s45 offen
    s_mov_b64 exec, s[46:47]
    s_branch {nxt}
    {n}_rl_notg:
    """)
    kb.fence()
    kb(f"""
    v_mul_u32_u24 v9, 1280, v2
    v_add_u32 v9, v9, v3
    s_cmp_lt_u32 s{su}, 84
    s_cbranch_scc0 {n}_rl_o
    """)
    kb(f"""
    s_sub_u32 s40, s{su}, 54
    s_mul_i32 s41, s40, 43691
    s_lshr_b32 s41, s41, 17          ; sigma = u/3
    s_mul_i32 s42, s41, 3
    s_sub_u32 s42, s40, s42          ; part
    s_mul_i32 s43, s42, {576*1280}
    s_mul_i32 s45, s3, {8*1280}
    s_add_u32 s43, s43, s45
    s_lshl_b32 s45, s41, 7
    s_add_u32 s43, s43, s45
    """)
    srd(kb, 48, P_DOWN, 0, 1728*1280); srd(kb, 56, P_WS, OFF_WD, SZ_WD)
    for i in range(18):
        kb(f"s_add_u32 m0, s44, {i*4096}")
        kb(f"buffer_load_dwordx4 v9, s[48:51], s43 offen lds")
        if i < 17: kb(f"s_add_u32 s43, s43, {32*1280}")
    kb(f"""
    v_lshlrev_b32 v10, 4, v7         ; 16*(c>>1)
    v_lshl_add_u32 v10, v8, 2, v10   ; + 4*(c&1)
    v_add_u32 v10, v10, v5
    v_lshlrev_b32 v10, 7, v10
    v_lshl_add_u32 v10, v6, 3, v10   ; + 4c'*2
    s_lshl_b32 s45, s3, 5
    s_add_u32 s45, s45, s{sbase}
    v_add_u32 v10, s45, v10
    v_add_u32 v11, 0x10000, v10
    s_lshl_b32 s45, s41, 2
    s_add_u32 s45, s45, s3           ; nt
    s_mul_i32 s46, s45, 52429
    s_lshr_b32 s46, s46, 18
    s_mul_i32 s47, s46, 5
    s_sub_u32 s45, s45, s47          ; t
    s_mul_i32 s46, s46, 54
    s_mul_i32 s47, s42, 18
    s_add_u32 s46, s46, s47
    s_mul_i32 s46, s46, 5
    s_add_u32 s46, s46, s45
    s_lshl_b32 s46, s46, 10
    s_waitcnt vmcnt(0)
    s_barrier
    """)
    def rdD(T):
        b = 32 + 4*(T % NB)
        a, o = ("v10", T*4096) if T < 16 else ("v11", (T-16)*4096)
        kb(f"ds_read_b64_tr_b16 {V(b,2)}, {a} offset:{o}")
        kb(f"ds_read_b64_tr_b16 {V(b+2,2)}, {a} offset:{o+1024}")
    for T in range(NB-1): rdD(T)
    for T in range(18):
        if T + NB - 1 < 18: rdD(T + NB - 1)
        b = 32 + 4*(T % NB)
        kb(f"buffer_store_dwordx4 {V(b,4)}, v4, s[56:59], s46 offen{STM[OPT['st1']]}")
        if T < 17: kb("s_add_u32 s46, s46, 5120")
    kb(f"s_branch {nxt}")
    kb(f"{n}_rl_o:")
    kb.fence()
    kb(f"""
    s_sub_u32 s41, s{su}, 84
    s_mul_i32 s43, s3, {8*1280}
    s_lshl_b32 s45, s41, 7
    s_add_u32 s43, s43, s45
    """)
    srd(kb, 48, P_WO, 0, 640*1280); srd(kb, 56, P_WS, OFF_WO, SZ_WO)
    for i in range(20):
        kb(f"s_add_u32 m0, s44, {i*4096}")
        kb(f"buffer_load_dwordx4 v9, s[48:51], s43 offen lds")
        if i < 19: kb(f"s_add_u32 s43, s43, {32*1280}")
    kb(f"""
    v_lshlrev_b32 v10, 7, v5         ; r*128
    v_lshl_add_u32 v10, v8, 5, v10   ; + 16nb*2
    v_lshl_add_u32 v10, v6, 3, v10   ; + 4c'*2
    s_mul_i32 s45, s3, {160*128}
    s_add_u32 s45, s45, s{sbase}
    v_add_u32 v10, s45, v10
    v_mul_u32_u24 v11, {20*128}, v7
    v_add_u32 v11, v11, v10
    v_lshl_add_u32 v10, v7, 9, v10
    """)
    for b in range(2):
        kb(f"""
        s_lshl_b32 s45, s41, 1
        s_add_u32 s45, s45, {b}
        s_mul_i32 s42, s45, 52429
        s_lshr_b32 s42, s42, 18
        s_mul_i32 s40, s42, 5
        s_sub_u32 s45, s45, s40
        s_lshl_b32 s42, s42, 2
        s_add_u32 s42, s42, s3
        s_mul_i32 s42, s42, 50
        s_add_u32 s42, s42, s45
        s_lshl_b32 s{46+b}, s42, 10
        """)
    kb("s_waitcnt vmcnt(0)\n s_barrier")
    seq = [(kap, b) for kap in range(10) for b in range(2)]
    def rdO(i):
        kap, b = seq[i]; bb = 32 + 4*(i % NB)
        for h in range(2):
            pi, ss = divmod(2*kap + h, 5)
            a = "v11" if ss == 2 else "v10"
            kb(f"ds_read_b64_tr_b16 {V(bb+2*h,2)}, {a} offset:{(40*pi + LOFF[ss])*128 + b*64}")
    for i in range(NB-1): rdO(i)
    for i in range(20):
        if i + NB - 1 < 20: rdO(i + NB - 1)
        kap, b = seq[i]; bb = 32 + 4*(i % NB)
        kb(f"buffer_store_dwordx4 {V(bb,4)}, v4, s[56:59], s{46+b} offen{STM[OPT['st1']]}")
        kb(f"s_add_u32 s{46+b}, s{46+b}, 5120")
    kb(f"s_branch {nxt}")

def k0_test():
    kb = KB("k0_kernel")
    prologue(kb, 94)
    kb("s_waitcnt lgkmcnt(0)")
    relayout(kb, 2, "k0_kernel_end")
    kb("k0_kernel_end:")
    return (kb, 94, 256, 81920)


K3MAP = ["""
    s_lshl_b32 s30, s28, 1
    s_and_b32 s31, s29, 1
    s_add_u32 s30, s30, s31          ; rb
    s_lshr_b32 s31, s29, 1           ; cb
""", """
    s_lshr_b32 s30, s28, 1
    s_lshl_b32 s30, s30, 2
    s_and_b32 s31, s29, 3
    s_add_u32 s30, s30, s31          ; rb = 4(x>>1) + (i&3)
    s_and_b32 s31, s28, 1
    s_lshl_b32 s31, s31, 3
    s_lshr_b32 s32, s29, 2
    s_add_u32 s31, s31, s32          ; cb = 8(x&1) + (i>>2)
""", """
    s_lshr_b32 s30, s28, 2
    s_lshl_b32 s30, s30, 3
    s_and_b32 s31, s29, 7
    s_add_u32 s30, s30, s31          ; rb = 8(x>>2) + (i&7)
    s_and_b32 s31, s28, 3
    s_lshl_b32 s31, s31, 2
    s_lshr_b32 s32, s29, 3
    s_add_u32 s31, s31, s32          ; cb = 4(x&3) + (i>>3)
"""]
K4MAP = ["""
    s_lshl_b32 s30, s28, 2
    s_and_b32 s33, s29, 3
    s_add_u32 s30, s30, s33          ; rb64
    s_lshr_b32 s31, s29, 2           ; cb
""", """
    s_lshr_b32 s30, s28, 1
    s_lshl_b32 s30, s30, 3
    s_and_b32 s33, s29, 7
    s_add_u32 s30, s30, s33          ; rb64 = 8(x>>1) + (i&7)
    s_and_b32 s31, s28, 1
    s_lshl_b32 s31, s31, 2
    s_lshr_b32 s32, s29, 3
    s_add_u32 s31, s31, s32          ; cb = 4(x&1) + (i>>3)
    s_and_b32 s33, s33, 3
"""]
K4MAP.append(K4MAP[1])

def prefetch(kb, srdreg, base_expr_sreg, vtmp, vdst, n):
    L = [f"v_lshlrev_b32 v{vtmp}, 7, v1"]
    for i in range(n):
        L.append(f"buffer_load_dword v{vdst+i}, v{vtmp}, s[{srdreg}:{srdreg+3}], s{base_expr_sreg} offen" + (f"\n s_add_u32 s{base_expr_sreg}, s{base_expr_sreg}, 8192" if i < n-1 else ""))
    return L

BIG = 0x4000000

def k4():
    kb = KB("k4_kernel")
    prologue(kb, 256)
    kb(f"""
    s_and_b32 s28, s2, 7
    s_lshr_b32 s29, s2, 3
    {K4MAP[OPT['map34']]}
    s_mul_i32 s33, s33, {3 if OPT['rot4'] else 0}
    s_mul_i32 s34, s3, 14            ; 14w
    s_mul_i32 s35, s30, {2*108*1024} ; g base
    s_mul_i32 s36, s31, {54*5120}
    v_and_b32 v2, 15, v1             ; m
    v_lshrrev_b32 v3, 4, v1          ; c
    v_lshlrev_b32 v4, 4, v2
    v_lshl_add_u32 v4, v3, 9, v4     ; voff g  (c*512 + m*16)
    v_add_u32 v5, {108*1024}, v4
    v_lshlrev_b32 v6, 4, v1
    v_add_u32 v7, 1024, v6
    s_waitcnt lgkmcnt(0)
    """)
    srd(kb, 40, P_WS, OFF_G, SZ_G); srd(kb, 44, P_WS, OFF_WD, SZ_WD); srd(kb, 48, P_WS, OFF_H, SZ_H)
    srd(kb, 52, P_OUT, 0, 2048*1280)
    NB = 4
    ACC = 32
    def loads(i):
        b = 36*(i % NB)
        kb(f"""
        s_add_u32 s37, s34, s33
        s_lshl_b32 s38, s37, 11
        s_add_u32 s38, s38, s35
        s_mul_i32 s39, s37, 5120
        s_add_u32 s39, s39, s36
        s_cmp_ge_u32 s37, 54
        s_cselect_b32 s38, {BIG}, s38
        s_cselect_b32 s39, {BIG}, s39
        s_add_u32 s33, s33, 1
        s_cmp_eq_u32 s33, 14
        s_cselect_b32 s33, 0, s33
        """)
        L = []
        L.append(f"buffer_load_dwordx4 {A(b+16,4)}, v6, s[44:47], s39 offen")
        L.append(f"buffer_load_dwordx4 {A(b,4)}, v4, s[40:43], s38 offen")
        L.append(f"buffer_load_dwordx4 {A(b+4,4)}, v4, s[40:43], s38 offen offset:256")
        L.append(f"buffer_load_dwordx4 {A(b+8,4)}, v5, s[40:43], s38 offen")
        L.append(f"buffer_load_dwordx4 {A(b+12,4)}, v5, s[40:43], s38 offen offset:256")
        for t in range(1, 5):
            L.append(f"buffer_load_dwordx4 {A(b+16+4*t,4)}, v7, s[44:47], s39 offen offset:{(t-1)*1024}")
        return L
    for i in range(NB-1):
        for l in loads(i): kb(l)
    kb(f"""
    v_lshrrev_b32 v8, 2, v1
    v_and_b32 v9, 3, v1              ; q0
    s_lshl_b32 s56, s3, 4
    v_add_u32 v8, s56, v8
    v_and_b32 v10, 31, v8
    v_lshlrev_b32 v10, 4, v10
    v_and_b32 v11, 1, v9
    v_lshl_add_u32 v10, v11, 9, v10
    v_lshrrev_b32 v11, 1, v9
    v_lshl_add_u32 v10, v11, 3, v10
    s_lshr_b32 s57, s3, 1
    s_lshl_b32 s58, s30, 1
    s_add_u32 s57, s57, s58          ; R
    s_mul_i32 s57, s57, 40
    s_mul_i32 s58, s31, 5
    s_add_u32 s57, s57, s58
    s_lshl_b32 s57, s57, 10
    s_add_u32 s58, s57, 4096
    """)
    for i in range(5):
        if i < 4: kb(f"buffer_load_dwordx2 {V(16+2*i,2)}, v10, s[48:51], s57 offen offset:{i*1024}")
        else: kb(f"buffer_load_dwordx2 {V(16+2*i,2)}, v10, s[48:51], s58 offen")
    kb(f"""
    v_mul_u32_u24 v11, 336, v8
    v_lshl_add_u32 v11, v9, 4, v11
    v_mul_u32_u24 v12, 336, v2
    v_lshl_add_u32 v12, v3, 4, v12
    s_mul_i32 s59, s3, 21504
    v_add_u32 v12, s59, v12
    v_mul_u32_u24 v13, 1280, v8
    v_lshl_add_u32 v13, v9, 3, v13
    s_mul_i32 s59, s30, {64*1280}
    s_mul_i32 s60, s31, 160
    s_add_u32 s59, s59, s60
    """)
    stamp(kb, 1)
    HU = 112
    for i in range(14):
        if i in (1, 7): stamp(kb, {1: 2, 7: 3}[i])
        L = loads(i + NB - 1) if i + NB - 1 < 14 else []
        if i == 12:
            for j in range(5):
                L += [f"v_lshlrev_b32 v{HU+4*j}, 16, v{16+2*j}\n v_and_b32 v{HU+4*j+1}, 0xffff0000, v{16+2*j}",
                      f"v_lshlrev_b32 v{HU+4*j+2}, 16, v{17+2*j}\n v_and_b32 v{HU+4*j+3}, 0xffff0000, v{17+2*j}"]
        b = 36*(i % NB)
        k = 0; done = []
        for t in range(5):
            for mt in range(4):
                d = V(ACC + (mt*5+t)*4, 4)
                kb(f"v_mfma_f32_16x16x32_bf16 {d}, {A(b+16+4*t,4)}, {A(b+4*mt,4)}, {'0' if i == 0 else d}")
                if k % 2 == 1 and L: kb(L.pop(0))
                if i == 13:
                    done.append(f"ds_write_b128 v12, {d} offset:{mt*16*336 + t*64}")
                    if len(done) > 6: kb(done.pop(0))
                k += 1
        assert not L
    stamp(kb, 4)
    for t in done: kb(t)
    kb("s_waitcnt lgkmcnt(0)\n s_barrier")
    for i in range(5):
        for w in range(4):
            kb(f"ds_read_b128 {V(ACC+(i*4+w)*4,4)}, v11 offset:{w*21504 + i*64}")
    for i in range(5):
        a = ACC + i*16; u = HU + 4*i
        kb(f"""
        v_pk_add_f32 {V(a,2)}, {V(a,2)}, {V(a+4,2)}
        v_pk_add_f32 {V(a+2,2)}, {V(a+2,2)}, {V(a+6,2)}
        v_pk_add_f32 {V(a+8,2)}, {V(a+8,2)}, {V(a+12,2)}
        v_pk_add_f32 {V(a+10,2)}, {V(a+10,2)}, {V(a+14,2)}
        v_pk_add_f32 {V(a,2)}, {V(a,2)}, {V(a+8,2)}
        v_pk_add_f32 {V(a+2,2)}, {V(a+2,2)}, {V(a+10,2)}
        v_cvt_pk_bf16_f32 v{a+4}, v{a}, v{a+1}
        v_cvt_pk_bf16_f32 v{a+5}, v{a+2}, v{a+3}
        v_lshlrev_b32 v{a}, 16, v{a+4}
        v_and_b32 v{a+1}, 0xffff0000, v{a+4}
        v_lshlrev_b32 v{a+2}, 16, v{a+5}
        v_and_b32 v{a+3}, 0xffff0000, v{a+5}
        v_pk_add_f32 {V(a,2)}, {V(a,2)}, {V(u,2)}
        v_pk_add_f32 {V(a+2,2)}, {V(a+2,2)}, {V(u+2,2)}
        v_cvt_pk_bf16_f32 v{a+4}, v{a}, v{a+1}
        v_cvt_pk_bf16_f32 v{a+5}, v{a+2}, v{a+3}
        buffer_store_dwordx2 {V(a+4,2)}, v13, s[52:55], s59 offen offset:{i*32}{STM[OPT['st4']]}
        """)
    finish(kb, 3)
    return (kb, 256, 256, 86016)

import struct
def f2u(x): return struct.unpack("<I", struct.pack("<f", x))[0]
LOG2E = 1.4426950408889634

def bf16r(kb, dst, src):
    kb(f"v_cvt_pk_bf16_f32 v{dst}, v{src}, v{src}\n v_and_b32 v{dst}, 0xffff0000, v{dst}")

def ln_scalars(kb, vs, vq, vmean, vrstd, t):
    kb(f"""
    v_mul_f32 v{vs}, {hex(f2u(1/640))}, v{vs}
    v_mul_f32 v{vq}, {hex(f2u(1/640))}, v{vq}
    v_fma_f32 v{vq}, -v{vs}, v{vs}, v{vq}
    v_max_f32 v{vq}, 0, v{vq}
    """)
    bf16r(kb, vmean, vs)
    bf16r(kb, t, vq)
    kb(f"v_add_f32 v{t}, {hex(f2u(1e-5))}, v{t}")
    bf16r(kb, t, t)
    kb(f"v_sqrt_f32 v{t}, v{t}")
    bf16r(kb, t, t)
    kb(f"v_rcp_f32 v{vrstd}, v{t}")

def k3(P1=3):
    LOOK = OPT['look3']; per_gap = OPT['pg3']
    kb = KB("k3_kernel")
    prologue(kb, 256)
    kb(f"""
    s_and_b32 s28, s2, 7
    s_lshr_b32 s29, s2, 3
    {K3MAP[OPT['map34']]}
    s_mov_b32 s33, 0
    s_mul_i32 s31, s31, 7            ; j0
    s_lshl_b32 s34, s30, 2
    s_add_u32 s34, s34, s3           ; R
    s_lshl_b32 s35, s3, 10           ; w*1024
    v_lshlrev_b32 v2, 4, v1          ; l*16
    v_add_u32 v3, s35, v2
    v_add_u32 v4, 0x10000, v2
    v_and_b32 v5, 31, v1
    v_lshlrev_b32 v5, 4, v5
    v_lshrrev_b32 v6, 5, v1
    v_lshl_add_u32 v5, v6, 10, v5
    s_lshl_b32 s36, s34, 11
    s_mul_i32 s37, s34, {40*1024}    ; h soffset
    """)
    for c in range(7):
        kb(f"""
        s_add_u32 s{64+c}, s31, s33
        s_add_u32 s33, s33, 1
        s_cmp_eq_u32 s33, 7
        s_cselect_b32 s33, 0, s33
        s_mul_i32 s{72+c}, s{64+c}, {40*1024}
        s_mul_i32 s38, s34, 108
        s_add_u32 s38, s38, s{64+c}
        s_lshl_b32 s38, s38, 10
        s_cmp_ge_u32 s{64+c}, 108
        s_cselect_b32 s{80+c}, {BIG}, s38
        """)
    kb("s_waitcnt lgkmcnt(0)")
    srd(kb, 40, P_WS, OFF_H, SZ_H); srd(kb, 44, P_WS, OFF_WGU, SZ_WGU); srd(kb, 48, P_WS, OFF_CS, SZ_CS)
    srd(kb, 52, P_WS, OFF_ST, SZ_ST); srd(kb, 56, P_WS, OFF_G, SZ_G)
    SLOT = 24576; CSB = 5*SLOT
    slots = []
    if P1 > 0:
        for sg in range(5):
            slots.append(dict(steps=[(c, u, (c*8 + (u & 7))*1024) for u in range(8*sg, 8*sg+8) for c in range(P1)],
                              dma=[(c, 8*sg + 4*h, (c*8 + 4*h)*1024) for h in range(2) for c in range(P1)]))
    for c in range(P1, 7):
        for hf in range(2):
            slots.append(dict(steps=[(c, u, (u - 20*hf)*1024) for u in range(20*hf, 20*hf+20)],
                              dma=[(c, 20*hf + 4*i, 4*i*1024) for i in range(5)]))
    def dma(n):
        out = []
        for (c, u0, pos) in slots[n]["dma"]:
            out.append((f"s_add_u32 m0, s35, {(n%5)*SLOT + pos}\n s_add_u32 s39, s{72+c}, {u0*1024}\n"
                        f"buffer_load_dwordx4 v3, s[44:47], s39 offen lds", f"slot{n}"))
        return out
    def hload(u):
        t = ""
        if u % 4 == 0 and u > 0: t = "s_add_u32 s37, s37, 4096\n"
        return t + f"buffer_load_dwordx4 {A(4*u,4)}, v2, s[40:43], s37 offen offset:{(u&3)*1024}"
    for i in range(2): kb(f"buffer_load_dwordx4 {V(112+4*i,4)}, v5, s[52:55], s36 offen offset:{512*i}")
    hu = 0
    def hneed(n):
        return max(u for (c, u, pos) in slots[n]["steps"]) + 1
    for n in range(2):
        for t, tag in dma(n): kb(t, tag)
        while hu < (hneed(n) if n == 0 else OPT['h0_3']): kb(hload(hu)); hu += 1
    issued = 2
    csl = [(f"""
    s_cmp_eq_u32 s3, 0
    s_cselect_b32 s38, s64, s65
    s_cselect_b32 s63, s68, s69
    s_cmp_eq_u32 s3, 2""", None), (f"""
    s_cselect_b32 s38, s66, s38
    s_cselect_b32 s63, s70, s63
    s_cmp_eq_u32 s3, 3
    s_cselect_b32 s38, s67, s38""", None), (f"""
    s_cselect_b32 s63, s70, s63
    s_lshl_b32 s38, s38, 10
    s_lshl_b32 s63, s63, 10""", None),
    (f"s_add_u32 m0, s35, {CSB}\n buffer_load_dwordx4 v2, s[48:51], s38 offen lds", "slot2"),
    (f"s_add_u32 m0, s35, {CSB+4096}\n buffer_load_dwordx4 v2, s[48:51], s63 offen lds", "slot2")]
    for t, _ in csl[:3]: kb(t)
    csl = csl[3:]
    kb("""
    v_pk_add_f32 v[112:113], v[112:113], v[114:115]
    v_pk_add_f32 v[116:117], v[116:117], v[118:119]
    v_pk_add_f32 v[8:9], v[112:113], v[116:117]
    v_mov_b32 v10, v8
    v_mov_b32 v11, v9
    v_permlane32_swap_b32 v8, v10
    v_permlane32_swap_b32 v9, v11
    v_add_f32 v8, v8, v10
    v_add_f32 v9, v9, v11
    """)
    RSTD = 6
    ln_scalars(kb, 8, 9, 10, RSTD, 11)
    K1_, K2_, IR2 = 20, 21, 22
    kb(f"""
    v_xor_b32 v10, 0x80000000, v10
    v_lshrrev_b32 v17, 16, v10
    v_or_b32 v16, v10, v17
    v_mov_b32 v18, 0
    v_mov_b32 v19, 0
    v_mul_f32 v{K1_}, {hex(f2u(-2*LOG2E*0.7978845608028654))}, v{RSTD}
    v_mul_f32 v{K2_}, v{RSTD}, v{RSTD}
    v_mul_f32 v{K2_}, v{K2_}, v{K1_}
    v_mul_f32 v{K2_}, {hex(f2u(0.044715))}, v{K2_}
    v_mul_f32 v{IR2}, v11, v11
    """)
    XE = 16
    ACC0 = 32; NACC = 5; TMP = 112
    NBF = 8; WF = 160
    steps = []
    for n, sl in enumerate(slots):
        for (c, u, pos) in sl["steps"]:
            steps.append((c, u, n, (n % 5)*SLOT + pos))
            if u == 39: steps.append((c, 40, None, CSB + c*1024))
    def epi(c):
        a = ACC0 + 16*(c % NACC); o = TMP + 16*(c % 2); L = []
        if OPT['noepi']: return [f"buffer_store_dwordx4 {V(a,4)}, v2, s[56:59], s{80+c} offen{STM[OPT['st3']]}"]
        W = OPT['epw']
        pend = []
        for p0 in range(0, 8, W):
            E = [(a + (e >> 2)*8 + (e & 3), o + 4 + (e % (2*W)) % 8) for e in range(p0, p0 + W)]
            for g, t in E: L.append(f"v_mul_f32 v{t}, v{g}, v{g}")
            for g, t in E: L.append(f"v_fma_f32 v{t}, v{t}, v{K2_}, v{K1_}")
            for g, t in E: L.append(f"v_mul_f32 v{t}, v{t}, v{g}")
            for g, t in E: L.append(f"v_exp_f32 v{t}, v{t}")
            for g, t in E: L.append(f"v_mul_f32 v{g}, v{g}, v{g+4}")
            for g, t in E: L.append(f"v_fma_f32 v{t}, v{t}, v{IR2}, v{IR2}")
            for g, t in E: L.append(f"v_rcp_f32 v{t}, v{t}")
            L += pend if pend else ["v_nop"]
            for g, t in E: L.append(f"v_mul_f32 v{g}, v{g}, v{t}")
            pend = [f"v_cvt_pk_bf16_f32 v{o+(p0+e)//2}, v{E[e][0]}, v{E[e][0]+1}" for e in range(0, W, 2)]
        L += pend
        L.append(f"buffer_store_dwordx4 {V(o,4)}, v2, s[56:59], s{80+c} offen{STM[OPT['st3']]}")
        return L
    def weight(t): return sum(2 if ("exp" in l or "rcp" in l) else 1 for l in t.strip().split("\n"))
    ready = -1
    fill = []
    vmq = []; vm_next = 0
    def rd(s):
        nonlocal ready, hu, issued
        c, u, n, off = steps[s]
        if n is not None and n > ready:
            ready = n
            while any(tg == f"slot{n}" for _, _, tg in vmq):
                _, t, tg = vmq.pop(0); kb(t, tg)
            kb.wait_vm(f"slot{n}")
            kb("s_waitcnt lgkmcnt(0)\n s_barrier")
            if n in (0, 5, 9): stamp(kb, {0: 2, 5: 3, 9: 4}[n])
            new = []
            while hu < hneed(1): new.append((0, hload(hu), None)); hu += 1
            while issued <= n + LOOK and issued < len(slots):
                new += [(0, t, tag) for t, tag in dma(issued)]
                while hu < hneed(issued): new.append((0, hload(hu), None)); hu += 1
                if issued == 2: new += [(0, t, tag) for t, tag in csl]
                issued += 1
            vmq.extend(new)
        a, o = ("v2", off) if off < 65536 else ("v4", off - 65536)
        return f"ds_read_b128 {A(WF + 4*(s % NBF), 4)}, {a} offset:{o}"
    first = set()
    stamp(kb, 1)
    for s in range(NBF - 1): kb(rd(s))
    for s, (c, u, n, off) in enumerate(steps):
        R = rd(s + NBF - 1) if s + NBF - 1 < len(steps) else None
        d = V(ACC0 + 16*(c % NACC), 16)
        b = A(4*u, 4) if u < 40 else V(XE, 4)
        while u < 40 and any(b + "," in t for _, t, _ in vmq):
            _, t, tg = vmq.pop(0); kb(t, tg)
        if c not in first: assert not any(tg == f"epi{c-NACC}" for _, _, tg in fill), "acc reuse"
        kb(f"v_mfma_f32_32x32x16_bf16 {d}, {A(WF + 4*(s % NBF), 4)}, {b}, {d if c in first else '0'}")
        if R: kb(R)
        first.add(c)
        if u == 40: fill += [(s + 4, t, f"epi{c}") for t in epi(c)]
        k = 0; budget = per_gap + (s & 1)
        if vmq and s*16 >= vm_next:
            _, t, tag = vmq.pop(0); kb(t, tag); k += weight(t); vm_next = max(vm_next, s*16 - 16) + OPT['vp3']
        while fill and fill[0][0] <= s and k + weight(fill[0][1]) <= max(budget, weight(fill[0][1]) if k == 0 else 0):
            _, t, tag = fill.pop(0); kb(t, tag); k += weight(t)
        if s % 2 == 0 and s + NBF + 1 < len(steps): kb(f"s_waitcnt lgkmcnt({NBF-3})")
    stamp(kb, 5)
    for _, t, tag in fill: kb(t, tag)
    if OPT['pf3']:
        srd(kb, 60, P_WS, OFF_WD, SZ_WD)
        kb(f"s_lshl_b32 s38, s29, 2\n s_add_u32 s38, s38, s3\n s_mul_i32 s38, s38, 17280")
        pf = prefetch(kb, 60, 38, 24, 25, 3)
        kb(pf[0]); kb(pf[1]); kb(pf[2]); kb("s_mov_b32 exec_hi, 0\n s_mov_b32 exec_lo, 127"); kb(pf[3])
    finish(kb, 2)
    return (kb, 256, 256, CSB + 8192)

def k2():
    kb = KB("k2_kernel")
    prologue(kb, 256)
    kb(f"""
    s_and_b32 s28, s2, 7
    s_lshr_b32 s29, s2, 3
    s_lshl_b32 s30, s28, 3
    s_and_b32 s31, s29, 7
    s_add_u32 s30, s30, s31          ; R
    s_lshr_b32 s31, s29, 3           ; cb
    v_and_b32 v2, 31, v1             ; rho / m
    v_lshrrev_b32 v3, 5, v1          ; hi
    v_lshlrev_b32 v4, 4, v1          ; l*16
    v_mov_b32 v7, 0x100000
    v_cmp_gt_u32 vcc, 20, v2
    v_cndmask_b32 v5, v7, v2, vcc
    v_subrev_u32 v8, 4, v2
    v_cmp_gt_u32 vcc, 24, v2
    v_cndmask_b32 v6, v7, v8, vcc
    v_cmp_gt_u32 vcc, 20, v2
    v_cndmask_b32 v6, v6, v7, vcc
    v_cmp_gt_u32 vcc, 16, v2
    v_cndmask_b32 v6, v6, v2, vcc
    v_and_b32 v8, 27, v2
    v_cmp_eq_u32 vcc, 24, v8
    v_cndmask_b32 v5, v5, 20, vcc
    v_cndmask_b32 v6, v6, 20, vcc
    v_lshlrev_b32 v5, 4, v5
    v_lshlrev_b32 v6, 4, v6
    v_lshl_add_u32 v7, v3, 26, v5    ; kv tail even (hi -> out of range)
    v_lshl_add_u32 v8, v3, 26, v6    ; kv tail odd
    v_mul_u32_u24 v9, 672, v3
    v_add_u32 v5, v5, v9             ; kv main even
    v_add_u32 v6, v6, v9             ; kv main odd
    v_lshlrev_b32 v9, 3, v2
    v_add_u32 v9, 1024, v9
    v_lshl_add_u32 v9, v3, 26, v9
    s_mul_i32 s32, s3, {8*1680}      ; kv soffset
    s_lshl_b32 s33, s30, 5
    s_lshl_b32 s34, s3, 3
    s_add_u32 s33, s33, s34
    s_mul_i32 s33, s33, 1280
    s_lshl_b32 s34, s31, 2
    s_add_u32 s34, s34, s3
    s_mul_i32 s34, s34, {50*1024}
    s_waitcnt lgkmcnt(0)
    """)
    srd(kb, 40, P_WS, OFF_KV, SZ_KV); srd(kb, 44, P_WS, OFF_PQ, SZ_PQ); srd(kb, 48, P_WS, OFF_WO, SZ_WO)
    srd(kb, 52, P_X, 0, 2048*1280); srd(kb, 56, P_WS, OFF_H, SZ_H); srd(kb, 60, P_WS, OFF_ST, SZ_ST)
    KVR = 168
    PQA = 200
    def kvl(p):
        for hh in range(2):
            o = hh*1680; b = KVR + 24*(p & 1) + 12*hh
            kb(f"""
            buffer_load_dwordx4 {V(b,4)}, v{5+hh}, s[40:43], s32 offen offset:{o}
            buffer_load_dwordx4 {V(b+4,4)}, v{5+hh}, s[40:43], s32 offen offset:{o+336}
            buffer_load_dwordx4 {V(b+8,4)}, v{7+hh}, s[40:43], s32 offen offset:{o+1344}
            """)
        kb("s_add_u32 s32, s32, 3360")
    def pql(p):
        for hh in range(2):
            h = 2*p + hh
            kb(f"""
            buffer_load_dwordx4 {A(PQA+6*h,4)}, v4, s[44:47], s33 offen offset:{hh*1280}
            buffer_load_dwordx2 {A(PQA+6*h+4,2)}, v9, s[44:47], s33 offen offset:{hh*1280}
            """)
        kb("s_add_u32 s33, s33, 2560")
    def wo_load(i):
        t = "s_add_u32 s34, s34, 4096\n" if (i % 4 == 0 and i > 0) else ""
        return t + f"buffer_load_dwordx4 {A(4*i,4)}, v4, s[48:51], s34 offen offset:{(i&3)*1024}"
    wl = [wo_load(i) for i in range(50)]
    def wol(n):
        for _ in range(n): kb(wl.pop(0))
    kvl(0); pql(0); kvl(1); pql(1); wol(10)
    kb(f"""
    v_lshrrev_b32 v10, 2, v1
    s_and_b32 s37, s3, 1
    s_lshl_b32 s37, s37, 4
    v_add_u32 v14, s37, v10          ; row
    v_and_b32 v15, 3, v1             ; q0
    v_mul_u32_u24 v10, 1280, v14
    v_lshl_add_u32 v10, v15, 3, v10  ; x voffset
    s_lshr_b32 s39, s3, 1            ; w>>1
    s_mul_i32 s35, s30, {32*1280}
    s_mul_i32 s36, s31, 320
    s_add_u32 s35, s35, s36
    s_mul_i32 s36, s39, 160
    s_add_u32 s35, s35, s36          ; x soffset
    s_mul_i32 s36, s30, 40
    s_mul_i32 s37, s31, 10
    s_add_u32 s36, s36, s37
    s_mul_i32 s37, s39, 5
    s_add_u32 s36, s36, s37
    s_lshl_b32 s36, s36, 10          ; h soffset
    s_mul_i32 s37, s3, 20480
    v_add_u32 v11, s37, v4
    v_lshlrev_b32 v13, 4, v14
    v_and_b32 v2, 1, v15
    v_lshl_add_u32 v2, v2, 9, v13    ; row*16 + (q0&1)*512
    v_lshrrev_b32 v3, 1, v15
    v_lshl_add_u32 v12, v3, 10, v2
    s_mul_i32 s37, s39, 10240
    v_add_u32 v12, s37, v12
    v_lshl_add_u32 v2, v3, 3, v2     ; h voffset
    s_lshl_b32 s38, s30, 11
    s_lshl_b32 s37, s31, 9
    s_add_u32 s38, s38, s37
    s_lshl_b32 s37, s39, 3
    s_add_u32 s38, s38, s37
    """)
    O = 16
    D0 = 56
    ACC = 88; XR = 216; XU = 226
    def cvt(p):
        for i in range(6):
            for hh in range(2):
                b = KVR + 24*(p & 1) + 12*hh
                kb(f"v_cvt_pk_bf16_f32 v{b+i}, v{b+2*i}, v{b+2*i+1}")
    def mm(p, tail):
        for hh in range(2):
            d = V(D0 + 16*hh, 16); k = KVR + 24*(p & 1) + 12*hh; q = PQA + 6*(2*p + hh)
            if not tail: kb(f"v_mfma_f32_32x32x16_bf16 {d}, {V(k,4)}, {A(q,4)}, 0")
            else: kb(f"v_mfma_f32_32x32x8_bf16 {d}, {V(k+4,2)}, {A(q+4,2)}, {d}")
    def post(p):
        e = D0; o = e + 16; L = []
        L += [f"v_add_f32 v{e+12}, {hex(f2u(1e-6))}, v{e+12}", f"v_add_f32 v{o+12}, {hex(f2u(1e-6))}, v{o+12}",
              f"v_rcp_f32 v{e+12}, v{e+12}", f"v_rcp_f32 v{o+12}, v{o+12}"]
        for i in range(0, 12, 2): L.append(f"v_pk_mul_f32 {V(e+i,2)}, {V(e+i,2)}, {V(e+12,2)} op_sel_hi:[1,0]")
        for i in range(0, 8, 2): L.append(f"v_pk_mul_f32 {V(o+i,2)}, {V(o+i,2)}, {V(o+12,2)} op_sel_hi:[1,0]")
        for i in range(8, 12, 2): L.append(f"v_pk_fma_f32 {V(e+i,2)}, {V(o+i,2)}, {V(o+12,2)}, {V(e+i,2)} op_sel_hi:[1,0,1]")
        dst = O + 10*p
        for j, src in [(0, e), (1, e+4), (3, o), (4, o+4), (2, e+8)]:
            L.append(f"v_cvt_pk_bf16_f32 v{dst+2*j}, v{src}, v{src+1}")
            L.append(f"v_cvt_pk_bf16_f32 v{dst+2*j+1}, v{src+2}, v{src+3}")
        for l in L: kb(l)
    def gemm(kap):
        for nt in range(5):
            d = V(ACC + 16*nt, 16)
            kb(f"v_mfma_f32_32x32x16_bf16 {d}, {A(4*(kap*5+nt),4)}, {V(O+4*kap,4)}, {d if kap else '0'}")
    stamp(kb, 1)
    cvt(0); mm(0, False); pql(2); wol(5); mm(0, True); kvl(2); cvt(1); post(0)
    stamp(kb, 2)
    mm(1, False); pql(3); gemm(0); mm(1, True); kvl(3); wol(5); gemm(1); post(1); wol(10)
    cvt(2); mm(2, False); gemm(2); mm(2, True); wol(10); gemm(3); post(2)
    for i in range(5): kb(f"buffer_load_dwordx2 {V(XR+2*i,2)}, v10, s[52:55], s35 offen offset:{i*32}")
    wol(10); gemm(4)
    cvt(3); mm(3, False); gemm(5); mm(3, True); gemm(6); post(3)
    stamp(kb, 3)
    for i in range(5):
        x = XR + 2*i; u = XU + 4*i
        kb(f"""
        v_lshlrev_b32 v{u}, 16, v{x}
        v_and_b32 v{u+1}, 0xffff0000, v{x}
        v_lshlrev_b32 v{u+2}, 16, v{x+1}
        v_and_b32 v{u+3}, 0xffff0000, v{x+1}
        """)
    for nt in range(5):
        d = V(ACC + 16*nt, 16)
        for kap in (7, 8, 9):
            kb(f"v_mfma_f32_32x32x16_bf16 {d}, {A(4*(kap*5+nt),4)}, {V(O+4*kap,4)}, {d}")
        if nt >= 1:
            for q in range(4): kb(f"ds_write_b128 v11, {V(ACC+16*(nt-1)+4*q,4)} offset:{((nt-1)*4+q)*1024}")
    stamp(kb, 4)
    kb("v_add_u32 v14, 40960, v12\n v_mov_b32 v100, 0\n v_mov_b32 v101, 0\n v_mov_b32 v102, 0\n v_mov_b32 v103, 0")
    for q in range(4): kb(f"ds_write_b128 v11, {V(ACC+64+4*q,4)} offset:{(16+q)*1024}")
    kb("s_waitcnt lgkmcnt(0)\n s_barrier")
    T = 16
    for i in range(5):
        for w in range(4):
            a, o = ("v12", w*20480) if w < 2 else ("v14", (w-2)*20480)
            kb(f"ds_read_b128 {V(T+(i*4+w)*4,4)}, {a} offset:{o + i*2048}")
    for i in range(5):
        a = T + i*16; u = XU + 4*i
        kb(f"""
        v_pk_add_f32 {V(a,2)}, {V(a,2)}, {V(u,2)}
        v_pk_add_f32 {V(a+2,2)}, {V(a+2,2)}, {V(u+2,2)}
        v_pk_add_f32 {V(a+4,2)}, {V(a+4,2)}, {V(a+8,2)}
        v_pk_add_f32 {V(a+6,2)}, {V(a+6,2)}, {V(a+10,2)}
        v_pk_add_f32 {V(a,2)}, {V(a,2)}, {V(a+12,2)}
        v_pk_add_f32 {V(a+2,2)}, {V(a+2,2)}, {V(a+14,2)}
        v_pk_add_f32 {V(a,2)}, {V(a,2)}, {V(a+4,2)}
        v_pk_add_f32 {V(a+2,2)}, {V(a+2,2)}, {V(a+6,2)}
        v_cvt_pk_bf16_f32 v{a+4}, v{a}, v{a+1}
        v_cvt_pk_bf16_f32 v{a+5}, v{a+2}, v{a+3}
        v_pk_add_f32 v[100:101], v[100:101], {V(a,2)}
        v_pk_fma_f32 v[102:103], {V(a,2)}, {V(a,2)}, v[102:103]
        buffer_store_dwordx2 {V(a+4,2)}, v2, s[56:59], s36 offen offset:{(i&3)*1024}{STM[OPT['st2']]}
        v_pk_add_f32 v[100:101], v[100:101], {V(a+2,2)}
        v_pk_fma_f32 v[102:103], {V(a+2,2)}, {V(a+2,2)}, v[102:103]
        """)
        if i == 3: kb("s_add_u32 s36, s36, 4096")
    kb("""
    v_add_f32 v100, v100, v101
    v_add_f32 v101, v102, v103
    v_add_f32_dpp v100, v100, v100 quad_perm:[1,0,3,2] row_mask:0xf bank_mask:0xf
    v_add_f32_dpp v101, v101, v101 quad_perm:[1,0,3,2] row_mask:0xf bank_mask:0xf
    v_add_f32_dpp v100, v100, v100 quad_perm:[2,3,0,1] row_mask:0xf bank_mask:0xf
    v_add_f32_dpp v101, v101, v101 quad_perm:[2,3,0,1] row_mask:0xf bank_mask:0xf
    s_mov_b32 exec_lo, 0x11111111
    s_mov_b32 exec_hi, 0x11111111
    buffer_store_dwordx2 v[100:101], v13, s[60:63], s38 offen
    s_mov_b64 exec, -1
    """)
    if OPT['pf2']:
        srd(kb, 64, P_WS, OFF_WGU, SZ_WGU)
        kb(f"""
        s_lshr_b32 s68, s29, 1
        s_mul_i32 s68, s68, {7*40*1024}
        s_and_b32 s69, s29, 1
        s_lshl_b32 s69, s69, 2
        s_add_u32 s69, s69, s3
        s_mul_i32 s69, s69, 15360
        s_add_u32 s68, s68, s69
        """)
        for t in prefetch(kb, 64, 68, 120, 121, 2): kb(t)
    finish(kb, 1)
    return (kb, 256, 256, 81920)

EPS6 = hex(f2u(1e-6))
class Rec:
    def __init__(self): self.L = []
    def __call__(self, t, tag=None): self.L.append(t)

def k1_stats(kb, XX, SM, out_mean, out_rstd, tmp, vbp):
    for mt in range(2):
        x = XX + 4*mt
        kb(f"""
        v_cndmask_b32 v{x}, v{x}, v{x+1}, s[64:65]
        v_cndmask_b32 v{x}, v{x}, v{x+2}, s[66:67]
        v_cndmask_b32 v{x}, v{x}, v{x+3}, s[68:69]
        ds_bpermute_b32 v{x+1}, v{vbp}, v{x}
        """)
    recs = []
    for mt in range(2):
        r = Rec()
        ln_scalars(r, SM + 4*mt, XX + 4*mt + 1, out_mean + mt, out_rstd + mt, tmp + mt)
        r(f"v_mul_f32 v{out_mean+mt}, v{out_mean+mt}, v{out_rstd+mt}")
        recs.append([l.strip() for t in r.L for l in t.split("\n") if l.strip()])
    for a_, b_ in zip(*recs): kb(a_); kb(b_)

K1_NS = {"kv": 4, "q": 4}
def k1_main(kb, role):
    kv = role == "kv"
    NS = K1_NS[role]
    WSL = 20480 if kv else 16384
    SLOT = WSL + 16384
    NT = 10 if kv else 8
    ACC = 64
    XX = ACC + NT*8; SM = XX + 8; CSA = SM + 8
    ONES = 60
    NBF = 8; WF = 32
    def issue(P):
        L = []
        L.append((f"s_lshl_b32 s39, s38, 7\n s_add_u32 s39, s39, s36\n s_mul_i32 s40, s38, {64*3840}\n s_add_u32 s40, s40, s37", None))
        L.append((f"s_add_u32 s38, s38, 1\n s_cmp_eq_u32 s38, 10\n s_cselect_b32 s38, 0, s38", None))
        nd = 5 if kv else 4
        for j in range(4):
            L.append((f"s_add_u32 m0, s43, {(P % NS)*SLOT + j*1024}\n s_add_u32 s41, s39, {j*8*1280}\n buffer_load_dwordx4 v18, s[44:47], s41 offen lds", f"slot{P}"))
        for j in range(nd):
            L.append((f"s_add_u32 m0, s35, {(P % NS)*SLOT + j*1024}\n buffer_load_dwordx4 v{20+j}, s[48:51], s40 offen lds", f"slot{P}"))
        return L
    SETSPAN = SLOT * (65536 // SLOT)
    steps = []
    for P in range(10):
        sb = (P % NS)*SLOT; st = sb // SETSPAN; so0 = sb - st*SETSPAN
        for ks in range(2):
            first = (P == 0 and ks == 0)
            xa = [A(16*(P & 1) + 8*ks + 4*mt, 4) for mt in range(2)]
            def C(r, f=first): return "0" if f else V(r, 4)
            extra = []
            for mt in range(2):
                extra.append(f"v_mfma_f32_16x16x32_bf16 {V(XX+4*mt,4)}, {xa[mt]}, {xa[mt]}, {C(XX+4*mt)}")
                extra.append(f"v_mfma_f32_16x16x32_bf16 {V(SM+4*mt,4)}, {V(ONES,4)}, {xa[mt]}, {C(SM+4*mt)}")
            for t in range(NT):
                if kv:
                    so = so0 + ks*10240
                    if t < 8: rs = (("N", st), so + (t >> 2)*5120 + 40*(t & 3), 1280)
                    else: rs = (("T", st), so + (t - 8)*5120, 1280)
                    mm = [f"v_mfma_f32_16x16x32_bf16 {V(ACC+(t*2+mt)*4,4)}, {xa[mt]}, FR, {C(ACC+(t*2+mt)*4)}" for mt in range(2)]
                else:
                    rs = ((t, st), so0 + ks*8192, 2048)
                    mm = [f"v_mfma_f32_16x16x32_bf16 {V(ACC+(t*2+mt)*4,4)}, FR, {xa[mt]}, {C(ACC+(t*2+mt)*4)}" for mt in range(2)]
                steps.append((P, rs, mm))
                if t in (2, 5):
                    i = 0 if t == 2 else 1
                    if kv:
                        steps.append((P, (("C", st), so + i*5120, 1280),
                                      [f"v_mfma_f32_16x16x32_bf16 {V(CSA+4*i,4)}, {V(ONES,4)}, FR, {C(CSA+4*i)}", extra.pop(0)]))
                    else:
                        steps.append((P, ((8 + i, st), so0 + ks*8192, 2048),
                                      [f"v_mfma_f32_16x16x32_bf16 {V(CSA+4*i,4)}, FR, {V(ONES,4)}, {C(CSA+4*i)}", extra.pop(0)]))
                if kv and t == 8 and ks == 0:
                    steps.append((P, (("C4", st), so0, 1280),
                                  [f"v_mfma_f32_16x16x32_bf16 {V(CSA+8,4)}, {V(ONES,4)}, FR, {C(CSA+8)}", extra.pop(0)]))
                if t in (4, 7) and extra and not (kv and ks == 0 and t == 7): steps[-1][2].append(extra.pop(0))
            assert not extra
    last = [st for st in steps if st[0] == 9]; steps = [st for st in steps if st[0] != 9]
    side = []; main = []
    for (P, rs, mm) in last:
        if "ONES" in mm[0].replace(V(ONES,4), "ONES"): side.append((P, rs, mm))
        else:
            if len(mm) == 3: side[-1][2].append(mm.pop())
            main.append((P, rs, mm))
    steps += side + main
    nside = len(steps) - len(main)
    nsets = (NS*SLOT + SETSPAN - 1) // SETSPAN
    return dict(steps=steps, issue=issue, NS=NS, NBF=NBF, WF=WF, ACC=ACC, XX=XX, SM=SM, CSA=CSA, ONES=ONES,
                SLOT=SLOT, WSL=WSL, SETSPAN=SETSPAN, nsets=nsets, nside=nside)

def k1_loader(kb, M):
    NS, issue = M["NS"], M["issue"]
    nxt = 2
    if OPT['ldiag']: stamp(kb, 1)
    for P in range(2):
        for t, tag in issue(P): kb(t, tag)
        if OPT['ldiag']: stamp(kb, 2 + P)
    for P in range(10):
        kb.wait_vm(f"slot{P}")
        if OPT['ldiag'] and P < 2: stamp(kb, 4 + P)
        kb("s_barrier")
        while nxt <= P + NS - 1 and nxt < 10 and nxt <= 2*P + 2:
            for t, tag in issue(nxt): kb(t, tag)
            nxt += 1
    kb(f"s_branch {kb.name}_{'fin2' if OPT['ldiag'] else 'end'}")

def k1_loop(kb, M, areg, tail):
    steps, NS, NBF, WF = M["steps"], M["NS"], M["NBF"], M["WF"]
    SLOT, SETSPAN = M["SLOT"], M["SETSPAN"]
    nxt = areg["_free"]; amap = {}
    for k, r in areg.items():
        if k == "_free": continue
        amap[(k, 0)] = r
        for st in range(1, M["nsets"]):
            kb(f"v_add_u32 v{nxt}, {st*SETSPAN}, v{r}"); amap[(k, st)] = nxt; nxt += 1
    M["_vnext"] = nxt
    stamp(kb, 1)
    ready = -1
    def sync(P):
        nonlocal ready
        ready = P
        kb("s_waitcnt lgkmcnt(0)\n s_barrier")
        if P == 0: stamp(kb, 2)
        sb = (P % NS)*SLOT; st = sb // SETSPAN; so0 = sb - st*SETSPAN
        for ks in range(2):
            for mt in range(2):
                kb(f"ds_read_b128 {A(16*(P & 1) + 8*ks + 4*mt, 4)}, v{amap[(f'X{ks}', st)]} offset:{so0 + mt*2048}")
    def rds(s):
        P, (key, o, hs), _ = steps[s]
        if P > ready: sync(P)
        b = WF + 4*(s % NBF); a = amap[key]
        return [f"ds_read_b64_tr_b16 {A(b,2)}, v{a} offset:{o}", f"ds_read_b64_tr_b16 {A(b+2,2)}, v{a} offset:{o+hs}"]
    for s in range(NBF - 1):
        for t in rds(s): kb(t)
    tail = [l.strip() for t in tail for l in t.split("\n") if l.strip()]
    for s, (P, _, mm) in enumerate(steps):
        R = rds(s + NBF - 1) if s + NBF - 1 < len(steps) else []
        for i, m in enumerate(mm):
            kb(m.replace("FR", A(WF + 4*(s % NBF), 4)))
            k = 2
            if R: kb(R.pop(0)); k = 1
            if s >= M["nside"] + 2:
                for _ in range(k):
                    if tail: kb(tail.pop(0))
    for t in tail: kb(t)

K1ROT = {0: "s_mov_b32 s38, 0",
  10: """s_mul_i32 s38, s30, 5
    s_mul_i32 s39, s31, 6
    s_add_u32 s38, s38, s39
    s_lshr_b32 s38, s38, 3
    s_cmp_ge_u32 s38, 10
    s_cselect_b32 s39, 10, 0
    s_sub_u32 s38, s38, s39""",
  2: """s_add_u32 s38, s30, s31
    s_and_b32 s38, s38, 1
    s_mul_i32 s38, s38, 5""",
  4: """s_add_u32 s38, s30, s31
    s_and_b32 s38, s38, 3
    s_mul_i32 s38, s38, 5
    s_lshr_b32 s38, s38, 1"""}
K1MAP = ["""
    s_and_b32 s30, s29, 1
    s_lshl_b32 s31, s28, 1
    s_add_u32 s30, s30, s31          ; rb
    s_lshr_b32 s31, s29, 1           ; cbi: 0..7 kv head quads, 8..12 q column blocks
""", """    ; XCD x: row-block group x>>1 (4 row blocks), column half x&1
    s_and_b32 s30, s29, 3
    s_lshr_b32 s31, s28, 1
    s_lshl_b32 s31, s31, 2
    s_add_u32 s30, s30, s31          ; rb
    s_and_b32 s32, s28, 1            ; half
    s_lshr_b32 s31, s29, 2           ; 0..3 kv, 4,5 q, 6 q(shared block)
    s_lshl_b32 s33, s32, 2
    s_add_u32 s33, s33, s31          ; kv: hq = 4*half + (i>>2)
    s_mul_i32 s34, s32, 3
    s_add_u32 s34, s34, s31
    s_add_u32 s34, s34, 4
    s_cmp_lt_u32 s31, 4
    s_cselect_b32 s33, s33, s34
    s_lshl_b32 s34, s32, 1
    s_add_u32 s34, s34, s30
    s_cmp_eq_u32 s31, 6
    s_cselect_b32 s30, s34, s30
    s_cselect_b32 s31, 10, s33       ; cbi: 0..7 kv head quads, 8..12 q column blocks
"""]
def k1():
    kb = KB("k1_kernel")
    n = kb.name
    prologue(kb, 256)
    kb(f"""
    s_and_b32 s28, s2, 7
    s_lshr_b32 s29, s2, 3
    s_lshr_b32 s4, s3, 2
    s_and_b32 s3, s3, 3
    s_cmp_ge_u32 s29, 26
    s_cbranch_scc1 {n}_rl
    {K1MAP[OPT['map1']]}
    {K1ROT[OPT['rot1']]}
    v_and_b32 v2, 15, v1             ; n / m
    v_lshrrev_b32 v3, 4, v1          ; c / g
    v_lshrrev_b32 v8, 3, v1
    v_and_b32 v9, 7, v1
    v_xor_b32 v9, v9, v8
    v_mul_u32_u24 v18, 1280, v8
    v_lshl_add_u32 v18, v9, 4, v18
    s_lshl_b32 s36, s30, 2
    s_add_u32 s36, s36, s3           ; R = 4rb + w
    s_mul_i32 s34, s36, {32*1280}
    s_mov_b32 s36, s34
    s_lshl_b32 s43, s3, 12
    s_cmp_ge_u32 s31, 8
    s_cbranch_scc1 {n}_q
    """)
    def common2(WSL):
        if OPT['cpf'] and WSL == 20480:
            kb(f"""
            s_cmp_ge_u32 s29, 3
            s_cbranch_scc1 {n}_nocpf
            s_getpc_b64 s[44:45]
            {n}_pc:
            s_sub_u32 s44, s44, {n}_pc-{n}
            s_subb_u32 s45, s45, 0
            s_mov_b32 s46, text_end-{n}
            s_mov_b32 s47, 0x20000
            s_lshl_b32 s41, s29, 2
            s_add_u32 s41, s41, s3
            s_lshl_b32 s41, s41, 13
            v_lshlrev_b32 v4, 7, v1
            buffer_load_dword v57, v4, s[44:47], s41 offen
            {n}_nocpf:
            """)
            kb.fence()
        kb(f"""
        v_bfe_u32 v4, v1, 2, 2           ; r
        v_and_b32 v5, 3, v1              ; c'
        v_lshrrev_b32 v6, 1, v3
        v_lshlrev_b32 v6, 4, v6
        v_and_b32 v7, 1, v3
        v_lshl_add_u32 v6, v7, 2, v6
        v_add_u32 v6, v6, v4             ; p0 = 16(g>>1) + 4(g&1) + r
        v_mov_b32 v60, 0x3f803f80
        v_mov_b32 v61, 0x3f803f80
        v_mov_b32 v62, 0x3f803f80
        v_mov_b32 v63, 0x3f803f80
        v_cmp_eq_u32 s[64:65], 1, v5
        v_cmp_eq_u32 s[66:67], 2, v5
        v_cmp_eq_u32 s[68:69], 3, v5
        v_lshl_add_u32 v17, v4, 4, v2
        v_lshlrev_b32 v17, 2, v17
        v_and_b32 v8, 7, v2
        v_xor_b32 v8, v8, v3
        v_lshlrev_b32 v9, 7, v2
        v_add_u32 v9, s43, v9
        v_lshl_add_u32 v25, v8, 4, v9    ; X0
        v_xor_b32 v8, 4, v8
        v_lshl_add_u32 v19, v8, 4, v9    ; X1
        """)
    kb(f"""
    s_lshr_b32 s32, s3, 1
    s_and_b32 s33, s3, 1
    s_add_u32 s43, s43, 20480
    s_cmp_eq_u32 s4, 0
    s_cbranch_scc1 {n}_kvc
    """)
    for j in range(5):
        kb(f"""
        v_add_u32 v8, {64*j}, v1
        v_mul_u32_u24 v9, 6554, v8
        v_lshrrev_b32 v9, 16, v9         ; p = q/10
        v_mul_u32_u24 v10, 10, v9
        v_sub_u32 v8, v8, v10            ; chunk
        v_and_b32 v10, 19, v9
        v_bfe_u32 v11, v9, 2, 1
        v_lshl_add_u32 v10, v11, 3, v10
        v_bfe_u32 v11, v9, 3, 1
        v_lshl_add_u32 v10, v11, 2, v10
        v_mul_u32_u24 v10, 3840, v10
        v_lshl_add_u32 v{20+j}, v8, 4, v10
        """)
    kb(f"""
    s_mul_i32 s37, s32, {32*3840}
    s_mul_i32 s41, s33, 1280
    s_add_u32 s37, s37, s41
    s_mul_i32 s41, s31, 160
    s_add_u32 s37, s37, s41
    s_add_u32 s37, s37, 1280
    s_mul_i32 s35, s3, 5120          ; (w>>1)*10240 + (w&1)*5120
    s_waitcnt lgkmcnt(0)
    """)
    srd(kb, 44, P_X, 0, 2048*1280); srd(kb, 48, P_WQKV, 0, 640*3840)
    M = k1_main(kb, "kv")
    k1_loader(kb, M)
    kb(f"{n}_kvc:"); kb.fence()
    CSX = M["NS"]*M["SLOT"]
    common2(20480)
    kb(f"""
    v_mul_u32_u24 v6, 160, v6
    v_lshl_add_u32 v26, v5, 3, v6    ; aN
    v_mul_u32_u24 v7, 40, v5
    v_add3_u32 v27, v6, v7, 32       ; aT
    s_mul_i32 s41, s3, 40
    v_add_u32 v28, s41, v26          ; aC
    s_mul_i32 s41, s33, 5120
    s_mul_i32 s42, s32, 10240
    s_add_u32 s41, s41, s42
    v_add_u32 v29, s41, v27          ; aC4
    """)
    ACC, XX, SM, CSA, ONES = M["ACC"], M["XX"], M["SM"], M["CSA"], M["ONES"]
    kb(f"""
    v_lshlrev_b32 v8, 2, v2
    s_lshl_b32 s41, s3, 6
    s_add_u32 s41, s41, {CSX}
    v_add_u32 v9, s41, v8
    s_lshl_b32 s41, s33, 7
    s_lshl_b32 s42, s32, 6
    s_add_u32 s41, s41, s42
    s_add_u32 s41, s41, {CSX+512}
    v_add_u32 v11, s41, v8
    v_mul_u32_u24 v10, 80, v3        ; (16c + 4c)*4
    v_mov_b32 v16, 0
    s_waitcnt lgkmcnt(0)
    """)
    srd(kb, 52, P_DBG, 0, 256)
    tl = Rec()
    tl(f"""
    buffer_load_dword v59, v16, s[52:55], 0 offen sc1
    ds_write_b32 v9, v{CSA}
    ds_write_b32 v9, v{CSA+4} offset:256
    ds_write_b32 v11, v{CSA+8}
    """)
    k1_stats(tl, XX, SM, 12, 14, 20, 17)
    RS = 172; MR = 48
    for mt in range(2):
        for r in range(4):
            tl(f"ds_bpermute_b32 v{RS+4*mt+r}, v10, v{14+mt} offset:{4*r}")
            tl(f"ds_bpermute_b32 v{MR+4*mt+r}, v10, v{12+mt} offset:{4*r}")
    k1_loop(kb, M, {"N": 26, "T": 27, "C": 28, "C4": 29, "X0": 25, "X1": 19, "_free": 30}, tl.L)
    assert M["_vnext"] <= 48
    stamp(kb, 3)
    kb(f"s_waitcnt lgkmcnt(0)\n s_barrier\n v_add_u32 v9, {CSX}, v8")
    CS = 26
    for t in range(8): kb(f"ds_read_b32 v{CS+2*t}, v9 offset:{64*t}")
    for i in range(2):
        kb(f"ds_read_b32 v{CS+16+2*i}, v9 offset:{512+128*i}\n ds_read_b32 v{CS+17+2*i}, v9 offset:{512+128*i+64}")
    for i in range(2): kb(f"v_add_f32 v{CS+16+2*i}, v{CS+16+2*i}, v{CS+17+2*i}")
    kb(f"""
    v_mov_b32 v56, {EPS6}
    v_mov_b32 v58, {hex(f2u(LOG2E))}
    v_lshlrev_b32 v11, 4, v1         ; l*16
    s_mul_i32 s41, s3, 10240
    v_add_u32 v12, s41, v11
    s_lshl_b32 s41, s3, 10
    v_add_u32 v13, s41, v11
    """)
    fr = 188
    for t in range(10):
        isk = t < 4 or t == 8
        LL = []
        for mt in range(2):
            a = ACC + (t*2+mt)*4; T0 = 180 + 4*mt; L = []
            for p in range(2):
                tt = T0 + 2*p
                if isk: L.append(f"v_pk_fma_f32 {V(tt,2)}, {V(MR+4*mt+2*p,2)}, {V(CS+2*t,2)}, {V(56,2)} op_sel_hi:[1,0,0] neg_lo:[1,0,0] neg_hi:[1,0,0]")
                else: L.append(f"v_pk_mul_f32 {V(tt,2)}, {V(MR+4*mt+2*p,2)}, {V(CS+2*t,2)} op_sel_hi:[1,0] neg_lo:[1,0] neg_hi:[1,0]")
            for p in range(2):
                L.append(f"v_pk_fma_f32 {V(a+2*p,2)}, {V(a+2*p,2)}, {V(RS+4*mt+2*p,2)}, {V(T0+2*p,2)}")
            if isk:
                for p in range(2): L.append(f"v_pk_mul_f32 {V(T0+2*p,2)}, {V(a+2*p,2)}, {V(58,2)} op_sel_hi:[1,0]")
                for r in range(4): L.append(f"v_exp_f32 v{T0+r}, v{T0+r} clamp")
                for r in range(4): L.append(f"v_max_f32 v{a+r}, v56, v{a+r}")
                for p in range(2): L.append(f"v_pk_add_f32 {V(a+2*p,2)}, {V(a+2*p,2)}, {V(T0+2*p,2)}")
            for p in range(2): L.append(f"v_cvt_pk_bf16_f32 v{fr+2*mt+p}, v{a+2*p}, v{a+2*p+1}")
            LL.append(L)
        for x, y in zip(*LL): kb(x); kb(y)
        kb(f"ds_write_b128 v12, {V(fr,4)} offset:{t*1024}")
    stamp(kb, 4)
    kb("s_waitcnt lgkmcnt(0)\n s_barrier")
    for w in range(4):
        b = 16*w
        kb(f"""
        ds_read_b128 {A(b,4)}, v13 offset:{w*10240}
        ds_read_b128 {A(b+4,4)}, v13 offset:{w*10240+4096}
        ds_read_b128 {A(b+8,4)}, v11 offset:{w*10240+8192}
        ds_read_b128 {A(b+12,4)}, v11 offset:{w*10240+9216}
        """)
    kb(f"""
    v_mul_u32_u24 v9, 336, v3
    s_lshl_b32 s41, s3, 11
    s_add_u32 s41, s41, 40960
    v_add_u32 v9, s41, v9            ; stage + c*336
    v_lshl_add_u32 v10, v2, 4, v9    ; A: + e*16
    v_lshl_add_u32 v14, v5, 4, v9    ; C: + (n&3)*16 (+256)
    v_lshlrev_b32 v15, 4, v2
    v_add_u32 v15, s41, v15          ; B: + e*16 (+1344)
    v_lshlrev_b32 v20, 4, v5
    v_add_u32 v20, s41, v20
    v_lshlrev_b32 v21, 2, v1
    v_add_u32 v22, s41, v21
    s_lshl_b32 s41, s3, 4
    s_mov_b64 s[70:71], 0xffff
    s_lshl_b64 s[70:71], s[70:71], s41
    s_lshl_b32 s41, s3, 2
    s_mov_b32 s72, 0x000f000f
    s_lshl_b32 s72, s72, s41
    s_mov_b32 s73, s72
    s_mov_b32 s74, 0x00010001
    s_mov_b32 s75, 0x00010001               ; column 0
    """)
    for w in range(4):
        b = 16*w
        for i, (x, y) in enumerate([(A(b,4), A(b+4,4)), (A(b+8,4), A(b+4,4)), (A(b,4), A(b+12,4)), (A(b+8,4), A(b+12,4)),
                                    (A(b,4), V(ONES,4)), (A(b+8,4), V(ONES,4))]):
            d = V(ACC + 4*i, 4)
            kb(f"v_mfma_f32_16x16x32_bf16 {d}, {x}, {y}, {d if w else '0'}")
    kb(f"""
    s_lshl_b32 s41, s31, 2
    s_add_u32 s41, s41, s3
    s_mul_i32 s41, s41, 1680
    s_add_u32 s41, s41, {OFF_KV}
    s_add_u32 s56, s{P_WS}, s41
    s_addc_u32 s57, s{P_WS+1}, 0
    s_mov_b32 s58, 1680
    s_mov_b32 s59, 0x20000
    ds_write_b128 v10, {V(ACC,4)}
    s_mov_b64 exec, s[70:71]
    ds_write_b128 v15, {V(ACC+4,4)} offset:1344
    s_mov_b64 exec, s[72:73]
    ds_write_b128 v14, {V(ACC+8,4)} offset:256
    s_and_b64 exec, s[70:71], s[72:73]
    ds_write_b128 v20, {V(ACC+12,4)} offset:{1344+256}
    s_mov_b64 exec, s[74:75]
    ds_write_b128 v9, {V(ACC+16,4)} offset:320
    s_and_b64 exec, s[70:71], s[74:75]
    ds_write_b128 v20, {V(ACC+20,4)} offset:{1344+320}
    s_mov_b64 exec, -1
    """)
    for i in range(7): kb(f"ds_read_b32 v{24+i}, v22 offset:{256*i}")
    kb(f"""
    s_mov_b32 s41, 0
    s_waitcnt vmcnt(0)
    {n}_poll:
    v_readfirstlane_b32 s42, v59
    s_cmp_lg_u32 s42, 0
    s_cbranch_scc1 {n}_go
    s_sleep 4
    buffer_load_dword v59, v16, s[52:55], 0 offen sc1
    s_add_u32 s41, s41, 1
    s_cmp_lt_u32 s41, 0x100000
    s_waitcnt vmcnt(0)
    s_cbranch_scc1 {n}_poll
    {n}_go:
    """)
    stamp(kb, 5)
    for i in range(7):
        kb(f"buffer_atomic_add_f32 v{24+i}, v21, s[56:59], 0 offen offset:{256*i}")
    kb(f"s_branch {n}_fin")
    kb(f"{n}_q:")
    kb.fence()
    kb(f"""
    s_sub_u32 s31, s31, 8            ; qc
    s_add_u32 s43, s43, 16384
    s_cmp_eq_u32 s4, 0
    s_cbranch_scc1 {n}_qc
    """)
    for j in range(4):
        kb(f"""
        v_add_u32 v8, {4*(j&1)}, v3
        v_lshlrev_b32 v8, 1, v8
        v_xor_b32 v8, v8, v2             ; chunk
        v_add_u32 v9, {8*(j&1) + 4*(j>>1)}, v3
        v_mul_u32_u24 v9, 3840, v9
        v_lshl_add_u32 v{20+j}, v8, 4, v9
        """)
    kb(f"""
    s_mul_i32 s37, s3, {16*3840}
    s_lshl_b32 s41, s31, 8
    s_add_u32 s37, s37, s41
    s_lshl_b32 s35, s3, 12
    s_waitcnt lgkmcnt(0)
    """)
    srd(kb, 44, P_X, 0, 2048*1280); srd(kb, 48, P_WQKV, 0, 640*3840)
    M = k1_main(kb, "q")
    k1_loader(kb, M)
    kb(f"{n}_qc:"); kb.fence()
    CSQ = M["NS"]*M["SLOT"]
    common2(16384)
    kb(f"""
    v_and_b32 v7, 7, v6
    v_lshlrev_b32 v7, 1, v7          ; f = 2(p0&7)
    v_lshlrev_b32 v6, 8, v6
    v_and_b32 v8, 1, v5
    v_lshl_add_u32 v6, v8, 3, v6
    v_lshrrev_b32 v8, 1, v5
    v_lshl_add_u32 v6, v8, 4, v6     ; p0*256 + b*16 + (c'&1)*8
    """)
    for t in range(8):
        kb(f"v_xor_b32 v9, {2*t}, v7\n v_lshl_add_u32 v{26+t}, v9, 4, v6")
    kb(f"""
    s_lshl_b32 s41, s3, 1
    v_xor_b32 v9, s41, v7
    v_lshl_add_u32 v34, v9, 4, v6
    s_add_u32 s41, s41, 8
    v_xor_b32 v9, s41, v7
    v_lshl_add_u32 v35, v9, 4, v6
    s_lshl_b32 s42, s31, 5
    """)
    SA = 160
    for t in range(8):
        kb(f"""
        v_add_u32 v8, {4*t}, v3
        v_add_u32 v8, s42, v8            ; G
        v_mul_u32_u24 v9, 52429, v8
        v_lshrrev_b32 v9, 18, v9         ; H
        v_mul_u32_u24 v10, 5, v9
        v_sub_u32 v8, v8, v10            ; gi
        v_mul_u32_u24 v9, 1280, v9
        v_lshrrev_b32 v10, 1, v8
        v_lshl_add_u32 v9, v10, 9, v9
        v_and_b32 v10, 1, v8
        v_lshl_add_u32 v9, v10, 3, v9
        v_lshrrev_b32 v10, 2, v8
        v_sub_u32 v10, 4, v10
        v_lshlrev_b32 v11, v10, v2
        v_add_u32 v{SA+2*t}, v9, v11
        v_lshlrev_b32 v11, v10, 16
        v_add_u32 v{SA+2*t+1}, v{SA+2*t}, v11
        """)
    ACC, XX, SM, CSA = M["ACC"], M["XX"], M["SM"], M["CSA"]
    kb(f"""
    v_lshlrev_b32 v8, 4, v3
    v_add_u32 v8, {CSQ}, v8
    s_lshl_b32 s41, s3, 6
    v_add_u32 v9, s41, v8
    s_waitcnt lgkmcnt(0)
    """)
    srd(kb, 52, P_WS, OFF_PQ, SZ_PQ)
    tl = Rec()
    tl(f"ds_write_b128 v9, {V(CSA,4)}\n ds_write_b128 v9, {V(CSA+4,4)} offset:256")
    k1_stats(tl, XX, SM, 52, 54, 56, 17)
    ar = {t: 26 + t for t in range(10)}; ar.update({"X0": 25, "X1": 19, "_free": 36})
    k1_loop(kb, M, ar, tl.L)
    assert M["_vnext"] <= 52
    stamp(kb, 3)
    kb(f"""
    v_mov_b32 v20, v52
    v_mov_b32 v22, v53
    v_mov_b32 v24, v54
    v_mov_b32 v26, v55
    v_mov_b32 v56, {EPS6}
    v_mov_b32 v58, {hex(f2u(LOG2E))}
    s_waitcnt lgkmcnt(0)
    s_barrier
    """)
    CS = 128
    for t in range(8): kb(f"ds_read_b128 {V(CS+4*t,4)}, v8 offset:{64*t}")
    for t in range(8):
        LL = []
        for mt in range(2):
            a = ACC + (t*2+mt)*4; T0 = 28 + 4*mt; L = []
            for p in range(2):
                L.append(f"v_pk_fma_f32 {V(T0+2*p,2)}, {V(CS+4*t+2*p,2)}, {V(20+2*mt,2)}, {V(56,2)} op_sel_hi:[1,0,0] neg_lo:[1,0,0] neg_hi:[1,0,0]")
            for p in range(2):
                L.append(f"v_pk_fma_f32 {V(a+2*p,2)}, {V(a+2*p,2)}, {V(24+2*mt,2)}, {V(T0+2*p,2)} op_sel_hi:[1,0,1]")
            for p in range(2): L.append(f"v_pk_mul_f32 {V(T0+2*p,2)}, {V(a+2*p,2)}, {V(58,2)} op_sel_hi:[1,0]")
            for r in range(4): L.append(f"v_exp_f32 v{T0+r}, v{T0+r} clamp")
            for r in range(4): L.append(f"v_max_f32 v{a+r}, v56, v{a+r}")
            for p in range(2): L.append(f"v_pk_add_f32 {V(a+2*p,2)}, {V(a+2*p,2)}, {V(T0+2*p,2)}")
            for p in range(2): L.append(f"v_cvt_pk_bf16_f32 v{a+p}, v{a+2*p}, v{a+2*p+1}")
            L.append(f"buffer_store_dwordx2 {V(a,2)}, v{SA+2*t+mt}, s[52:55], s34 offen")
            LL.append(L)
        for x, y in zip(*LL): kb(x); kb(y)
    if OPT['qpf']:
        srd(kb, 44, P_WS, OFF_WO, SZ_WO); srd(kb, 48, P_WS, OFF_WGU, SZ_WGU)
        kb(f"""
        s_sub_u32 s41, s29, 16
        s_lshl_b32 s41, s41, 2
        s_add_u32 s41, s41, s3           ; 0..39
        s_mul_i32 s42, s41, 20480
        v_lshlrev_b32 v4, 7, v1
        buffer_load_dword v5, v4, s[44:47], s42 offen
        s_add_u32 s42, s42, 8192
        buffer_load_dword v6, v4, s[44:47], s42 offen
        s_add_u32 s42, s42, 8192
        s_mov_b32 exec_hi, 0
        buffer_load_dword v7, v4, s[44:47], s42 offen
        s_mov_b32 exec_hi, -1
        s_mul_i32 s42, s41, 52429
        s_lshr_b32 s42, s42, 18
        s_mul_i32 s43, s42, 5
        s_sub_u32 s41, s41, s43
        s_mul_i32 s41, s41, 24576
        s_and_b32 s43, s28, 1
        s_lshl_b32 s43, s43, 3
        s_add_u32 s42, s42, s43
        s_mul_i32 s42, s42, {7*40*1024}
        s_add_u32 s42, s42, s41
        buffer_load_dword v8, v4, s[48:51], s42 offen
        s_add_u32 s42, s42, 8192
        buffer_load_dword v9, v4, s[48:51], s42 offen
        s_add_u32 s42, s42, 8192
        buffer_load_dword v10, v4, s[48:51], s42 offen
        """)
    kb(f"s_branch {n}_fin")
    kb(f"{n}_rl:")
    kb.fence()
    kb(f"""
    s_sub_u32 s29, s29, 26
    s_lshl_b32 s29, s29, 3
    s_add_u32 s29, s29, s28
    s_mul_i32 s30, s4, 48
    s_add_u32 s29, s29, s30          ; unit
    s_mul_i32 s30, s4, 81920
    s_waitcnt lgkmcnt(0)
    s_cmp_lt_u32 s29, {0 if OPT['norl'] else 94}
    s_cbranch_scc1 {n}_rl_unit
    s_cmp_eq_u32 s29, 95
    s_cbranch_scc0 {n}_end
    s_cmp_eq_u32 s3, 0
    s_cbranch_scc0 {n}_end
    """)
    srd(kb, 48, P_WS, OFF_KV, SZ_KV); srd(kb, 52, P_DBG, 0, 256)
    kb("v_mov_b32 v8, 0\n v_mov_b32 v9, 0\n v_mov_b32 v10, 0\n v_mov_b32 v11, 0\n v_lshlrev_b32 v12, 4, v1\n s_mov_b32 s41, 0")
    for i in range(53):
        kb(f"buffer_store_dwordx4 v[8:11], v12, s[48:51], s41 offen offset:{(i&3)*1024} sc1")
        if i & 3 == 3: kb("s_add_u32 s41, s41, 4096")
    srd(kb, 48, P_WS, OFF_FL, SZ_FL)
    for i in range(16):
        if i & 3 == 0: kb(f"s_mov_b32 s41, {i*1024}")
        kb(f"buffer_store_dwordx4 v[8:11], v12, s[48:51], s41 offen offset:{(i&3)*1024} sc1")
    kb(f"""
    s_waitcnt vmcnt(0)
    v_mov_b32 v9, 1
    s_mov_b64 exec, 1
    buffer_store_dword v9, v8, s[52:55], 0 offen sc1
    s_branch {n}_end
    {n}_rl_unit:
    """)
    relayout(kb, 29, f"{n}_rl_x", 30)
    kb(f"""
    {n}_rl_x:
    s_cmp_eq_u32 s4, 0
    s_cbranch_scc0 {n}_end
    """)
    finish(kb, 0)
    return (kb, 256, 512, 163840)
```

```python
import gen
from gen import *

def stampT(kb, i):
    if gen.DIAG: kb(f"{'s_memtime' if gen.DIAG == 2 else 's_memrealtime'} s[{76+2*i}:{77+2*i}]")

def poll(kb, name, soff_sreg, vP, vQ, thr, first_issued=False):
    if not first_issued: kb(f"buffer_load_dword v{vQ}, v{vP}, s[60:63], s{soff_sreg} offen sc1")
    kb(f"""
    v_cmp_gt_u32 vcc, {thr}, v{vQ}
    s_mov_b32 s7, 0
    s_cbranch_vccz {name}_ok
    """)
    kb.uncounted = True
    kb(f"""
    {name}:
    s_sleep {gen.OPT['slp']}
    buffer_load_dword v{vQ}, v{vP}, s[60:63], s{soff_sreg} offen sc1
    s_add_u32 s7, s7, 1
    s_waitcnt vmcnt(0)
    v_cmp_gt_u32 vcc, {thr}, v{vQ}
    s_cmp_lt_u32 s7, 0x40000
    s_nop 3
    s_cbranch_vccz {name}_ok
    s_cbranch_scc1 {name}
    {name}_ok:
    """)
    kb.uncounted = False

def flagstore(name, soff_sreg, vtmp, val):
    return f"""
    s_cmp_eq_u32 s3, 0
    s_cbranch_scc0 {name}
    v_mov_b32 v{vtmp}, 0
    v_mov_b32 v{vtmp+1}, {val}
    s_mov_b64 exec, 1
    buffer_store_dword v{vtmp+1}, v{vtmp}, s[60:63], s{soff_sreg} offen sc1
    s_mov_b64 exec, -1
    {name}:
    """
def publish(kb, name, tag, soff_sreg, vtmp, val):
    kb.wait_vm(tag)
    kb("s_barrier")
    kb.uncounted = True
    kb(flagstore(name, soff_sreg, vtmp, val))
    kb.uncounted = False

def kt():
    OPT = gen.OPT
    LD = ['', ' sc1', ' nt'][OPT['ldm']]
    kb = KB("kt_kernel"); n = kb.name
    if gen.DIAG:
        for i in range(1, 11): kb(f"s_mov_b32 s{76+2*i}, 0")
        kb("s_memtime s[100:101]")
    stampT(kb, 0)
    kb(f"""
    s_cmp_ge_u32 s2, 256
    s_cbranch_scc1 {n}_end
    s_load_dwordx16 s[8:23], s[0:1], 0
    s_load_dwordx4 s[24:27], s[0:1], 64
    v_lshrrev_b32 v2, 6, v0
    v_and_b32 v1, 63, v0
    v_readfirstlane_b32 s3, v2
    s_and_b32 s28, s2, 7
    s_lshr_b32 s29, s2, 3
    """)
    kb(f"""
    s_lshl_b32 s30, s28, 3
    s_and_b32 s31, s29, 7
    s_add_u32 s30, s30, s31          ; R
    s_lshr_b32 s31, s29, 3           ; cb
    v_and_b32 v2, 31, v1             ; rho / m
    v_lshrrev_b32 v3, 5, v1          ; hi
    v_lshlrev_b32 v4, 4, v1          ; l*16
    v_mov_b32 v7, 0x100000
    v_cmp_gt_u32 vcc, 20, v2
    v_cndmask_b32 v5, v7, v2, vcc
    v_subrev_u32 v8, 4, v2
    v_cmp_gt_u32 vcc, 24, v2
    v_cndmask_b32 v6, v7, v8, vcc
    v_cmp_gt_u32 vcc, 20, v2
    v_cndmask_b32 v6, v6, v7, vcc
    v_cmp_gt_u32 vcc, 16, v2
    v_cndmask_b32 v6, v6, v2, vcc
    v_and_b32 v8, 27, v2
    v_cmp_eq_u32 vcc, 24, v8
    v_cndmask_b32 v5, v5, 20, vcc
    v_cndmask_b32 v6, v6, 20, vcc
    v_lshlrev_b32 v5, 4, v5
    v_lshlrev_b32 v6, 4, v6
    v_lshl_add_u32 v7, v3, 26, v5
    v_lshl_add_u32 v8, v3, 26, v6
    v_mul_u32_u24 v9, 672, v3
    v_add_u32 v5, v5, v9
    v_add_u32 v6, v6, v9
    v_lshlrev_b32 v9, 3, v2
    v_add_u32 v9, 1024, v9
    v_lshl_add_u32 v9, v3, 26, v9
    s_mul_i32 s32, s3, {8*1680}
    s_lshl_b32 s33, s30, 5
    s_lshl_b32 s34, s3, 3
    s_add_u32 s33, s33, s34
    s_mul_i32 s33, s33, 1280
    s_lshl_b32 s34, s31, 2
    s_add_u32 s34, s34, s3
    s_mul_i32 s34, s34, {50*1024}
    s_waitcnt lgkmcnt(0)
    """)
    srd(kb, 40, P_WS, OFF_KV, SZ_KV); srd(kb, 44, P_WS, OFF_PQ, SZ_PQ); srd(kb, 48, P_WS, OFF_WO, SZ_WO)
    KVR = 168; PQA = 200
    def kvl(p):
        for hh in range(2):
            o = hh*1680; b = KVR + 24*(p & 1) + 12*hh
            kb(f"""
            buffer_load_dwordx4 {V(b,4)}, v{5+hh}, s[40:43], s32 offen offset:{o}
            buffer_load_dwordx4 {V(b+4,4)}, v{5+hh}, s[40:43], s32 offen offset:{o+336}
            buffer_load_dwordx4 {V(b+8,4)}, v{7+hh}, s[40:43], s32 offen offset:{o+1344}
            """)
        kb("s_add_u32 s32, s32, 3360")
    def pql(p):
        for hh in range(2):
            h = 2*p + hh
            kb(f"""
            buffer_load_dwordx4 {A(PQA+6*h,4)}, v4, s[44:47], s33 offen offset:{hh*1280}
            buffer_load_dwordx2 {A(PQA+6*h+4,2)}, v9, s[44:47], s33 offen offset:{hh*1280}
            """)
        kb("s_add_u32 s33, s33, 2560")
    def wo_load(i):
        t = "s_add_u32 s34, s34, 4096\n" if (i % 4 == 0 and i > 0) else ""
        return t + f"buffer_load_dwordx4 {A(4*i,4)}, v4, s[48:51], s34 offen offset:{(i&3)*1024}"
    wl = [wo_load(i) for i in range(50)]
    def wol(k):
        for _ in range(k): kb(wl.pop(0))
    kvl(0); pql(0)
    if OPT['cwo']:
        kb(f"""
        s_and_b32 s35, s29, 7
        s_mul_i32 s35, s35, 6400
        s_add_u32 s35, s35, s34
        v_lshlrev_b32 v10, 7, v1
        s_mov_b32 exec_hi, 0x3ffff
        buffer_load_dword v247, v10, s[48:51], s35 offen
        s_mov_b32 exec_hi, -1
        """)
    kvl(1); pql(1); wol(10)
    srd(kb, 52, P_X, 0, 2048*1280); srd(kb, 56, P_WS, OFF_H, SZ_H); srd(kb, 72, P_WS, OFF_ST, SZ_ST)
    srd(kb, 60, P_WS, OFF_FL, SZ_FL); srd(kb, 68, P_WS, OFF_WGU, SZ_WGU)
    RED = 81920
    kb(f"""
    v_lshrrev_b32 v10, 2, v1
    s_and_b32 s37, s3, 1
    s_lshl_b32 s37, s37, 4
    v_add_u32 v14, s37, v10          ; row
    v_and_b32 v15, 3, v1             ; q0
    v_mul_u32_u24 v10, 1280, v14
    v_lshl_add_u32 v10, v15, 3, v10  ; x voffset
    s_lshr_b32 s39, s3, 1            ; w>>1
    s_mul_i32 s35, s30, {32*1280}
    s_mul_i32 s36, s31, 320
    s_add_u32 s35, s35, s36
    s_mul_i32 s36, s39, 160
    s_add_u32 s35, s35, s36          ; x soffset
    s_mul_i32 s36, s30, 40
    s_mul_i32 s37, s31, 10
    s_add_u32 s36, s36, s37
    s_mul_i32 s37, s39, 5
    s_add_u32 s36, s36, s37
    s_lshl_b32 s36, s36, 10          ; h soffset
    s_mul_i32 s37, s3, 20480
    s_add_u32 s37, s37, {RED}
    v_add_u32 v11, s37, v4
    v_lshlrev_b32 v13, 4, v14
    v_and_b32 v2, 1, v15
    v_lshl_add_u32 v2, v2, 9, v13    ; row*16 + (q0&1)*512
    v_lshrrev_b32 v3, 1, v15
    v_lshl_add_u32 v12, v3, 10, v2
    s_mul_i32 s37, s39, 10240
    s_add_u32 s37, s37, {RED}
    v_add_u32 v12, s37, v12
    v_lshl_add_u32 v2, v3, 3, v2     ; h voffset
    s_lshl_b32 s38, s30, 11
    s_lshl_b32 s37, s31, 9
    s_add_u32 s38, s38, s37
    s_lshl_b32 s37, s39, 3
    s_add_u32 s38, s38, s37
    ; flag slot of this workgroup for h: FL[0][R][cb]
    s_lshl_b32 s4, s30, 7
    s_lshl_b32 s37, s31, 2
    s_add_u32 s4, s4, s37
    {K3MAP[OPT['map34']].replace('s30', 's64').replace('s31', 's67').replace('s32', 's37')}
    s_lshl_b32 s5, s64, 9
    s_lshr_b32 s6, s67, 2
    s_lshl_b32 s6, s6, 7
    s_add_u32 s6, s6, s5
    s_and_b32 s37, s67, 3
    s_lshl_b32 s37, s37, 2
    s_add_u32 s6, s6, s37
    s_add_u32 s6, s6, 8192           ; flag slot for g: FL[1][4rb + (cb>>2)][cb&3]
    s_mul_i32 s67, s67, 7            ; j0
    s_mul_i32 s65, s67, {40*1024}    ; W base
    s_lshl_b32 s66, s3, 10           ; w*1024
    v_add_u32 v246, s66, v4
    """)
    P1 = 3; LOOK = 3; per_gap = OPT['pg3']
    SLOT = 24576; CSB = 5*SLOT
    slots = []
    for sg in range(5):
        slots.append(dict(steps=[(c, u, (c*8 + (u & 7))*1024) for u in range(8*sg, 8*sg+8) for c in range(P1)],
                          dma=[(c, 8*sg + 4*h, (c*8 + 4*h)*1024) for h in range(2) for c in range(P1)]))
    for c in range(P1, 7):
        for hf in range(2):
            slots.append(dict(steps=[(c, u, (u - 20*hf)*1024) for u in range(20*hf, 20*hf+20)],
                              dma=[(c, 20*hf + 4*i, 4*i*1024) for i in range(5)]))
    def dma(k, vreg):
        return [(f"s_add_u32 m0, s66, {(k%5)*SLOT + pos}\n s_add_u32 s7, s65, {(c*40 + u0)*1024}\n"
                 f"buffer_load_dwordx4 v{vreg}, s[68:71], s7 offen lds", f"slot{k}") for (c, u0, pos) in slots[k]["dma"]]
    O = 16; D0 = 56; ACC = 88; XR = 216; XU = 226
    def cvt(p):
        for i in range(6):
            for hh in range(2):
                b = KVR + 24*(p & 1) + 12*hh
                kb(f"v_cvt_pk_bf16_f32 v{b+i}, v{b+2*i}, v{b+2*i+1}")
    def mm(p, tail):
        for hh in range(2):
            d = V(D0 + 16*hh, 16); k = KVR + 24*(p & 1) + 12*hh; q = PQA + 6*(2*p + hh)
            if not tail: kb(f"v_mfma_f32_32x32x16_bf16 {d}, {V(k,4)}, {A(q,4)}, 0")
            else: kb(f"v_mfma_f32_32x32x8_bf16 {d}, {V(k+4,2)}, {A(q+4,2)}, {d}")
    def post(p):
        e = D0; o = e + 16; L = []
        L += [f"v_add_f32 v{e+12}, {EPS6}, v{e+12}", f"v_add_f32 v{o+12}, {EPS6}, v{o+12}",
              f"v_rcp_f32 v{e+12}, v{e+12}", f"v_rcp_f32 v{o+12}, v{o+12}"]
        for i in range(0, 12, 2): L.append(f"v_pk_mul_f32 {V(e+i,2)}, {V(e+i,2)}, {V(e+12,2)} op_sel_hi:[1,0]")
        for i in range(0, 8, 2): L.append(f"v_pk_mul_f32 {V(o+i,2)}, {V(o+i,2)}, {V(o+12,2)} op_sel_hi:[1,0]")
        for i in range(8, 12, 2): L.append(f"v_pk_fma_f32 {V(e+i,2)}, {V(o+i,2)}, {V(o+12,2)}, {V(e+i,2)} op_sel_hi:[1,0,1]")
        dst = O + 10*p
        for j, src in [(0, e), (1, e+4), (3, o), (4, o+4), (2, e+8)]:
            L.append(f"v_cvt_pk_bf16_f32 v{dst+2*j}, v{src}, v{src+1}")
            L.append(f"v_cvt_pk_bf16_f32 v{dst+2*j+1}, v{src+2}, v{src+3}")
        for l in L: kb(l)
    def gemm(kap):
        for nt in range(5):
            d = V(ACC + 16*nt, 16)
            kb(f"v_mfma_f32_32x32x16_bf16 {d}, {A(4*(kap*5+nt),4)}, {V(O+4*kap,4)}, {d if kap else '0'}")
    stampT(kb, 1)
    cvt(0); mm(0, False); pql(2); wol(5); mm(0, True); kvl(2); cvt(1); post(0)
    mm(1, False); pql(3); gemm(0); mm(1, True); kvl(3); wol(5); gemm(1); post(1); wol(10)
    cvt(2); mm(2, False); gemm(2); mm(2, True); wol(10); gemm(3); post(2)
    for i in range(5): kb(f"buffer_load_dwordx2 {V(XR+2*i,2)}, v10, s[52:55], s35 offen offset:{i*32}")
    wol(10); gemm(4)
    cvt(3); mm(3, False); gemm(5); mm(3, True)
    for t, tag in dma(0, 246): kb(t, tag)
    gemm(6); post(3)
    for t, tag in dma(1, 246): kb(t, tag)
    for i in range(5):
        x = XR + 2*i; u = XU + 4*i
        kb(f"""
        v_lshlrev_b32 v{u}, 16, v{x}
        v_and_b32 v{u+1}, 0xffff0000, v{x}
        v_lshlrev_b32 v{u+2}, 16, v{x+1}
        v_and_b32 v{u+3}, 0xffff0000, v{x+1}
        """)
    for nt in range(5):
        d = V(ACC + 16*nt, 16)
        for kap in (7, 8, 9):
            kb(f"v_mfma_f32_32x32x16_bf16 {d}, {A(4*(kap*5+nt),4)}, {V(O+4*kap,4)}, {d}")
        if nt >= 1:
            for q in range(4): kb(f"ds_write_b128 v11, {V(ACC+16*(nt-1)+4*q,4)} offset:{((nt-1)*4+q)*1024}")
    stampT(kb, 2)
    for t, tag in dma(2, 246): kb(t, tag)
    kb("v_add_u32 v14, 40960, v12\n v_mov_b32 v100, 0\n v_mov_b32 v101, 0\n v_mov_b32 v102, 0\n v_mov_b32 v103, 0")
    for q in range(4): kb(f"ds_write_b128 v11, {V(ACC+64+4*q,4)} offset:{(16+q)*1024}")
    kb("s_waitcnt lgkmcnt(0)\n s_barrier")
    T = 16
    for i in range(5):
        for w in range(4):
            a, o = ("v12", w*20480) if w < 2 else ("v14", (w-2)*20480)
            kb(f"ds_read_b128 {V(T+(i*4+w)*4,4)}, {a} offset:{o + i*2048}")
    for i in range(5):
        a = T + i*16; u = XU + 4*i
        kb(f"""
        v_pk_add_f32 {V(a,2)}, {V(a,2)}, {V(u,2)}
        v_pk_add_f32 {V(a+2,2)}, {V(a+2,2)}, {V(u+2,2)}
        v_pk_add_f32 {V(a+4,2)}, {V(a+4,2)}, {V(a+8,2)}
        v_pk_add_f32 {V(a+6,2)}, {V(a+6,2)}, {V(a+10,2)}
        v_pk_add_f32 {V(a,2)}, {V(a,2)}, {V(a+12,2)}
        v_pk_add_f32 {V(a+2,2)}, {V(a+2,2)}, {V(a+14,2)}
        v_pk_add_f32 {V(a,2)}, {V(a,2)}, {V(a+4,2)}
        v_pk_add_f32 {V(a+2,2)}, {V(a+2,2)}, {V(a+6,2)}
        v_cvt_pk_bf16_f32 v{a+4}, v{a}, v{a+1}
        v_cvt_pk_bf16_f32 v{a+5}, v{a+2}, v{a+3}
        v_pk_add_f32 v[100:101], v[100:101], {V(a,2)}
        v_pk_fma_f32 v[102:103], {V(a,2)}, {V(a,2)}, v[102:103]
        """)
        kb(f"buffer_store_dwordx2 {V(a+4,2)}, v2, s[56:59], s36 offen offset:{(i&3)*1024} sc1", "pubA")
        kb(f"""
        v_pk_add_f32 v[100:101], v[100:101], {V(a+2,2)}
        v_pk_fma_f32 v[102:103], {V(a+2,2)}, {V(a+2,2)}, v[102:103]
        """)
        if i == 3: kb("s_add_u32 s36, s36, 4096")
    kb("""
    v_add_f32 v100, v100, v101
    v_add_f32 v101, v102, v103
    v_add_f32_dpp v100, v100, v100 quad_perm:[1,0,3,2] row_mask:0xf bank_mask:0xf
    v_add_f32_dpp v101, v101, v101 quad_perm:[1,0,3,2] row_mask:0xf bank_mask:0xf
    v_add_f32_dpp v100, v100, v100 quad_perm:[2,3,0,1] row_mask:0xf bank_mask:0xf
    v_add_f32_dpp v101, v101, v101 quad_perm:[2,3,0,1] row_mask:0xf bank_mask:0xf
    s_mov_b32 exec_lo, 0x11111111
    s_mov_b32 exec_hi, 0x11111111
    """)
    kb("buffer_store_dwordx2 v[100:101], v13, s[72:75], s38 offen sc1", "pubA")
    kb("s_mov_b64 exec, -1")
    kb(f"""
    s_lshl_b32 s34, s64, 2
    s_add_u32 s34, s34, s3           ; R
    v_lshlrev_b32 v2, 4, v1          ; l*16
    v_mov_b32 v3, v246
    v_add_u32 v4, 0x10000, v2
    v_and_b32 v5, 31, v1
    v_lshlrev_b32 v5, 4, v5
    v_lshrrev_b32 v6, 5, v1
    v_lshl_add_u32 v5, v6, 10, v5
    v_and_b32 v7, 3, v1
    v_lshlrev_b32 v7, 2, v7
    s_lshl_b32 s36, s3, 7
    v_add_u32 v7, s36, v7
    s_lshl_b32 s36, s34, 11
    s_mul_i32 s37, s34, {40*1024}    ; h soffset
    s_mul_i32 s35, s34, 108
    s_add_u32 s35, s35, s67
    s_lshl_b32 s35, s35, 10
    s_cmp_ge_u32 s67, 105
    s_cselect_b32 s33, {BIG}, s35
    s_add_u32 s38, s67, s3
    s_lshl_b32 s38, s38, 10
    s_add_u32 s39, s38, 4096
    """)
    srd(kb, 48, P_WS, OFF_CS, SZ_CS); srd(kb, 52, P_WS, OFF_G, SZ_G)
    stampT(kb, 3)
    publish(kb, f"{n}_pa", "pubA", 4, 8, 1)
    pre = dma(3, 3)[:OPT['pre']]
    for t, tag in pre: kb(t, tag)
    poll(kb, f"{n}_wa", 5, 7, 26, 1)
    stampT(kb, 4)
    for i in range(2): kb(f"buffer_load_dwordx4 {V(112+4*i,4)}, v5, s[72:75], s36 offen offset:{512*i}{LD}")
    def hload(u):
        t = "s_add_u32 s37, s37, 4096\n" if (u % 4 == 0 and u > 0) else ""
        return t + f"buffer_load_dwordx4 {A(4*u,4)}, v2, s[56:59], s37 offen offset:{(u&3)*1024}{LD}"
    H0 = OPT['h0_t']
    for u in range(H0): kb(hload(u))
    early_dma = dma(3, 3)[OPT['pre']:] + dma(4, 3) + [
        (f"s_add_u32 m0, s66, {CSB}\n buffer_load_dwordx4 v2, s[48:51], s38 offen lds", "slot4"),
        (f"s_add_u32 m0, s66, {CSB+4096}\n buffer_load_dwordx4 v2, s[48:51], s39 offen lds", "slot4")]
    kb(f"""
    {K4MAP[OPT['map34']].replace('s33', 's36').replace('s32', 's40')}
    s_mul_i32 s32, s31, 54
    s_mul_i32 s36, s3, 14
    s_add_u32 s32, s32, s36
    s_mul_i32 s32, s32, 5120
    s_and_b32 s36, s31, {1 if OPT['rotc'] else 0}
    s_mul_i32 s40, s36, {7*5120}
    s_add_u32 s8, s32, s40
    s_sub_u32 s9, s32, s40
    s_add_u32 s9, s9, {7*5120}
    s_cmp_eq_u32 s3, 3
    s_cselect_b32 s40, 1, 5
    s_add_u32 s41, s36, 0
    s_cmp_eq_u32 s40, s41
    s_cselect_b32 s10, {BIG}, s8
    s_add_u32 s41, s36, 1
    s_cmp_eq_u32 s40, s41
    s_cselect_b32 s11, {BIG}, s9
    s_mul_i32 s12, s30, {2*108*1024}
    s_mul_i32 s40, s3, {14*2048}
    s_add_u32 s12, s12, s40
    s_mul_i32 s40, s36, {7*2048}
    s_sub_u32 s13, s12, s40
    s_add_u32 s13, s13, {7*2048}
    s_add_u32 s12, s12, s40
    s_cmp_eq_u32 s10, {BIG}
    s_cselect_b32 s14, {BIG}, s12
    s_cmp_eq_u32 s11, {BIG}
    s_cselect_b32 s15, {BIG}, s13
    s_lshr_b32 s5, s30, 1
    s_lshl_b32 s5, s5, 9
    s_add_u32 s5, s5, 8192
    v_add_u32 v15, 1024, v2
    """)
    srd(kb, 44, P_WS, OFF_WD, SZ_WD)
    NPF = OPT['npf']
    def wdreg(f):
        if f < 29: return V(140 + 4*f, 4)
        if f < 45: return A(192 + 4*(f - 29), 4)
        return A(4*(f - 45), 4)
    KORD = [(0,0), (0,1), (0,4), (0,5), (1,0), (1,1), (1,4), (1,5), (0,2), (0,3), (0,6), (1,2), (1,3), (1,6)]; NEARLY = 8
    def wdload(f):
        hf, T = KORD[f // 5]
        if f % 5 == 0: return f"s_add_u32 s43, s{8 + hf + (2 if T >= 5 else 0)}, {T*5120}\n buffer_load_dwordx4 {wdreg(f)}, v2, s[44:47], s43 offen"
        return f"buffer_load_dwordx4 {wdreg(f)}, v15, s[44:47], s43 offen offset:{(f%5-1)*1024}"
    kb("""
    v_pk_add_f32 v[112:113], v[112:113], v[114:115]
    v_pk_add_f32 v[116:117], v[116:117], v[118:119]
    v_pk_add_f32 v[8:9], v[112:113], v[116:117]
    v_mov_b32 v10, v8
    v_mov_b32 v11, v9
    v_permlane32_swap_b32 v8, v10
    v_permlane32_swap_b32 v9, v11
    v_add_f32 v8, v8, v10
    v_add_f32 v9, v9, v11
    """)
    RSTD = 6
    ln_scalars(kb, 8, 9, 10, RSTD, 11)
    K1_, K2_, IR2 = 20, 21, 22
    kb(f"""
    v_xor_b32 v10, 0x80000000, v10
    v_lshrrev_b32 v17, 16, v10
    v_or_b32 v16, v10, v17
    v_mov_b32 v18, 0
    v_mov_b32 v19, 0
    v_mul_f32 v{K1_}, {hex(f2u(-2*LOG2E*0.7978845608028654))}, v{RSTD}
    v_mul_f32 v{K2_}, v{RSTD}, v{RSTD}
    v_mul_f32 v{K2_}, v{K2_}, v{K1_}
    v_mul_f32 v{K2_}, {hex(f2u(0.044715))}, v{K2_}
    v_mul_f32 v{IR2}, v11, v11
    """)
    XE = 16; ACC0 = 32; NACC = 5; TMP = 112; NBF = 8; WF = 160
    steps = []
    for k, sl in enumerate(slots):
        for (c, u, pos) in sl["steps"]:
            steps.append((c, u, k, (k % 5)*SLOT + pos))
            if u == 39: steps.append((c, 40, None, CSB + c*1024))
    def epi(c):
        a = ACC0 + 16*(c % NACC); o = TMP + 16*(c % 2); L = []; W = 4; pend = []
        for p0 in range(0, 8, W):
            E = [(a + (e >> 2)*8 + (e & 3), o + 4 + e) for e in range(p0, p0 + W)]
            for g, t in E: L.append(f"v_mul_f32 v{t}, v{g}, v{g}")
            for g, t in E: L.append(f"v_fma_f32 v{t}, v{t}, v{K2_}, v{K1_}")
            for g, t in E: L.append(f"v_mul_f32 v{t}, v{t}, v{g}")
            for g, t in E: L.append(f"v_exp_f32 v{t}, v{t}")
            for g, t in E: L.append(f"v_mul_f32 v{g}, v{g}, v{g+4}")
            for g, t in E: L.append(f"v_fma_f32 v{t}, v{t}, v{IR2}, v{IR2}")
            for g, t in E: L.append(f"v_rcp_f32 v{t}, v{t}")
            L += pend
            for g, t in E: L.append(f"v_mul_f32 v{g}, v{g}, v{t}")
            pend = [f"v_cvt_pk_bf16_f32 v{o+(p0+e)//2}, v{E[e][0]}, v{E[e][0]+1}" for e in range(0, W, 2)]
        L += pend
        L = [(t, f"epi{c}") for t in L]
        sreg, off = (35, c*1024) if c < 3 else (33, (c-3)*1024)
        if c == 3: L.append(("s_add_u32 s33, s33, 3072", f"epi{c}"))
        L.append((f"buffer_store_dwordx4 {V(o,4)}, v2, s[52:55], s{sreg} offen offset:{off} sc1", "pubE" if c <= 4 else "pubB"))
        return L
    def weight(t): return sum(2 if ("exp" in l or "rcp" in l) else 1 for l in t.strip().split("\n"))
    ready = -1; fill = []; vm_next = 0; issued = 5; pfn = 0
    vmq = []
    hq = [(hload(u), None) for u in range(H0, 40)]
    while hq or early_dma:
        vmq += hq[:2]; hq = hq[2:]
        vmq += early_dma[:1]; early_dma = early_dma[1:]
    def rd(s):
        nonlocal ready, issued, pfn
        c, u, k, off = steps[s]
        if k is not None and k > ready:
            ready = k
            while any(tg == f"slot{k}" for _, tg in vmq):
                t, tg = vmq.pop(0); kb(t, tg)
            kb.wait_vm(f"slot{k}")
            if k == 12:
                assert not any(tg in ("epi4", "pubE") for _, _, tg in fill), "chunk 4 not stored yet"
                kb.wait_vm("pubE")
            kb("s_barrier")
            if k == 12:
                kb.uncounted = True
                kb(flagstore(f"{n}_pe", 6, 24, 1))
                kb.uncounted = False
            if k in (0, 5, 9) and not OPT['dg']: stampT(kb, {0: 5, 5: 6, 9: 7}[k])
            while issued <= k + LOOK and issued < len(slots):
                vmq.extend(dma(issued, 3)); issued += 1
            if k >= OPT['pf0']:
                want = min(NPF, (k - OPT['pf0'] + 1)*OPT['pfr'])
                while pfn < want: vmq.append((wdload(pfn), None)); pfn += 1
        a, o = ("v2", off) if off < 65536 else ("v4", off - 65536)
        return f"ds_read_b128 {A(WF + 4*(s % NBF), 4)}, {a} offset:{o}"
    first = set()
    for s in range(NBF - 1): kb(rd(s))
    for s, (c, u, k, off) in enumerate(steps):
        R = rd(s + NBF - 1) if s + NBF - 1 < len(steps) else None
        d = V(ACC0 + 16*(c % NACC), 16)
        b = A(4*u, 4) if u < 40 else V(XE, 4)
        while u < 40 and any(b + "," in t for t, _ in vmq):
            t, tg = vmq.pop(0); kb(t, tg)
        if c not in first: assert not any(tg == f"epi{c-NACC}" for _, _, tg in fill), "acc reuse"
        kb(f"v_mfma_f32_32x32x16_bf16 {d}, {A(WF + 4*(s % NBF), 4)}, {b}, {d if c in first else '0'}")
        if R: kb(R)
        first.add(c)
        if u == 40: fill += [(s + 4, t, tg) for t, tg in epi(c)]
        kk = 0; budget = per_gap + (s & 1)
        if vmq and s*16 >= vm_next:
            t, tag = vmq.pop(0); kb(t, tag); kk += weight(t); vm_next = max(vm_next, s*16 - 16) + OPT['vpt']
        while fill and fill[0][0] <= s and kk + weight(fill[0][1]) <= max(budget, weight(fill[0][1]) if kk == 0 else 0):
            _, t, tag = fill.pop(0); kb(t, tag); kk += weight(t)
        if s % 2 == 0 and s + NBF + 1 < len(steps): kb(f"s_waitcnt lgkmcnt({NBF-3})")
    stampT(kb, 8)
    for t, tag in vmq: kb(t, tag)
    kb(f"buffer_load_dword v26, v7, s[60:63], s5 offen sc1")
    kb(f"""
    v_and_b32 v14, 15, v1            ; m
    v_lshrrev_b32 v3, 4, v1          ; c
    v_lshlrev_b32 v4, 4, v14
    v_lshl_add_u32 v4, v3, 9, v4     ; voff g  (c*512 + m*16)
    v_add_u32 v5, {108*1024}, v4
    v_lshrrev_b32 v8, 2, v1
    v_and_b32 v9, 3, v1              ; q0
    s_lshl_b32 s36, s3, 4
    v_add_u32 v8, s36, v8
    v_and_b32 v10, 31, v8
    v_lshlrev_b32 v10, 4, v10
    v_and_b32 v11, 1, v9
    v_lshl_add_u32 v10, v11, 9, v10
    v_lshrrev_b32 v11, 1, v9
    v_lshl_add_u32 v10, v11, 3, v10
    s_lshr_b32 s37, s3, 1
    s_lshl_b32 s38, s30, 1
    s_add_u32 s37, s37, s38          ; R
    s_mul_i32 s37, s37, 40
    s_mul_i32 s38, s31, 5
    s_add_u32 s37, s37, s38
    s_lshl_b32 s37, s37, 10
    s_add_u32 s38, s37, 4096
    v_mul_u32_u24 v11, 336, v8
    v_lshl_add_u32 v11, v9, 4, v11
    v_mul_u32_u24 v12, 336, v14
    v_lshl_add_u32 v12, v3, 4, v12
    s_mul_i32 s39, s3, 21504
    v_add_u32 v12, s39, v12
    v_mul_u32_u24 v13, 1280, v8
    v_lshl_add_u32 v13, v9, 3, v13
    s_mul_i32 s39, s30, {64*1280}
    s_mul_i32 s36, s31, 160
    s_add_u32 s39, s39, s36
    """)
    srd(kb, 48, P_OUT, 0, 2048*1280)
    for _, t, tag in fill: kb(t, tag)
    poll(kb, f"{n}_wb", 5, 7, 26, 1, first_issued=True)
    stampT(kb, 9)
    NB = 5; GB = 100; ACC = 32; HU = 112
    def gloads(i):
        b = GB + 16*(i % NB); L = []; hf, T = KORD[i]
        L.append(f"s_add_u32 s40, s{12 + hf + (2 if T >= 5 else 0)}, {T*2048}\n buffer_load_dwordx4 {A(b,4)}, v4, s[52:55], s40 offen{LD}")
        L.append(f"buffer_load_dwordx4 {A(b+4,4)}, v4, s[52:55], s40 offen offset:256{LD}")
        L.append(f"buffer_load_dwordx4 {A(b+8,4)}, v5, s[52:55], s40 offen{LD}")
        L.append(f"buffer_load_dwordx4 {A(b+12,4)}, v5, s[52:55], s40 offen offset:256{LD}")
        return L
    for i in range(2):
        for l in gloads(i): kb(l)
    publish(kb, f"{n}_pb", "pubB", 6, 24, 2)
    for i in range(2, NB - 1):
        for l in gloads(i): kb(l)
    for i in range(5):
        kb(f"buffer_load_dwordx2 {V(16+2*i,2)}, v10, s[56:59], s{37 if i < 4 else 38} offen offset:{(i&3)*1024}{LD}")
    for i in range(14):
        if i + NB - 1 == NEARLY - 2: kb(f"buffer_load_dword v26, v7, s[60:63], s5 offen sc1")
        if i + NB - 1 == NEARLY: poll(kb, f"{n}_wc", 5, 7, 26, 2, first_issued=True)
        L = gloads(i + NB - 1) if i + NB - 1 < 14 else []
        if pfn < 70:
            L = L + [wdload(f) for f in range(pfn, pfn + 5)]; pfn += 5
        if i == 12:
            for j in range(5):
                L += [f"v_lshlrev_b32 v{HU+4*j}, 16, v{16+2*j}\n v_and_b32 v{HU+4*j+1}, 0xffff0000, v{16+2*j}",
                      f"v_lshlrev_b32 v{HU+4*j+2}, 16, v{17+2*j}\n v_and_b32 v{HU+4*j+3}, 0xffff0000, v{17+2*j}"]
        b = GB + 16*(i % NB); k = 0; done = []
        for mt in range(4):
            for t in range(5):
                d = V(ACC + (mt*5+t)*4, 4)
                kb(f"v_mfma_f32_16x16x32_bf16 {d}, {wdreg(5*i+t)}, {A(b+4*mt,4)}, {'0' if i == 0 else d}")
                if k % 2 == 1 and L: kb(L.pop(0))
                if i == 13:
                    done.append(f"ds_write_b128 v12, {d} offset:{mt*16*336 + t*64}")
                    if len(done) > 6: kb(done.pop(0))
                k += 1
        assert not L
    stampT(kb, 10)
    for t in done: kb(t)
    kb("s_waitcnt lgkmcnt(0)\n s_barrier")
    for i in range(5):
        for w in range(4):
            kb(f"ds_read_b128 {V(ACC+(i*4+w)*4,4)}, v11 offset:{w*21504 + i*64}")
    for i in range(5):
        a = ACC + i*16; u = HU + 4*i
        kb(f"""
        v_pk_add_f32 {V(a,2)}, {V(a,2)}, {V(a+4,2)}
        v_pk_add_f32 {V(a+2,2)}, {V(a+2,2)}, {V(a+6,2)}
        v_pk_add_f32 {V(a+8,2)}, {V(a+8,2)}, {V(a+12,2)}
        v_pk_add_f32 {V(a+10,2)}, {V(a+10,2)}, {V(a+14,2)}
        v_pk_add_f32 {V(a,2)}, {V(a,2)}, {V(a+8,2)}
        v_pk_add_f32 {V(a+2,2)}, {V(a+2,2)}, {V(a+10,2)}
        v_cvt_pk_bf16_f32 v{a+4}, v{a}, v{a+1}
        v_cvt_pk_bf16_f32 v{a+5}, v{a+2}, v{a+3}
        v_lshlrev_b32 v{a}, 16, v{a+4}
        v_and_b32 v{a+1}, 0xffff0000, v{a+4}
        v_lshlrev_b32 v{a+2}, 16, v{a+5}
        v_and_b32 v{a+3}, 0xffff0000, v{a+5}
        v_pk_add_f32 {V(a,2)}, {V(a,2)}, {V(u,2)}
        v_pk_add_f32 {V(a+2,2)}, {V(a+2,2)}, {V(u+2,2)}
        v_cvt_pk_bf16_f32 v{a+4}, v{a}, v{a+1}
        v_cvt_pk_bf16_f32 v{a+5}, v{a+2}, v{a+3}
        buffer_store_dwordx2 {V(a+4,2)}, v13, s[48:51], s39 offen offset:{i*32}
        """)
    if gen.DIAG:
        kb.fence()
        kb("s_waitcnt vmcnt(0) lgkmcnt(0)")
        stampT(kb, 11)
        kb("s_memtime s[74:75]\n s_waitcnt lgkmcnt(0)\n s_sub_u32 s100, s74, s100")
        srd(kb, 40, P_WS, OFF_TS + 65536, 65536)
        kb("s_lshl_b32 s44, s2, 2\n s_add_u32 s44, s44, s3\n s_lshl_b32 s44, s44, 6")
        for i in range(13): kb(f"v_mov_b32 v{8+i}, s{76+2*i}")
        kb("v_mov_b32 v2, s44\n s_mov_b64 exec, 1")
        for i in range(4): kb(f"buffer_store_dwordx4 v[{8+4*i}:{11+4*i}], v2, s[40:43], 0 offen offset:{16*i}")
    kb(f"{n}_end:")
    return (kb, 256, 256, 163840)

gen.OPT.update(h0_t=12, npf=45, pfr=5, pf0=3, vpt=34, cwo=0, rotc=0, late=0, ldm=0, dg=0, wdl=1, slp=1, pre=6)
```

```python
import re

TRANS = ("v_exp_f32", "v_log_f32", "v_rcp_f32", "v_rsq_f32", "v_sqrt_f32", "v_sin_f32", "v_cos_f32")
MFMA_PASS = {"v_mfma_f32_16x16x32_bf16": 4, "v_mfma_f32_32x32x16_bf16": 8, "v_mfma_f32_32x32x8_bf16": 8,
             "v_mfma_f32_16x16x16_bf16": 4}

def split_ops(s):
    out, depth, cur = [], 0, ""
    for ch in s:
        if ch in "[(": depth += 1
        if ch in "])": depth -= 1
        if ch == "," and depth == 0:
            out.append(cur.strip()); cur = ""
        else:
            cur += ch
    if cur.strip(): out.append(cur.strip())
    return out

_REG = re.compile(r"^-?\|?(?:abs\()?([vas])(?:(\d+)|\[(\d+):(\d+)\])\)?\|?$")
def regs_of(tok):
    tok = tok.strip()
    if tok in ("vcc", "exec", "m0", "scc"): return {tok}
    if tok in ("vcc_lo", "vcc_hi"): return {"vcc"}
    if tok in ("exec_lo", "exec_hi"): return {"exec"}
    m = _REG.match(tok)
    if not m: return set()
    k = m.group(1)
    if m.group(2) is not None: return {(k, int(m.group(2)))}
    return {(k, i) for i in range(int(m.group(3)), int(m.group(4)) + 1)}

class Ins:
    def __init__(self, text, tag=None):
        self.text = text.strip(); self.tag = tag
        t = self.text.split(";")[0].strip()
        parts = t.split(None, 1)
        self.mn = parts[0]
        rest = parts[1] if len(parts) > 1 else ""
        ops = split_ops(rest)
        self.mods = ""
        if ops:
            lt = ops[-1].split(None, 1)
            ops[-1] = lt[0]
            if len(lt) > 1: self.mods = lt[1]
        self.ops = ops
        self.rd = set(); self.wr = set(); self.kind = "other"; self.srcC = set(); self.srcAB = set()
        self.stdata = set(); self.dpp = False; self.const_rd = set()
        self.classify()
    def classify(s):
        mn, ops = s.mn, s.ops
        R = lambda i: regs_of(ops[i]) if i < len(ops) else set()
        base = re.sub(r"_(e32|e64|dpp|sdwa)$", "", mn)
        if mn.startswith("v_mfma"):
            s.kind = "mfma"; s.wr = R(0); s.srcAB = R(1) | R(2); s.srcC = R(3); s.rd = s.srcAB | s.srcC
            s.passes = MFMA_PASS[mn]
        elif mn.startswith("v_"):
            s.kind = "trans" if base in TRANS else "valu"
            s.dpp = mn.endswith("_dpp") or "row_" in s.mods or "quad_perm" in s.mods
            if mn.startswith("v_permlane") :
                s.wr = R(0) | R(1); s.rd = R(0) | R(1); s.kind = "permlane"
            elif mn.startswith("v_nop"):
                pass
            else:
                s.wr = R(0)
                for i in range(1, len(ops)): s.rd |= R(i)
                if base in ("v_fmac_f32", "v_dot2c_f32_bf16", "v_pk_fmac_f16") or s.dpp: s.rd |= R(0)
                if base.startswith("v_cmp") and not base.startswith("v_cmpx"): pass
                if base in ("v_readfirstlane_b32", "v_readlane_b32"): s.kind = "readlane"
                if base in ("v_add_co_u32", "v_addc_co_u32", "v_sub_co_u32"): s.wr |= R(1)
            s.const_rd = {r for r in s.rd if r == "vcc" or (isinstance(r, tuple) and r[0] == "s")}
        elif mn.startswith("ds_"):
            s.kind = "ds"
            if mn.startswith("ds_read") or mn.startswith("ds_bpermute") or mn.startswith("ds_permute") or mn.startswith("ds_swizzle"):
                s.wr = R(0)
                for i in range(1, len(ops)): s.rd |= R(i)
            else:
                for i in range(len(ops)): s.rd |= R(i)
        elif mn.startswith("buffer_") or mn.startswith("global_"):
            s.kind = "vmem"
            allm = " " + s.mods + " "
            if mn in ("buffer_wbl2", "buffer_inv"):
                pass
            elif mn.startswith("buffer_load") and " lds " in allm:
                for i in range(len(ops)): s.rd |= R(i)
                s.rd.add("m0"); s.kind = "dma"
            elif mn.startswith("buffer_load"):
                s.wr = R(0)
                for i in range(1, len(ops)): s.rd |= R(i)
            else:
                for i in range(len(ops)): s.rd |= R(i)
                if "atomic" in mn and " sc0 " in allm: s.wr = R(0)
                if mn.endswith("x4") or mn.endswith("x3"): s.stdata = R(0)
        elif mn.startswith("s_load") or mn in ("s_memtime", "s_memrealtime"):
            s.kind = "smem"; s.wr = R(0)
            for i in range(1, len(ops)): s.rd |= R(i)
        elif mn.startswith("s_"):
            s.kind = "salu"
            if mn in ("s_waitcnt", "s_nop", "s_barrier", "s_endpgm", "s_sleep", "s_setprio", "s_branch") or mn.startswith("s_cbranch"):
                s.kind = "ctl"
            elif mn.startswith("s_cmp"):
                for i in range(len(ops)): s.rd |= R(i)
            else:
                s.wr = R(0)
                for i in range(1, len(ops)): s.rd |= R(i)
                if "saveexec" in mn: s.wr |= {"exec"}; s.rd |= {"exec"}
        else:
            raise ValueError("unknown instr " + s.text)
    @property
    def is_valu(s): return s.kind in ("valu", "trans", "permlane", "readlane")
    @property
    def states(s):
        if s.mn == "s_nop": return int(s.ops[0], 0) + 1
        return 1

def isv(r): return isinstance(r, tuple) and r[0] in "va"
def iss(r): return r == "vcc" or (isinstance(r, tuple) and r[0] == "s")

def need_states(p, c):
    n = 0
    if p.kind == "mfma":
        big = p.passes == 8
        D = p.wr
        if c.kind == "mfma":
            if c.srcAB & D: n = max(n, 12 if big else 8)
            if c.srcC & D:
                if not (c.srcC == D and c.mn == p.mn): n = max(n, 10 if big else 6)
            elif c.wr & D: n = max(n, 10 if big else 6)
        elif c.is_valu or c.kind in ("ds", "vmem", "dma"):
            if (c.rd | c.wr) & D: n = max(n, 12 if big else 8)
        if c.is_valu and (c.wr & p.srcC): n = max(n, 7 if big else 3)
    if p.is_valu:
        vw = {r for r in p.wr if isv(r)}; sw = {r for r in p.wr if iss(r)}
        if c.kind == "mfma" and (c.rd & vw): n = max(n, 2)
        if p.kind == "trans" and (c.rd & vw) and c.kind != "trans": n = max(n, 1)
        if c.kind == "readlane" and (c.rd & vw): n = max(n, 1)
        if c.kind == "permlane" and (c.rd & vw): n = max(n, 2)
        if c.is_valu and c.dpp and (c.rd & vw): n = max(n, 2)
        if sw:
            if c.kind in ("vmem", "dma") and (c.rd & sw): n = max(n, 5)
            if c.is_valu and (c.const_rd & sw): n = max(n, 4 if c.kind == "readlane" else 2)
            if c.kind in ("salu", "ctl", "smem") and (c.rd & sw): n = max(n, 2)
            if c.mn.startswith("s_cbranch_vcc") and "vcc" in sw: n = max(n, 5)
    if p.stdata and (c.wr & p.stdata): n = max(n, 2)
    if p.kind == "salu" and "m0" in p.wr and c.kind == "dma": n = max(n, 1)
    return n

class KB:
    uncounted = False
    def __init__(self, name):
        self.name = name; self.items = []
    def drop_vm(self, regs): self.items.append(("dropvm", set(regs)))
    def e(self, text, tag=None):
        for l in text.split("\n"):
            l = l.strip()
            if not l or l.startswith(";"): continue
            if l.endswith(":"): self.items.append(("label", l[:-1]))
            else:
                ins = Ins(l, tag); ins.uncounted = self.uncounted
                self.items.append(("ins", ins))
    __call__ = e
    def label(self, l): self.items.append(("label", l))
    def wait_vm(self, tag): self.items.append(("waitvm", tag))
    def fence(self): self.items.append(("fence", None))
    def comment(self, t): self.items.append(("comment", t))
    def finalize(self):
        out = []; hist = []
        vmq = []; lgq = []; smem = set()
        self.maxv = self.maxa = self.maxs = -1
        def emit(ins):
            need = 0; dist = 0
            for p in reversed(hist):
                if dist >= 13: break
                n = need_states(p, ins) - dist
                if n > need: need = n
                dist += p.states
            while need > 0:
                k = min(need, 16)
                nop = Ins(f"s_nop {k-1}"); out.append("    " + nop.text); hist.append(nop); need -= k
            out.append("    " + ins.text); hist.append(ins)
            if len(hist) > 40: del hist[:20]
        def do_wait(vm=None, lg=None):
            t = "s_waitcnt"
            if vm is not None:
                vm = min(vm, 63); t += f" vmcnt({vm})"
                del vmq[:max(0, len(vmq) - vm)]
            if lg is not None:
                lg = min(lg, 15); t += f" lgkmcnt({lg})"
                del lgq[:max(0, len(lgq) - lg)]
                if lg == 0: smem.clear()
            emit(Ins(t))
        for kind, it in self.items:
            if kind == "label":
                out.append(it + ":"); continue
            if kind == "comment":
                out.append("    ; " + it); continue
            if kind == "fence":
                hist.clear(); vmq.clear(); lgq.clear(); smem.clear(); continue
            if kind == "dropvm":
                for o in list(vmq):
                    if o.wr & it: vmq.remove(o)
                continue
            if kind == "waitvm":
                idx = [i for i, o in enumerate(vmq) if o.tag == it]
                if idx: do_wait(vm=len(vmq) - 1 - idx[-1])
                continue
            ins = it
            for r in ins.rd | ins.wr:
                if isinstance(r, tuple):
                    if r[0] == "v": self.maxv = max(self.maxv, r[1])
                    elif r[0] == "a": self.maxa = max(self.maxa, r[1])
                    else: self.maxs = max(self.maxs, r[1])
            if ins.mn == "s_waitcnt" and getattr(ins, "uncounted", False):
                emit(ins); continue
            if ins.mn == "s_waitcnt":
                m = re.search(r"vmcnt\((\d+)\)", ins.text)
                if m: del vmq[:max(0, len(vmq) - int(m.group(1)))]
                m = re.search(r"lgkmcnt\((\d+)\)", ins.text)
                if m:
                    del lgq[:max(0, len(lgq) - int(m.group(1)))]
                    if int(m.group(1)) == 0: smem.clear()
                emit(ins); continue
            touch = ins.rd | ins.wr
            wv = wl = None
            for i, o in enumerate(vmq):
                if o.wr & touch: wv = len(vmq) - 1 - i
            for i, o in enumerate(lgq):
                if o.wr & touch: wl = len(lgq) - 1 - i
            if smem & touch: wl = 0
            if wl is not None and smem: wl = 0
            if wv is not None or wl is not None: do_wait(wv, wl)
            emit(ins)
            if ins.kind in ("vmem", "dma"):
                if not getattr(ins, "uncounted", False): vmq.append(ins)
            elif ins.kind == "ds": lgq.append(ins)
            elif ins.kind == "smem": smem.update(ins.wr)
        return "\n".join(out)

class Alloc:
    def __init__(self, kind, start, end):
        self.kind = kind; self.free = list(range(start, end))
    def get(self, n=1, align=1):
        if n > 1 and align == 1: align = 2
        fs = set(self.free)
        for b in self.free:
            if b % align == 0 and all((b + i) in fs for i in range(n)):
                for i in range(n): self.free.remove(b + i)
                return b
        raise RuntimeError(f"out of {self.kind} regs for {n}")
    def put(self, b, n=1):
        self.free = sorted(set(self.free) | set(range(b, b + n)))

def rr(kind, b, n=1):
    return f"{kind}{b}" if n == 1 else f"{kind}[{b}:{b+n-1}]"
def V(b, n=1): return rr("v", b, n)
def A(b, n=1): return rr("a", b, n)
def S(b, n=1): return rr("s", b, n)

def make_file(kernels, header=""):
    out = []
    out += ["; " + l for l in header.strip().split("\n")] if header else []
    for kb, g, b, lds in kernels:
        out.append(f"; @launch kernel={kb.name} grid=({g},1,1) block=({b},1,1) lds={lds}")
    out.append('.amdgcn_target "amdgcn-amd-amdhsa--gfx950"')
    out.append(".text")
    descs = []; seen = set()
    for kb, g, b, lds in kernels:
        if kb.name in seen: continue
        seen.add(kb.name)
        body = kb.finalize()
        out += [f".globl {kb.name}", ".p2align 8", f".type {kb.name},@function", f"{kb.name}:", body, "    s_endpgm"]
        acc = max(4, (kb.maxv + 1 + 3) // 4 * 4)
        nfv = acc + kb.maxa + 1 if kb.maxa >= 0 else kb.maxv + 1
        assert acc <= 256 and nfv <= 512, (acc, nfv)
        descs.append(f""".p2align 6
.amdhsa_kernel {kb.name}
  .amdhsa_next_free_vgpr {nfv}
  .amdhsa_next_free_sgpr {max(kb.maxs + 1, 16)}
  .amdhsa_accum_offset {acc}
  .amdhsa_group_segment_fixed_size 0
  .amdhsa_kernarg_size 80
  .amdhsa_user_sgpr_count 2
  .amdhsa_user_sgpr_kernarg_segment_ptr 1
  .amdhsa_system_sgpr_workgroup_id_x 1
  .amdhsa_float_denorm_mode_32 3
.end_amdhsa_kernel""")
    out.append("text_end:")
    out.append("    s_endpgm")
    out.append('.section .rodata,"a"')
    out += descs
    return "\n".join(out) + "\n"
```

```python
import sys, os, gen
from gen import *
import gent
gen.DIAG = int(os.environ.get('DIAG', '0'))
for kv in os.environ.get('OPT', '').split(','):
    if kv: gen.OPT[kv.split('=')[0]] = int(kv.split('=')[1])
HEADER = open("sequential_preLN__linear_attn_block__geglu_ffn__prompt.s.ref").read().split("; Override launch")[0]
HEADER = "\n".join(l[2:] if l.startswith("; ") else l[1:] for l in HEADER.strip().split("\n"))
ks = [k1(), gent.kt()]
open(sys.argv[1], "w").write(make_file(ks, HEADER))
print("wrote", sys.argv[1], [(k[0].name, k[0].maxv, k[0].maxa, k[0].maxs) for k in ks])
```

```python
import gen
from gen import (KB, V, A, S, srd, ln_scalars, f2u, LOG2E, EPS6, BIG, Rec, k1_stats, k1_main, K3MAP, K4MAP, K1MAP, K1ROT,
                 P_X, P_WQKV, P_WO, P_GATE, P_UP, P_DOWN, P_OUT, P_DBG, P_WS, make_file)
from layouts import *
OPT = gen.OPT
FL_H, FL_G, FL_Q, FL_K = 0, 32768, 65536, 75776
FL_O, FL_U, FL_D = 77824, 78848, 79872

def stampT(kb, i):
    if gen.DIAG: kb(f"{'s_memtime' if gen.DIAG == 2 else 's_memrealtime'} s[{76+2*i}:{77+2*i}]")

def poll(kb, name, srdr, soff, vP, vQ, thr, nld=1, off2=0, first_issued=False, slp=None, eq=None, slow=None):
    ld = f"buffer_load_dword v{vQ}, v{vP}, s[{srdr}:{srdr+3}], {soff} offen sc1"
    if nld == 2: ld += f"\n buffer_load_dword v{vQ+1}, v{vP}, s[{srdr}:{srdr+3}], {soff} offen offset:{off2} sc1"
    chk = (f"v_min_u32 v{vQ}, v{vQ}, v{vQ+1}\n" if nld == 2 else "") + f"v_cmp_gt_u32 vcc, {thr}, v{vQ}"
    if eq is not None: chk = f"v_cmp_ne_u32 vcc, {eq}, v{vQ}"
    extra = f"s_cmp_eq_u32 s{slow}, 0\n s_cbranch_scc1 {name}_f\n s_sleep {OPT['slow']}\n {name}_f:" if slow else ""
    if not first_issued: kb(ld)
    kb(f"{chk}\n s_mov_b32 s7, 0\n s_cbranch_vccz {name}_ok")
    kb.uncounted = True
    kb(f"""
    {name}:
    s_sleep {slp or OPT['slp']}
    {extra}
    {ld}
    s_add_u32 s7, s7, 1
    s_waitcnt vmcnt(0)
    {chk}
    s_cmp_lt_u32 s7, 0x40000
    s_nop 3
    s_cbranch_vccz {name}_ok
    s_cbranch_scc1 {name}
    {name}_ok:
    """)
    kb.uncounted = False

def wflag(kb, lab, srdr, soff, vz, vval, val):
    kb.uncounted = True
    kb(f"s_cmp_eq_u32 s3, 0\n s_cbranch_scc0 {lab}\n {flag(srdr, soff, vz, vval, val)}\n {lab}:")
    kb.uncounted = False

def flag(srdr, soff, vz, vval, val, op="dword"):
    return f"""v_mov_b32 v{vval}, {val}
    s_mov_b64 exec, 1
    buffer_store_{op} v{vval}, v{vz}, s[{srdr}:{srdr+3}], {soff} offen sc1
    s_mov_b64 exec, -1"""

def announce(kb, lab, sidx, floff):
    kb(f"s_waitcnt vmcnt(0)\n s_barrier\n s_cmp_eq_u32 s3, 0\n s_cbranch_scc0 {lab}")
    poll(kb, f"{lab}_z", 52, "0", 16, 18, 1, slp=8)
    kb.uncounted = True
    srd(kb, 48, P_WS, OFF_FL + floff, 128)
    kb(f"s_lshl_b32 s40, s{sidx}, 2\n {flag(48, 's40', 16, 18, 1)}\n {lab}:")
    kb.uncounted = False

def relayout2(kb, n, nxt):
    ST = " sc1"; NB = 6
    kb(f"""
    v_lshrrev_b32 v2, 3, v1          ; l>>3
    v_and_b32 v3, 7, v1
    v_lshlrev_b32 v3, 4, v3
    v_lshlrev_b32 v4, 4, v1
    v_bfe_u32 v5, v1, 2, 2           ; r
    v_and_b32 v6, 3, v1              ; c'
    v_lshrrev_b32 v7, 5, v1          ; hi
    v_bfe_u32 v8, v1, 4, 1           ; nb
    s_lshl_b32 s44, s3, 10
    s_cmp_lt_u32 s29, 27
    s_cbranch_scc0 {n}_rl_notg
    v_mul_u32_u24 v9, 3456, v2
    v_add_u32 v9, v9, v3
    s_mul_i32 s43, s3, {8*3456}
    s_lshl_b32 s45, s29, 7
    s_add_u32 s43, s43, s45
    s_waitcnt lgkmcnt(0)
    """)
    srd(kb, 48, P_GATE, 0, 640*3456); srd(kb, 64, P_UP, 0, 640*3456)
    for eta in range(2):
        for i in range(10):
            for mtx in range(2):
                kb(f"s_add_u32 m0, s44, {eta*81920 + i*4096 + mtx*40960}")
                kb(f"buffer_load_dwordx4 v9, s[{48+16*mtx}:{51+16*mtx}], s43 offen lds", f"u{eta}")
            kb(f"s_add_u32 s43, s43, {32*3456}")
    srd(kb, 56, P_WS, OFF_WGU, SZ_WGU); srd(kb, 60, P_WS, OFF_CS, SZ_CS); srd(kb, 52, P_DBG, 0, 256)
    kb(f"""
    v_lshrrev_b32 v10, 1, v6
    v_mul_u32_u24 v10, 40960, v10
    v_lshl_add_u32 v11, v7, 2, v5
    v_lshl_add_u32 v10, v11, 7, v10
    v_lshl_add_u32 v10, v8, 4, v10
    v_and_b32 v11, 1, v6
    v_lshl_add_u32 v10, v11, 3, v10
    s_lshl_b32 s45, s3, 5
    v_add_u32 v10, s45, v10
    v_add_u32 v11, 81920, v10
    v_mov_b32 v12, 0x3f803f80
    v_mov_b32 v13, 0x3f803f80
    v_mov_b32 v14, 0x3f803f80
    v_mov_b32 v15, 0x3f803f80
    s_lshl_b32 s45, s29, 2
    s_add_u32 s45, s45, s3           ; chunk j
    s_mul_i32 s46, s45, {40*1024}
    s_lshl_b32 s45, s45, 10
    """)
    for eta in range(2):
        kb.wait_vm(f"u{eta}"); kb("s_barrier")
        def rd(u):
            b = 64 + 4*(u % NB)
            kb(f"ds_read_b64_tr_b16 {V(b,2)}, v{10+eta} offset:{u*2048}")
            kb(f"ds_read_b64_tr_b16 {V(b+2,2)}, v{10+eta} offset:{u*2048+1024}")
        for u in range(NB-1): rd(u)
        acc = V(32 + 16*eta, 16)
        for u in range(20):
            if u + NB - 1 < 20: rd(u + NB - 1)
            b = 64 + 4*(u % NB)
            kb(f"v_mfma_f32_32x32x16_bf16 {acc}, v[12:15], {V(b,4)}, {'0' if u == 0 else acc}")
            kb(f"buffer_store_dwordx4 {V(b,4)}, v4, s[56:59], s46 offen offset:{(u&3)*1024}{ST}")
            if (u & 3) == 3: kb("s_add_u32 s46, s46, 4096")
    kb(f"""
    v_cmp_eq_u32 vcc, 1, v7
    v_cndmask_b32 v32, v32, v48, vcc
    v_cvt_pk_bf16_f32 v48, v32, v32
    v_lshlrev_b32 v48, 16, v48
    v_sub_f32 v33, v32, v48
    v_cvt_pk_bf16_f32 v48, v33, v33
    v_lshlrev_b32 v48, 16, v48
    v_sub_f32 v34, v33, v48
    v_cvt_pk_bf16_f32 v36, v32, v33
    v_cvt_pk_bf16_f32 v37, v34, v32
    v_cvt_pk_bf16_f32 v38, v33, v34
    v_mov_b32 v39, v36
    buffer_store_dwordx4 v[36:39], v4, s[60:63], s45 offen{ST}
    """)
    announce(kb, f"{n}_ag", 29, FL_U)
    kb(f"s_branch {nxt}\n {n}_rl_notg:")
    kb.fence()
    kb(f"""
    v_mul_u32_u24 v9, 1280, v2
    v_add_u32 v9, v9, v3
    v_lshlrev_b32 v20, 4, v7
    v_lshl_add_u32 v20, v8, 2, v20
    v_add_u32 v20, v20, v5
    v_lshlrev_b32 v20, 7, v20
    v_lshl_add_u32 v20, v6, 3, v20
    s_lshl_b32 s45, s3, 5
    v_add_u32 v20, s45, v20
    v_add_u32 v21, 0x10000, v20
    v_add_u32 v22, 81920, v20
    v_add_u32 v23, 81920, v21
    s_waitcnt lgkmcnt(0)
    """)
    srd(kb, 64, P_DOWN, 0, 1728*1280); srd(kb, 68, P_WS, OFF_WD, SZ_WD); srd(kb, 52, P_DBG, 0, 256)
    def loadD(e):
        kb(f"""
        s_mul_i32 s41, s40, 43691
        s_lshr_b32 s41, s41, 17          ; sigma
        s_mul_i32 s42, s41, 3
        s_sub_u32 s42, s40, s42          ; part
        s_mul_i32 s43, s42, {576*1280}
        s_mul_i32 s45, s3, {8*1280}
        s_add_u32 s43, s43, s45
        s_lshl_b32 s45, s41, 7
        s_add_u32 s43, s43, s45
        """)
        for i in range(18):
            kb(f"s_add_u32 m0, s44, {e*81920 + i*4096}")
            kb(f"buffer_load_dwordx4 v9, s[64:67], s43 offen lds", f"u{e}")
            if i < 17: kb(f"s_add_u32 s43, s43, {32*1280}")
        kb(f"""
        s_lshl_b32 s45, s41, 2
        s_add_u32 s45, s45, s3           ; nt
        s_mul_i32 s46, s45, 52429
        s_lshr_b32 s46, s46, 18
        s_mul_i32 s47, s46, 5
        s_sub_u32 s45, s45, s47          ; t
        s_mul_i32 s46, s46, 54
        s_mul_i32 s47, s42, 18
        s_add_u32 s46, s46, s47
        s_mul_i32 s46, s46, 5
        s_add_u32 s46, s46, s45
        s_lshl_b32 s{72+e}, s46, 10
        """)
    def procD(e):
        def rdD(T):
            b = 64 + 4*(T % NB)
            a, o = (20 + 2*e, T*4096) if T < 16 else (21 + 2*e, (T-16)*4096)
            kb(f"ds_read_b64_tr_b16 {V(b,2)}, v{a} offset:{o}")
            kb(f"ds_read_b64_tr_b16 {V(b+2,2)}, v{a} offset:{o+1024}")
        for T in range(NB-1): rdD(T)
        for T in range(18):
            if T + NB - 1 < 18: rdD(T + NB - 1)
            b = 64 + 4*(T % NB)
            kb(f"buffer_store_dwordx4 {V(b,4)}, v4, s[68:71], s{72+e} offen{ST}")
            if T < 17: kb(f"s_add_u32 s{72+e}, s{72+e}, 5120")
    kb(f"s_cmp_lt_u32 s29, 37\n s_cbranch_scc1 {n}_rl_o")
    kb(f"s_sub_u32 s29, s29, 1\n s_sub_u32 s40, s29, 37\n s_lshl_b32 s40, s40, 1\n s_add_u32 s40, s40, 10")
    loadD(0)
    kb("s_add_u32 s40, s40, 1")
    loadD(1)
    kb.wait_vm("u0"); kb("s_barrier")
    procD(0)
    kb(f"s_waitcnt vmcnt(18)\n s_barrier\n s_branch {n}_rl_d1\n {n}_rl_o:")
    kb.fence()
    srd(kb, 48, P_WO, 0, 640*1280); srd(kb, 56, P_WS, OFF_WO, SZ_WO)
    kb(f"s_sub_u32 s40, s29, 27\n s_mul_i32 s43, s3, {8*1280}\n s_lshl_b32 s45, s40, 7\n s_add_u32 s43, s43, s45")
    for i in range(20):
        kb(f"s_add_u32 m0, s44, {i*4096}")
        kb(f"buffer_load_dwordx4 v9, s[48:51], s43 offen lds", "u0")
        if i < 19: kb(f"s_add_u32 s43, s43, {32*1280}")
    for b in range(2):
        kb(f"""
        s_lshl_b32 s45, s40, 1
        s_add_u32 s45, s45, {b}
        s_mul_i32 s42, s45, 52429
        s_lshr_b32 s42, s42, 18
        s_mul_i32 s41, s42, 5
        s_sub_u32 s45, s45, s41
        s_lshl_b32 s42, s42, 2
        s_add_u32 s42, s42, s3
        s_mul_i32 s42, s42, 50
        s_add_u32 s42, s42, s45
        s_lshl_b32 s{74+b}, s42, 10
        """)
    kb(f"""
    v_lshlrev_b32 v10, 7, v5
    v_lshl_add_u32 v10, v8, 5, v10
    v_lshl_add_u32 v10, v6, 3, v10
    s_mul_i32 s45, s3, {160*128}
    v_add_u32 v10, s45, v10
    v_mul_u32_u24 v11, {20*128}, v7
    v_add_u32 v11, v11, v10          ; addrS
    v_lshl_add_u32 v10, v7, 9, v10   ; addrN
    """)
    seq = [(kap, b) for kap in range(10) for b in range(2)]
    kb.wait_vm("u0"); kb("s_barrier")
    kb("buffer_load_dword v19, v16, s[52:55], 0 offen sc1")
    def rdO(i):
        kap, b = seq[i]; bb = 64 + 4*(i % NB)
        for h in range(2):
            pi, ss = divmod(2*kap + h, 5)
            kb(f"ds_read_b64_tr_b16 {V(bb+2*h,2)}, v{11 if ss == 2 else 10} offset:{(40*pi + LOFF[ss])*128 + b*64}")
    for i in range(NB-1): rdO(i)
    for i in range(20):
        if i + NB - 1 < 20: rdO(i + NB - 1)
        kap, b = seq[i]; bb = 64 + 4*(i % NB)
        kb(f"buffer_store_dwordx4 {V(bb,4)}, v4, s[56:59], s{74+b} offen{ST}", "so")
        kb(f"s_add_u32 s{74+b}, s{74+b}, 5120")
    kb("s_mov_b32 s39, s40")
    loadD(1)
    kb.wait_vm("so")
    kb(f"s_barrier\n s_cmp_eq_u32 s3, 0\n s_cbranch_scc0 {n}_ao")
    kb.uncounted = True
    kb("s_waitcnt vmcnt(19)")
    kb(f"v_cmp_gt_u32 vcc, 1, v19\n s_cbranch_vccz {n}_ao_z")
    kb.uncounted = False
    poll(kb, f"{n}_aoz", 52, "0", 16, 19, 1, slp=8)
    kb.uncounted = True
    kb(f"{n}_ao_z:")
    srd(kb, 48, P_WS, OFF_FL + FL_O, 128)
    kb(f"s_lshl_b32 s40, s39, 2\n {flag(48, 's40', 16, 18, 1)}\n {n}_ao:")
    kb.uncounted = False
    kb("s_waitcnt vmcnt(0)\n s_barrier")
    kb(f"{n}_rl_d1:")
    kb.fence()
    procD(1)
    kb("s_sub_u32 s39, s29, 27")
    announce(kb, f"{n}_ad", 39, FL_D)
    kb(f"s_branch {nxt}")

AOFF = 192
def p1_loop(kb, M, areg, tail, mid):
    steps, NS, NBF, WF, issue = M["steps"], M["NS"], M["NBF"], M["WF"], M["issue"]
    SLOT, SETSPAN = M["SLOT"], M["SETSPAN"]
    import re
    def sh(t): return re.sub(r"a\[(\d+):(\d+)\]", lambda m: f"a[{int(m.group(1))+AOFF}:{int(m.group(2))+AOFF}]", t)
    nxt = areg["_free"]; amap = {}
    for k, r in areg.items():
        if k == "_free": continue
        amap[(k, 0)] = r
        for st in range(1, M["nsets"]):
            kb(f"v_add_u32 v{nxt}, {st*SETSPAN}, v{r}"); amap[(k, st)] = nxt; nxt += 1
    M["_vnext"] = nxt
    ready = -1; fill = []; issued = 2
    def lines(L): return [(l.strip(), tag) for t, tag in L for l in t.split("\n") if l.strip()]
    def sync(P):
        nonlocal ready, issued
        ready = P
        while any(tg == f"slot{P}" for _, tg in fill):
            t, tg = fill.pop(0); kb(t, tg)
        kb.wait_vm(f"slot{P}")
        kb("s_waitcnt lgkmcnt(0)\n s_barrier")
        if P == 0: stampT(kb, 1)
        while issued <= P + NS - 1 and issued < 10 and issued <= 2*P + 2:
            fill.extend(lines(issue(issued))); issued += 1
        if P in mid: mid[P]()
        sb = (P % NS)*SLOT; st = sb // SETSPAN; so0 = sb - st*SETSPAN
        for ks in range(2):
            for mt in range(2):
                kb(sh(f"ds_read_b128 {A(16*(P & 1) + 8*ks + 4*mt, 4)}, v{amap[(f'X{ks}', st)]} offset:{so0 + mt*2048}"))
    def rds(s):
        P, (key, o, hs), _ = steps[s]
        if P > ready: sync(P)
        b = WF + 4*(s % NBF); a = amap[key]
        return [sh(f"ds_read_b64_tr_b16 {A(b,2)}, v{a} offset:{o}"), sh(f"ds_read_b64_tr_b16 {A(b+2,2)}, v{a} offset:{o+hs}")]
    for s in range(NBF - 1):
        for t in rds(s): kb(t)
    tail = [l.strip() for t in tail for l in t.split("\n") if l.strip()]
    for s, (P, _, mm) in enumerate(steps):
        R = rds(s + NBF - 1) if s + NBF - 1 < len(steps) else []
        for i, m in enumerate(mm):
            kb(sh(m.replace("FR", A(WF + 4*(s % NBF), 4))))
            k = 2
            if R: kb(R.pop(0)); k = 1
            if i == len(mm) - 1 and s % 2 == 1 and s + NBF < len(steps):
                kb(f"s_waitcnt lgkmcnt({2*NBF - 6})"); k -= 1
            for _ in range(k):
                if fill: t, tg = fill.pop(0); kb(t, tg)
                elif s >= M["nside"] + 2 and tail: kb(tail.pop(0))
    assert not fill
    for t in tail: kb(t)

def km(name):
    kb = KB(name); n = "km"
    if gen.DIAG:
        for i in range(1, 11): kb(f"s_mov_b32 s{76+2*i}, 0")
        kb("s_memtime s[100:101]")
    stampT(kb, 0)
    kb(f"""
    s_cmp_ge_u32 s2, 256
    s_cbranch_scc1 {n}_end
    s_load_dwordx16 s[8:23], s[0:1], 0
    s_load_dwordx4 s[24:27], s[0:1], 64
    v_lshrrev_b32 v2, 6, v0
    v_and_b32 v1, 63, v0
    v_readfirstlane_b32 s3, v2
    s_and_b32 s28, s2, 7
    s_lshr_b32 s29, s2, 3
    s_cmp_ge_u32 s29, 26
    s_cbranch_scc1 {n}_rl
    {K1MAP[OPT['map1']]}
    {K1ROT[OPT['rot1']]}
    v_and_b32 v2, 15, v1             ; n / m
    v_lshrrev_b32 v3, 4, v1          ; c / g
    v_lshrrev_b32 v8, 3, v1
    v_and_b32 v9, 7, v1
    v_xor_b32 v9, v9, v8
    v_mul_u32_u24 v18, 1280, v8
    v_lshl_add_u32 v18, v9, 4, v18
    s_lshl_b32 s36, s30, 2
    s_add_u32 s6, s36, s3            ; R = 4rb + w
    s_mul_i32 s34, s6, {32*1280}
    s_mov_b32 s36, s34
    s_lshl_b32 s43, s3, 12
    s_cmp_ge_u32 s31, 8
    s_cbranch_scc1 {n}_q
    """)
    def wo_setup():
        srd(kb, 60, P_WS, OFF_WO, SZ_WO)
        kb(f"s_lshr_b32 s5, s2, 6\n s_lshl_b32 s5, s5, 2\n s_add_u32 s5, s5, s3\n s_mul_i32 s5, s5, {50*1024}")
    def wo_load(i, v):
        t = "s_add_u32 s5, s5, 4096\n" if (i % 4 == 0 and i > 0) else ""
        return t + f"buffer_load_dwordx4 {A(4*i,4)}, v{v}, s[60:63], s5 offen offset:{(i&3)*1024}"
    def common2():
        kb(f"""
        v_bfe_u32 v4, v1, 2, 2           ; r
        v_and_b32 v5, 3, v1              ; c'
        v_lshrrev_b32 v6, 1, v3
        v_lshlrev_b32 v6, 4, v6
        v_and_b32 v7, 1, v3
        v_lshl_add_u32 v6, v7, 2, v6
        v_add_u32 v6, v6, v4             ; p0 = 16(g>>1) + 4(g&1) + r
        v_mov_b32 v60, 0x3f803f80
        v_mov_b32 v61, 0x3f803f80
        v_mov_b32 v62, 0x3f803f80
        v_mov_b32 v63, 0x3f803f80
        v_cmp_eq_u32 s[64:65], 1, v5
        v_cmp_eq_u32 s[66:67], 2, v5
        v_cmp_eq_u32 s[68:69], 3, v5
        v_lshl_add_u32 v17, v4, 4, v2
        v_lshlrev_b32 v17, 2, v17
        v_and_b32 v8, 7, v2
        v_xor_b32 v8, v8, v3
        v_lshlrev_b32 v9, 7, v2
        v_add_u32 v9, s43, v9
        v_lshl_add_u32 v25, v8, 4, v9    ; X0
        v_xor_b32 v8, 4, v8
        v_lshl_add_u32 v19, v8, 4, v9    ; X1
        v_mov_b32 v16, 0
        v_lshlrev_b32 v200, 4, v1        ; l*16
        """)
        srd(kb, 52, P_DBG, 0, 256)
        wo_setup()
        srd(kb, 72, P_WS, OFF_FL, SZ_FL)
        kb(f"s_mov_b32 s70, {FL_O}\n v_min_u32 v201, 9, v1\n v_lshlrev_b32 v201, 2, v201")
    def hooks(tag, want_wo):
        def h5(): kb("buffer_load_dword v59, v16, s[52:55], 0 offen sc1")
        def h7():
            poll(kb, f"{n}_z{tag}", 52, "0", 16, 59, 1, first_issued=True, slp=8)
        def h9():
            if want_wo: kb("buffer_load_dword v57, v201, s[72:75], s70 offen sc1")
        return {5: h5, 7: h7, 9: h9}
    for j in range(5):
        kb(f"""
        v_add_u32 v8, {64*j}, v1
        v_mul_u32_u24 v9, 6554, v8
        v_lshrrev_b32 v9, 16, v9         ; p = q/10
        v_mul_u32_u24 v10, 10, v9
        v_sub_u32 v8, v8, v10            ; chunk
        v_and_b32 v10, 19, v9
        v_bfe_u32 v11, v9, 2, 1
        v_lshl_add_u32 v10, v11, 3, v10
        v_bfe_u32 v11, v9, 3, 1
        v_lshl_add_u32 v10, v11, 2, v10
        v_mul_u32_u24 v10, 3840, v10
        v_lshl_add_u32 v{20+j}, v8, 4, v10
        """)
    kb(f"""
    s_lshr_b32 s32, s3, 1
    s_and_b32 s33, s3, 1
    s_add_u32 s43, s43, 20480
    s_mul_i32 s37, s32, {32*3840}
    s_mul_i32 s41, s33, 1280
    s_add_u32 s37, s37, s41
    s_mul_i32 s41, s31, 160
    s_add_u32 s37, s37, s41
    s_add_u32 s37, s37, 1280
    s_mul_i32 s35, s3, 5120
    s_waitcnt lgkmcnt(0)
    """)
    srd(kb, 44, P_X, 0, 2048*1280); srd(kb, 48, P_WQKV, 0, 640*3840)
    M = k1_main(kb, "kv")
    for P in range(2):
        for t, tag in M["issue"](P): kb(t, tag)
    CSX = M["NS"]*M["SLOT"]
    common2()
    ACC, XX, SM, CSA, ONES = M["ACC"], M["XX"], M["SM"], M["CSA"], M["ONES"]
    kb(f"""
    v_mul_u32_u24 v6, 160, v6
    v_lshl_add_u32 v26, v5, 3, v6    ; aN
    v_mul_u32_u24 v7, 40, v5
    v_add3_u32 v27, v6, v7, 32       ; aT
    s_mul_i32 s42, s3, 40
    v_add_u32 v28, s42, v26          ; aC
    s_mul_i32 s4, s33, 5120
    s_mul_i32 s42, s32, 10240
    s_add_u32 s4, s4, s42
    v_add_u32 v29, s4, v27           ; aC4
    v_lshlrev_b32 v8, 2, v2
    s_lshl_b32 s4, s3, 6
    s_add_u32 s4, s4, {CSX}
    v_add_u32 v9, s4, v8
    s_lshl_b32 s4, s33, 7
    s_lshl_b32 s42, s32, 6
    s_add_u32 s4, s4, s42
    s_add_u32 s4, s4, {CSX+512}
    v_add_u32 v11, s4, v8
    v_mul_u32_u24 v10, 80, v3
    """)
    tl = Rec()
    tl(f"ds_write_b32 v9, v{CSA}\n ds_write_b32 v9, v{CSA+4} offset:256\n ds_write_b32 v11, v{CSA+8}")
    k1_stats(tl, XX, SM, 12, 14, 192, 17)
    RS = 172; MR = 48
    for mt in range(2):
        for r in range(4):
            tl(f"ds_bpermute_b32 v{RS+4*mt+r}, v10, v{14+mt} offset:{4*r}")
            tl(f"ds_bpermute_b32 v{MR+4*mt+r}, v10, v{12+mt} offset:{4*r}")
    p1_loop(kb, M, {"N": 26, "T": 27, "C": 28, "C4": 29, "X0": 25, "X1": 19, "_free": 30}, tl.L, hooks('k', True))
    assert M["_vnext"] <= 48
    stampT(kb, 2)
    kb(f"s_waitcnt lgkmcnt(0)\n s_barrier\n v_add_u32 v9, {CSX}, v8")
    CS = 26
    for t in range(8): kb(f"ds_read_b32 v{CS+2*t}, v9 offset:{64*t}")
    for i in range(2):
        kb(f"ds_read_b32 v{CS+16+2*i}, v9 offset:{512+128*i}\n ds_read_b32 v{CS+17+2*i}, v9 offset:{512+128*i+64}")
    kb(f"""
    v_cmp_eq_u32 vcc, 0, v57
    s_cmp_eq_u64 vcc, 0
    s_cselect_b32 s33, 1, 0
    s_cselect_b32 s5, s5, {BIG}
    """)
    for i in range(2): kb(f"v_add_f32 v{CS+16+2*i}, v{CS+16+2*i}, v{CS+17+2*i}")
    kb(f"""
    v_mov_b32 v56, {EPS6}
    v_mov_b32 v58, {hex(f2u(LOG2E))}
    s_mul_i32 s41, s3, 10240
    v_add_u32 v12, s41, v200
    s_lshl_b32 s41, s3, 10
    v_add_u32 v13, s41, v200
    """)
    wl = [wo_load(i, 200) for i in range(48)]
    fr = 188; cnt = 0
    for t in range(10):
        isk = t < 4 or t == 8
        LL = []
        for mt in range(2):
            a = ACC + (t*2+mt)*4; T0 = 180 + 4*mt; L = []
            for p in range(2):
                tt = T0 + 2*p
                if isk: L.append(f"v_pk_fma_f32 {V(tt,2)}, {V(MR+4*mt+2*p,2)}, {V(CS+2*t,2)}, {V(56,2)} op_sel_hi:[1,0,0] neg_lo:[1,0,0] neg_hi:[1,0,0]")
                else: L.append(f"v_pk_mul_f32 {V(tt,2)}, {V(MR+4*mt+2*p,2)}, {V(CS+2*t,2)} op_sel_hi:[1,0] neg_lo:[1,0] neg_hi:[1,0]")
            for p in range(2):
                L.append(f"v_pk_fma_f32 {V(a+2*p,2)}, {V(a+2*p,2)}, {V(RS+4*mt+2*p,2)}, {V(T0+2*p,2)}")
            if isk:
                for p in range(2): L.append(f"v_pk_mul_f32 {V(T0+2*p,2)}, {V(a+2*p,2)}, {V(58,2)} op_sel_hi:[1,0]")
                for r in range(4): L.append(f"v_exp_f32 v{T0+r}, v{T0+r} clamp")
                for r in range(4): L.append(f"v_max_f32 v{a+r}, v56, v{a+r}")
                for p in range(2): L.append(f"v_pk_add_f32 {V(a+2*p,2)}, {V(a+2*p,2)}, {V(T0+2*p,2)}")
            for p in range(2): L.append(f"v_cvt_pk_bf16_f32 v{fr+2*mt+p}, v{a+2*p}, v{a+2*p+1}")
            LL.append(L)
        for x, y in zip(*LL):
            kb(x); kb(y); cnt += 1
            if cnt % OPT['wop'] == 0: kb(wl.pop(0))
        kb(f"ds_write_b128 v12, {V(fr,4)} offset:{t*1024}")
    if OPT['dgk']: stampT(kb, 7)
    kb("s_waitcnt lgkmcnt(0)\n s_barrier")
    for w in range(4):
        b = AOFF + 16*w
        kb(f"""
        ds_read_b128 {A(b,4)}, v13 offset:{w*10240}
        ds_read_b128 {A(b+4,4)}, v13 offset:{w*10240+4096}
        ds_read_b128 {A(b+8,4)}, v200 offset:{w*10240+8192}
        ds_read_b128 {A(b+12,4)}, v200 offset:{w*10240+9216}
        """)
    kb(f"""
    v_mul_u32_u24 v9, 336, v3
    s_lshl_b32 s41, s3, 11
    s_add_u32 s41, s41, 40960
    v_add_u32 v9, s41, v9
    v_lshl_add_u32 v10, v2, 4, v9
    v_lshl_add_u32 v14, v5, 4, v9
    v_lshlrev_b32 v15, 4, v2
    v_add_u32 v15, s41, v15
    v_lshlrev_b32 v20, 4, v5
    v_add_u32 v20, s41, v20
    v_lshlrev_b32 v21, 2, v1
    v_add_u32 v22, s41, v21
    s_lshl_b32 s41, s3, 4
    s_mov_b64 s[70:71], 0xffff
    s_lshl_b64 s[70:71], s[70:71], s41
    s_lshl_b32 s41, s3, 2
    s_mov_b32 s72, 0x000f000f
    s_lshl_b32 s72, s72, s41
    s_mov_b32 s73, s72
    s_mov_b32 s74, 0x00010001
    s_mov_b32 s75, 0x00010001
    """)
    for w in range(4):
        b = AOFF + 16*w
        for i, (x, y) in enumerate([(A(b,4), A(b+4,4)), (A(b+8,4), A(b+4,4)), (A(b,4), A(b+12,4)), (A(b+8,4), A(b+12,4)),
                                    (A(b,4), V(ONES,4)), (A(b+8,4), V(ONES,4))]):
            d = V(ACC + 4*i, 4)
            kb(f"v_mfma_f32_16x16x32_bf16 {d}, {x}, {y}, {d if w else '0'}")
    srd(kb, 44, P_WS, OFF_FL, SZ_FL)
    kb(f"""
    s_lshl_b32 s41, s31, 2
    s_add_u32 s41, s41, s3           ; head
    s_lshr_b32 s4, s31, 1
    s_lshl_b32 s4, s4, 7
    s_add_u32 s4, s4, {FL_K}
    s_mul_i32 s41, s41, 1680
    s_add_u32 s41, s41, {OFF_KV}
    s_add_u32 s56, s{P_WS}, s41
    s_addc_u32 s57, s{P_WS+1}, 0
    s_mov_b32 s58, 1680
    s_mov_b32 s59, 0x20000
    ds_write_b128 v10, {V(ACC,4)}
    s_mov_b64 exec, s[70:71]
    ds_write_b128 v15, {V(ACC+4,4)} offset:1344
    s_mov_b64 exec, s[72:73]
    ds_write_b128 v14, {V(ACC+8,4)} offset:256
    s_and_b64 exec, s[70:71], s[72:73]
    ds_write_b128 v20, {V(ACC+12,4)} offset:{1344+256}
    s_mov_b64 exec, s[74:75]
    ds_write_b128 v9, {V(ACC+16,4)} offset:320
    s_and_b64 exec, s[70:71], s[74:75]
    ds_write_b128 v20, {V(ACC+20,4)} offset:{1344+320}
    s_mov_b64 exec, -1
    """)
    for i in range(7): kb(f"ds_read_b32 v{24+i}, v22 offset:{256*i}")
    for i in range(7): kb(f"buffer_atomic_add_f32 v{24+i}, v21, s[56:59], 0 offen offset:{256*i}", "atom")
    if OPT['dgk']: stampT(kb, 8)
    for _ in range(OPT['womid']): kb(wl.pop(0))
    if OPT['dgk']: stampT(kb, 9)
    kb.wait_vm("atom")
    if OPT['dgk']: stampT(kb, 10)
    kb("s_barrier")
    kb.uncounted = True
    kb(f"""
    s_cmp_eq_u32 s3, 0
    s_cbranch_scc0 {n}_ka
    v_mov_b32 v17, 1
    s_mov_b64 exec, 1
    buffer_atomic_add v17, v16, s[44:47], s4 offen sc0
    s_mov_b64 exec, -1
    s_waitcnt vmcnt(0)
    v_readfirstlane_b32 s42, v17
    s_add_u32 s4, s4, 512
    s_cmp_eq_u32 s42, 31
    s_cbranch_scc0 {n}_ka
    {flag(44, "s4", 16, 17, 1)}
    {n}_ka:
    """)
    kb.uncounted = False
    for t in wl: kb(t)
    kb("s_mov_b32 s39, 0")
    kb(f"s_cmp_eq_u32 s33, 0\n s_cbranch_scc1 {n}_wo\n s_branch {n}_A")
    kb(f"{n}_q:")
    kb.fence()
    for j in range(4):
        kb(f"""
        v_add_u32 v8, {4*(j&1)}, v3
        v_lshlrev_b32 v8, 1, v8
        v_xor_b32 v8, v8, v2
        v_add_u32 v9, {8*(j&1) + 4*(j>>1)}, v3
        v_mul_u32_u24 v9, 3840, v9
        v_lshl_add_u32 v{20+j}, v8, 4, v9
        """)
    kb(f"""
    s_sub_u32 s31, s31, 8            ; qc
    s_add_u32 s43, s43, 16384
    s_mul_i32 s37, s3, {16*3840}
    s_lshl_b32 s41, s31, 8
    s_add_u32 s37, s37, s41
    s_lshl_b32 s35, s3, 12
    s_waitcnt lgkmcnt(0)
    """)
    srd(kb, 44, P_X, 0, 2048*1280); srd(kb, 48, P_WQKV, 0, 640*3840)
    M = k1_main(kb, "q")
    for P in range(2):
        for t, tag in M["issue"](P): kb(t, tag)
    CSQ = M["NS"]*M["SLOT"]
    common2()
    kb(f"""
    v_and_b32 v7, 7, v6
    v_lshlrev_b32 v7, 1, v7
    v_lshlrev_b32 v6, 8, v6
    v_and_b32 v8, 1, v5
    v_lshl_add_u32 v6, v8, 3, v6
    v_lshrrev_b32 v8, 1, v5
    v_lshl_add_u32 v6, v8, 4, v6
    """)
    for t in range(8): kb(f"v_xor_b32 v9, {2*t}, v7\n v_lshl_add_u32 v{26+t}, v9, 4, v6")
    kb(f"""
    s_lshl_b32 s4, s3, 1
    v_xor_b32 v9, s4, v7
    v_lshl_add_u32 v34, v9, 4, v6
    s_add_u32 s4, s4, 8
    v_xor_b32 v9, s4, v7
    v_lshl_add_u32 v35, v9, 4, v6
    s_lshl_b32 s42, s31, 5
    """)
    SA = 160
    sa = Rec()
    for t in range(8):
        sa(f"""
        v_add_u32 v176, {4*t}, v3
        v_add_u32 v176, s42, v176
        v_mul_u32_u24 v177, 52429, v176
        v_lshrrev_b32 v177, 18, v177
        v_mul_u32_u24 v178, 5, v177
        v_sub_u32 v176, v176, v178
        v_mul_u32_u24 v177, 1280, v177
        v_lshrrev_b32 v178, 1, v176
        v_lshl_add_u32 v177, v178, 9, v177
        v_and_b32 v178, 1, v176
        v_lshl_add_u32 v177, v178, 3, v177
        v_lshrrev_b32 v178, 2, v176
        v_sub_u32 v178, 4, v178
        v_lshlrev_b32 v179, v178, v2
        v_add_u32 v{SA+2*t}, v177, v179
        v_lshlrev_b32 v179, v178, 16
        v_add_u32 v{SA+2*t+1}, v{SA+2*t}, v179
        """)
    for t in sa.L: kb(t)
    ACC, XX, SM, CSA = M["ACC"], M["XX"], M["SM"], M["CSA"]
    kb(f"""
    v_lshlrev_b32 v8, 4, v3
    v_add_u32 v8, {CSQ}, v8
    s_lshl_b32 s4, s3, 6
    v_add_u32 v9, s4, v8
    """)
    srd(kb, 56, P_WS, OFF_PQ, SZ_PQ)
    tl = Rec()
    tl(f"ds_write_b128 v9, {V(CSA,4)}\n ds_write_b128 v9, {V(CSA+4,4)} offset:256")
    k1_stats(tl, XX, SM, 52, 54, 56, 17)
    ar = {t: 26 + t for t in range(10)}; ar.update({"X0": 25, "X1": 19, "_free": 36})
    p1_loop(kb, M, ar, tl.L, hooks('q', False))
    assert M["_vnext"] <= 52
    stampT(kb, 2)
    kb(f"""
    v_mov_b32 v20, v52
    v_mov_b32 v22, v53
    v_mov_b32 v24, v54
    v_mov_b32 v26, v55
    v_mov_b32 v56, {EPS6}
    v_mov_b32 v58, {hex(f2u(LOG2E))}
    s_waitcnt lgkmcnt(0)
    s_barrier
    """)
    CS = 128
    for t in range(8): kb(f"ds_read_b128 {V(CS+4*t,4)}, v8 offset:{64*t}")
    for t in range(8):
        LL = []
        for mt in range(2):
            a = ACC + (t*2+mt)*4; T0 = 28 + 4*mt; L = []
            for p in range(2):
                L.append(f"v_pk_fma_f32 {V(T0+2*p,2)}, {V(CS+4*t+2*p,2)}, {V(20+2*mt,2)}, {V(56,2)} op_sel_hi:[1,0,0] neg_lo:[1,0,0] neg_hi:[1,0,0]")
            for p in range(2):
                L.append(f"v_pk_fma_f32 {V(a+2*p,2)}, {V(a+2*p,2)}, {V(24+2*mt,2)}, {V(T0+2*p,2)} op_sel_hi:[1,0,1]")
            for p in range(2): L.append(f"v_pk_mul_f32 {V(T0+2*p,2)}, {V(a+2*p,2)}, {V(58,2)} op_sel_hi:[1,0]")
            for r in range(4): L.append(f"v_exp_f32 v{T0+r}, v{T0+r} clamp")
            for r in range(4): L.append(f"v_max_f32 v{a+r}, v56, v{a+r}")
            for p in range(2): L.append(f"v_pk_add_f32 {V(a+2*p,2)}, {V(a+2*p,2)}, {V(T0+2*p,2)}")
            for p in range(2): L.append(f"v_cvt_pk_bf16_f32 v{a+p}, v{a+2*p}, v{a+2*p+1}")
            L.append(f"buffer_store_dwordx2 {V(a,2)}, v{SA+2*t+mt}, s[56:59], s34 offen sc1")
            LL.append(L)
        for x, y in zip(*LL): kb(x); kb(y)
    srd(kb, 44, P_WS, OFF_FL, SZ_FL)
    kb(f"s_mul_i32 s4, s30, 5\n s_add_u32 s4, s4, s31\n s_lshl_b32 s4, s4, 7\n s_add_u32 s4, s4, {FL_Q}")
    kb(f"s_waitcnt vmcnt(0)\n s_barrier\n s_cmp_eq_u32 s3, 0\n s_cbranch_scc0 {n}_we")
    kb(flag(44, "s4", 16, 17, 1))
    kb(f"{n}_we:\n s_mov_b32 s39, 1\n {n}_wo:")
    kb.fence()
    wo_setup()
    srd(kb, 44, P_WS, OFF_FL, SZ_FL)
    kb(f"s_mov_b32 s70, {FL_O}\n v_min_u32 v201, 9, v1\n v_lshlrev_b32 v201, 2, v201")
    poll(kb, f"{n}_c2", 44, "s70", 201, 59, 1, slp=16)
    for i in range(48): kb(wo_load(i, 200))
    kb(f"s_branch {n}_A")
    kb(f"{n}_rl:")
    kb.fence()
    kb(f"""
    s_sub_u32 s29, s29, 26
    s_lshl_b32 s29, s29, 3
    s_add_u32 s29, s29, s28          ; 0..47
    v_mov_b32 v16, 0
    v_mov_b32 v17, 1
    s_cmp_ge_u32 s29, 40
    s_cbranch_scc0 {n}_rl_nc
    s_getpc_b64 s[44:45]
    {n}_pc:
    s_sub_u32 s44, s44, {n}_pc-{name}
    s_subb_u32 s45, s45, 0
    s_mov_b32 s46, text_end-{name}
    s_mov_b32 s47, 0x20000
    s_lshl_b32 s41, s3, 14
    v_lshlrev_b32 v4, 7, v1
    buffer_load_dword v100, v4, s[44:47], s41 offen
    s_add_u32 s41, s41, 8192
    buffer_load_dword v101, v4, s[44:47], s41 offen
    {n}_rl_nc:
    s_cmp_lg_u32 s29, 37
    s_cbranch_scc1 {n}_rl_go
    s_waitcnt lgkmcnt(0)
    """)
    kb.fence()
    srd(kb, 48, P_WS, OFF_KV, SZ_KV); srd(kb, 56, P_WS, OFF_FL, SZ_FL)
    kb("v_mov_b32 v8, 0\n v_mov_b32 v9, 0\n v_mov_b32 v10, 0\n v_mov_b32 v11, 0\n v_lshlrev_b32 v12, 4, v0\n s_mov_b32 s41, 0")
    for i in range(20):
        if i < 14: kb(f"buffer_store_dwordx4 v[8:11], v12, s[48:51], s41 offen sc1")
        if True: kb(f"buffer_store_dwordx4 v[8:11], v12, s[56:59], s41 offen sc1")
        kb("s_add_u32 s41, s41, 4096")
    srd(kb, 52, P_DBG, 0, 256)
    kb(f"""
    s_waitcnt vmcnt(0)
    s_barrier
    s_cmp_eq_u32 s3, 0
    s_cbranch_scc0 {n}_rl_x
    {flag(52, "0", 16, 18, 1)}
    s_branch {n}_rl_x
    {n}_rl_go:
    """)
    kb.fence()
    relayout2(kb, n, f"{n}_rl_x")
    kb(f"{n}_rl_x:")
    kb.fence()
    stampT(kb, 2)
    kb("v_lshlrev_b32 v200, 4, v1")
    poll(kb, f"{n}_zr", 52, "0", 16, 59, 1, slp=8)
    kb(f"s_branch {n}_we")
    kb(f"{n}_A:")
    kb.fence()
    stampT(kb, 3)
    import phases
    phases.abc(kb, n)
    kb(f"{n}_end:")
    return (kb, 256, 256, 163840)

OPT.update(h0_t=12, npf=45, pfr=5, pf0=3, vpt=34, slp=1, wop=10, womid=14, slow=16, dgk=0)
```

```python
import gen
from genm import *

def abc(kb, n):
    LD = ""
    kb("s_lshr_b32 s29, s2, 3")
    kb(f"""
    s_lshl_b32 s30, s28, 3
    s_and_b32 s31, s29, 7
    s_add_u32 s30, s30, s31          ; R
    s_lshr_b32 s31, s29, 3           ; cb
    v_and_b32 v2, 31, v1             ; rho / m
    v_lshrrev_b32 v3, 5, v1          ; hi
    v_lshlrev_b32 v4, 4, v1          ; l*16
    v_mov_b32 v7, 0x100000
    v_cmp_gt_u32 vcc, 20, v2
    v_cndmask_b32 v5, v7, v2, vcc
    v_subrev_u32 v8, 4, v2
    v_cmp_gt_u32 vcc, 24, v2
    v_cndmask_b32 v6, v7, v8, vcc
    v_cmp_gt_u32 vcc, 20, v2
    v_cndmask_b32 v6, v6, v7, vcc
    v_cmp_gt_u32 vcc, 16, v2
    v_cndmask_b32 v6, v6, v2, vcc
    v_and_b32 v8, 27, v2
    v_cmp_eq_u32 vcc, 24, v8
    v_cndmask_b32 v5, v5, 20, vcc
    v_cndmask_b32 v6, v6, 20, vcc
    v_lshlrev_b32 v5, 4, v5
    v_lshlrev_b32 v6, 4, v6
    v_lshl_add_u32 v7, v3, 26, v5
    v_lshl_add_u32 v8, v3, 26, v6
    v_mul_u32_u24 v9, 672, v3
    v_add_u32 v5, v5, v9
    v_add_u32 v6, v6, v9
    v_lshlrev_b32 v9, 3, v2
    v_add_u32 v9, 1024, v9
    v_lshl_add_u32 v9, v3, 26, v9
    s_mul_i32 s32, s3, {8*1680}
    s_lshl_b32 s33, s30, 5
    s_lshl_b32 s34, s3, 3
    s_add_u32 s33, s33, s34
    s_mul_i32 s33, s33, 1280
    v_and_b32 v10, 7, v1
    v_min_u32 v10, 4, v10
    v_lshlrev_b32 v10, 7, v10
    s_lshr_b32 s34, s30, 2
    s_mul_i32 s34, s34, 640
    s_add_u32 s34, s34, {FL_Q}
    v_mov_b32 v11, 0
    s_mov_b32 s59, s39
    s_lshl_b32 s35, s3, 7
    s_add_u32 s35, s35, {FL_K + 512}
    """)
    srd(kb, 48, P_WS, OFF_FL, SZ_FL)
    kb(f"""
    buffer_load_dword v26, v10, s[48:51], s34 offen sc1
    """)
    srd(kb, 40, P_WS, OFF_KV, SZ_KV); srd(kb, 44, P_WS, OFF_PQ, SZ_PQ)
    KVR = 168; PQA = 200
    def kvl(p):
        for hh in range(2):
            o = hh*1680; b = KVR + 24*(p & 1) + 12*hh
            kb(f"""
            buffer_load_dwordx4 {V(b,4)}, v{5+hh}, s[40:43], s32 offen offset:{o}
            buffer_load_dwordx4 {V(b+4,4)}, v{5+hh}, s[40:43], s32 offen offset:{o+336}
            buffer_load_dwordx4 {V(b+8,4)}, v{7+hh}, s[40:43], s32 offen offset:{o+1344}
            """)
        kb("s_add_u32 s32, s32, 3360")
    def pql(p):
        for hh in range(2):
            h = 2*p + hh
            kb(f"""
            buffer_load_dwordx4 {A(PQA+6*h,4)}, v4, s[44:47], s33 offen offset:{hh*1280}
            buffer_load_dwordx2 {A(PQA+6*h+4,2)}, v9, s[44:47], s33 offen offset:{hh*1280}
            """)
        kb("s_add_u32 s33, s33, 2560")
    kb("s_barrier")
    poll(kb, f"{n}_wq", 48, "s34", 10, 26, 1, first_issued=True, slp=8)
    kb(f"s_mov_b32 s34, {FL_U}\n v_min_u32 v248, 26, v1\n v_lshlrev_b32 v248, 2, v248")
    for p in range(4): pql(p)
    kb(f"s_add_u32 s5, s5, 4096\n buffer_load_dwordx4 {A(192,4)}, v4, s[60:63], s5 offen\n buffer_load_dwordx4 {A(196,4)}, v4, s[60:63], s5 offen offset:1024")
    kb(f"buffer_load_dword v26, v11, s[48:51], s35 offen sc1\n s_mov_b32 s61, s59")
    kb(f"v_mov_b32 v247, v11\n s_mov_b32 s5, s35\n buffer_load_dword v28, v248, s[48:51], s34 offen sc1")
    srd(kb, 52, P_X, 0, 2048*1280); srd(kb, 56, P_WS, OFF_H, SZ_H); srd(kb, 72, P_WS, OFF_ST, SZ_ST)
    srd(kb, 68, P_WS, OFF_WGU, SZ_WGU)
    RED = 81920
    kb(f"""
    v_lshrrev_b32 v10, 2, v1
    s_and_b32 s37, s3, 1
    s_lshl_b32 s37, s37, 4
    v_add_u32 v14, s37, v10          ; row
    v_and_b32 v15, 3, v1             ; q0
    v_mul_u32_u24 v10, 1280, v14
    v_lshl_add_u32 v10, v15, 3, v10  ; x voffset
    s_lshr_b32 s39, s3, 1            ; w>>1
    s_mul_i32 s35, s30, {32*1280}
    s_mul_i32 s36, s31, 320
    s_add_u32 s35, s35, s36
    s_mul_i32 s36, s39, 160
    s_add_u32 s35, s35, s36          ; x soffset
    s_mul_i32 s36, s30, 40
    s_mul_i32 s37, s31, 10
    s_add_u32 s36, s36, s37
    s_mul_i32 s37, s39, 5
    s_add_u32 s36, s36, s37
    s_lshl_b32 s36, s36, 10          ; h soffset
    s_mul_i32 s37, s3, 20480
    s_add_u32 s37, s37, {RED}
    v_add_u32 v11, s37, v4
    v_lshlrev_b32 v13, 4, v14
    v_and_b32 v2, 1, v15
    v_lshl_add_u32 v2, v2, 9, v13    ; row*16 + (q0&1)*512
    v_lshrrev_b32 v3, 1, v15
    v_lshl_add_u32 v12, v3, 10, v2
    s_mul_i32 s37, s39, 10240
    s_add_u32 s37, s37, {RED}
    v_add_u32 v12, s37, v12
    v_lshl_add_u32 v2, v3, 3, v2     ; h voffset
    s_lshl_b32 s38, s30, 11
    s_lshl_b32 s37, s31, 9
    s_add_u32 s38, s38, s37
    s_lshl_b32 s37, s39, 3
    s_add_u32 s38, s38, s37
    s_lshl_b32 s4, s30, 2
    s_add_u32 s4, s4, s31
    s_lshl_b32 s4, s4, 7
    {K3MAP[OPT['map34']].replace('s30', 's64').replace('s31', 's67').replace('s32', 's37')}
    s_lshl_b32 s6, s64, 2
    s_add_u32 s6, s6, s3
    s_lshl_b32 s60, s6, 9
    s_lshl_b32 s6, s64, 4
    s_add_u32 s6, s6, s67
    s_lshl_b32 s6, s6, 7
    s_add_u32 s6, s6, {FL_G}
    s_mul_i32 s67, s67, 7            ; j0
    s_mul_i32 s65, s67, {40*1024}    ; W base
    s_lshl_b32 s66, s3, 10           ; w*1024
    v_add_u32 v246, s66, v4
    """)
    P1 = 3; LOOK = 3; per_gap = OPT['pg3']
    SLOT = 24576; CSB = 5*SLOT
    slots = []
    for sg in range(5):
        slots.append(dict(steps=[(c, u, (c*8 + (u & 7))*1024) for u in range(8*sg, 8*sg+8) for c in range(P1)],
                          dma=[(c, 8*sg + 4*h, (c*8 + 4*h)*1024) for h in range(2) for c in range(P1)]))
    for c in range(P1, 7):
        for hf in range(2):
            slots.append(dict(steps=[(c, u, (u - 20*hf)*1024) for u in range(20*hf, 20*hf+20)],
                              dma=[(c, 20*hf + 4*i, 4*i*1024) for i in range(5)]))
    def dma(k, vreg):
        return [(f"s_add_u32 m0, s66, {(k%5)*SLOT + pos}\n s_add_u32 s7, s65, {(c*40 + u0)*1024}\n"
                 f"buffer_load_dwordx4 v{vreg}, s[68:71], s7 offen lds", f"slot{k}") for (c, u0, pos) in slots[k]["dma"]]
    O = 16; D0 = 56; ACC = 88; XR = 216; XU = 226
    def cvt(p):
        for i in range(6):
            for hh in range(2):
                b = KVR + 24*(p & 1) + 12*hh
                kb(f"v_cvt_pk_bf16_f32 v{b+i}, v{b+2*i}, v{b+2*i+1}")
    def mm(p, tail):
        for hh in range(2):
            d = V(D0 + 16*hh, 16); k = KVR + 24*(p & 1) + 12*hh; q = PQA + 6*(2*p + hh)
            if not tail: kb(f"v_mfma_f32_32x32x16_bf16 {d}, {V(k,4)}, {A(q,4)}, 0")
            else: kb(f"v_mfma_f32_32x32x8_bf16 {d}, {V(k+4,2)}, {A(q+4,2)}, {d}")
    def post(p):
        e = D0; o = e + 16; L = []
        L += [f"v_add_f32 v{e+12}, {EPS6}, v{e+12}", f"v_add_f32 v{o+12}, {EPS6}, v{o+12}",
              f"v_rcp_f32 v{e+12}, v{e+12}", f"v_rcp_f32 v{o+12}, v{o+12}"]
        for i in range(0, 12, 2): L.append(f"v_pk_mul_f32 {V(e+i,2)}, {V(e+i,2)}, {V(e+12,2)} op_sel_hi:[1,0]")
        for i in range(0, 8, 2): L.append(f"v_pk_mul_f32 {V(o+i,2)}, {V(o+i,2)}, {V(o+12,2)} op_sel_hi:[1,0]")
        for i in range(8, 12, 2): L.append(f"v_pk_fma_f32 {V(e+i,2)}, {V(o+i,2)}, {V(o+12,2)}, {V(e+i,2)} op_sel_hi:[1,0,1]")
        dst = O + 10*p
        for j, src in [(0, e), (1, e+4), (3, o), (4, o+4), (2, e+8)]:
            L.append(f"v_cvt_pk_bf16_f32 v{dst+2*j}, v{src}, v{src+1}")
            L.append(f"v_cvt_pk_bf16_f32 v{dst+2*j+1}, v{src+2}, v{src+3}")
        for l in L: kb(l)
    def gemm(kap):
        for nt in range(5):
            d = V(ACC + 16*nt, 16)
            kb(f"v_mfma_f32_32x32x16_bf16 {d}, {A(4*(kap*5+nt),4)}, {V(O+4*kap,4)}, {d if kap else '0'}")
    for i in range(5): kb(f"buffer_load_dwordx2 {V(XR+2*i,2)}, v10, s[52:55], s35 offen offset:{i*32}")
    poll(kb, f"{n}_wk", 48, "s5", 247, 26, 1, first_issued=True, slow=61, slp=2)
    poll(kb, f"{n}_wu", 48, "s34", 248, 28, 1, first_issued=True, slp=8)
    stampT(kb, 4)
    ring = dma(0, 246) + dma(1, 246) + dma(2, 246)
    def rl(k):
        for _ in range(k):
            if ring: t, tag = ring.pop(0); kb(t, tag)
    kvl(0); kvl(1); rl(4)
    cvt(0); mm(0, False); rl(2); mm(0, True); kvl(2); cvt(1); post(0)
    mm(1, False); gemm(0); mm(1, True); kvl(3); gemm(1); post(1); rl(3)
    cvt(2); mm(2, False); gemm(2); mm(2, True); rl(3); gemm(3); post(2); rl(3)
    gemm(4); cvt(3); mm(3, False); gemm(5); mm(3, True); rl(3); gemm(6); post(3)
    for i in range(5):
        x = XR + 2*i; u = XU + 4*i
        kb(f"""
        v_lshlrev_b32 v{u}, 16, v{x}
        v_and_b32 v{u+1}, 0xffff0000, v{x}
        v_lshlrev_b32 v{u+2}, 16, v{x+1}
        v_and_b32 v{u+3}, 0xffff0000, v{x+1}
        """)
    for nt in range(5):
        d = V(ACC + 16*nt, 16)
        for kap in (7, 8, 9):
            kb(f"v_mfma_f32_32x32x16_bf16 {d}, {A(4*(kap*5+nt),4)}, {V(O+4*kap,4)}, {d}")
        if nt >= 1:
            for q in range(4): kb(f"ds_write_b128 v11, {V(ACC+16*(nt-1)+4*q,4)} offset:{((nt-1)*4+q)*1024}")
    rl(18)
    kb("v_add_u32 v14, 40960, v12\n v_mov_b32 v100, 0\n v_mov_b32 v101, 0\n v_mov_b32 v102, 0\n v_mov_b32 v103, 0")
    for q in range(4): kb(f"ds_write_b128 v11, {V(ACC+64+4*q,4)} offset:{(16+q)*1024}")
    kb("s_waitcnt lgkmcnt(0)\n s_barrier")
    T = 16
    for i in range(5):
        for w in range(4):
            a, o = ("v12", w*20480) if w < 2 else ("v14", (w-2)*20480)
            kb(f"ds_read_b128 {V(T+(i*4+w)*4,4)}, {a} offset:{o + i*2048}")
    for i in range(5):
        a = T + i*16; u = XU + 4*i
        kb(f"""
        v_pk_add_f32 {V(a,2)}, {V(a,2)}, {V(u,2)}
        v_pk_add_f32 {V(a+2,2)}, {V(a+2,2)}, {V(u+2,2)}
        v_pk_add_f32 {V(a+4,2)}, {V(a+4,2)}, {V(a+8,2)}
        v_pk_add_f32 {V(a+6,2)}, {V(a+6,2)}, {V(a+10,2)}
        v_pk_add_f32 {V(a,2)}, {V(a,2)}, {V(a+12,2)}
        v_pk_add_f32 {V(a+2,2)}, {V(a+2,2)}, {V(a+14,2)}
        v_pk_add_f32 {V(a,2)}, {V(a,2)}, {V(a+4,2)}
        v_pk_add_f32 {V(a+2,2)}, {V(a+2,2)}, {V(a+6,2)}
        v_cvt_pk_bf16_f32 v{a+4}, v{a}, v{a+1}
        v_cvt_pk_bf16_f32 v{a+5}, v{a+2}, v{a+3}
        v_pk_add_f32 v[100:101], v[100:101], {V(a,2)}
        v_pk_fma_f32 v[102:103], {V(a,2)}, {V(a,2)}, v[102:103]
        """)
        kb(f"buffer_store_dwordx2 {V(a+4,2)}, v2, s[56:59], s36 offen offset:{(i&3)*1024} sc1", "pubA")
        kb(f"""
        v_pk_add_f32 v[100:101], v[100:101], {V(a+2,2)}
        v_pk_fma_f32 v[102:103], {V(a+2,2)}, {V(a+2,2)}, v[102:103]
        """)
        if i == 3: kb("s_add_u32 s36, s36, 4096")
    kb("""
    v_add_f32 v100, v100, v101
    v_add_f32 v101, v102, v103
    v_add_f32_dpp v100, v100, v100 quad_perm:[1,0,3,2] row_mask:0xf bank_mask:0xf
    v_add_f32_dpp v101, v101, v101 quad_perm:[1,0,3,2] row_mask:0xf bank_mask:0xf
    v_add_f32_dpp v100, v100, v100 quad_perm:[2,3,0,1] row_mask:0xf bank_mask:0xf
    v_add_f32_dpp v101, v101, v101 quad_perm:[2,3,0,1] row_mask:0xf bank_mask:0xf
    s_mov_b32 exec_lo, 0x11111111
    s_mov_b32 exec_hi, 0x11111111
    """)
    kb("buffer_store_dwordx2 v[100:101], v13, s[72:75], s38 offen sc1", "pubA")
    kb("s_mov_b64 exec, -1")
    kb(f"""
    s_lshl_b32 s34, s64, 2
    s_add_u32 s34, s34, s3           ; R
    v_lshlrev_b32 v2, 4, v1          ; l*16
    v_mov_b32 v3, v246
    v_add_u32 v4, 0x10000, v2
    v_and_b32 v5, 31, v1
    v_lshlrev_b32 v5, 4, v5
    v_lshrrev_b32 v6, 5, v1
    v_lshl_add_u32 v5, v6, 10, v5
    v_and_b32 v7, 3, v1
    v_lshlrev_b32 v7, 7, v7
    v_mov_b32 v24, 0
    s_lshl_b32 s36, s34, 11
    s_mul_i32 s37, s34, {40*1024}    ; h soffset
    s_mul_i32 s35, s34, 108
    s_add_u32 s35, s35, s67
    s_lshl_b32 s35, s35, 10
    s_cmp_ge_u32 s67, 105
    s_cselect_b32 s33, {BIG}, s35
    s_add_u32 s38, s67, s3
    s_lshl_b32 s38, s38, 10
    s_add_u32 s39, s38, 4096
    """)
    srd(kb, 40, P_WS, OFF_CS, SZ_CS); srd(kb, 52, P_WS, OFF_G, SZ_G)
    stampT(kb, 5)
    kb.wait_vm("pubA")
    kb("s_barrier")
    wflag(kb, f"{n}_pa", 48, "s4", 24, 25, 1)
    for t, tag in dma(3, 3): kb(t, tag)
    poll(kb, f"{n}_wa", 48, "s60", 7, 26, 1)
    stampT(kb, 6)
    for i in range(2): kb(f"buffer_load_dwordx4 {V(112+4*i,4)}, v5, s[72:75], s36 offen offset:{512*i}{LD}")
    def hload(u):
        t = "s_add_u32 s37, s37, 4096\n" if (u % 4 == 0 and u > 0) else ""
        return t + f"buffer_load_dwordx4 {A(4*u,4)}, v2, s[56:59], s37 offen offset:{(u&3)*1024}{LD}"
    H0 = OPT['h0_t']
    for u in range(H0): kb(hload(u))
    early_dma = dma(4, 3) + [
        (f"s_add_u32 m0, s66, {CSB}\n buffer_load_dwordx4 v2, s[40:43], s38 offen lds", "slot4"),
        (f"s_add_u32 m0, s66, {CSB+4096}\n buffer_load_dwordx4 v2, s[40:43], s39 offen lds", "slot4")]
    kb(f"""
    {K4MAP[OPT['map34']].replace('s33', 's36').replace('s32', 's61')}
    s_mul_i32 s32, s31, 54
    s_mul_i32 s36, s3, 14
    s_add_u32 s32, s32, s36
    s_mul_i32 s32, s32, 5120
    s_and_b32 s36, s31, {1 if OPT['rotc'] else 0}
    s_mul_i32 s61, s36, {7*5120}
    s_add_u32 s8, s32, s61
    s_sub_u32 s9, s32, s61
    s_add_u32 s9, s9, {7*5120}
    s_cmp_eq_u32 s3, 3
    s_cselect_b32 s61, 1, 5
    s_add_u32 s62, s36, 0
    s_cmp_eq_u32 s61, s62
    s_cselect_b32 s10, {BIG}, s8
    s_add_u32 s62, s36, 1
    s_cmp_eq_u32 s61, s62
    s_cselect_b32 s11, {BIG}, s9
    s_mul_i32 s12, s30, {2*108*1024}
    s_mul_i32 s61, s3, {14*2048}
    s_add_u32 s12, s12, s61
    s_mul_i32 s61, s36, {7*2048}
    s_sub_u32 s13, s12, s61
    s_add_u32 s13, s13, {7*2048}
    s_add_u32 s12, s12, s61
    s_cmp_eq_u32 s10, {BIG}
    s_cselect_b32 s14, {BIG}, s12
    s_cmp_eq_u32 s11, {BIG}
    s_cselect_b32 s15, {BIG}, s13
    s_lshr_b32 s5, s30, 1
    s_lshl_b32 s5, s5, 2
    s_add_u32 s5, s5, s3
    s_lshl_b32 s5, s5, 9
    s_add_u32 s5, s5, {FL_G}
    v_add_u32 v15, 1024, v2
    """)
    srd(kb, 44, P_WS, OFF_WD, SZ_WD)
    kb(f"s_mov_b32 s4, {FL_D}\n v_min_u32 v23, 19, v1\n v_lshlrev_b32 v23, 2, v23\n buffer_load_dword v27, v23, s[48:51], s4 offen sc1")
    NPF = OPT['npf']
    def wdreg(f):
        if f < 29: return V(140 + 4*f, 4)
        if f < 45: return A(192 + 4*(f - 29), 4)
        return A(4*(f - 45), 4)
    KORD = [(0,0), (0,1), (0,4), (0,5), (1,0), (1,1), (1,4), (1,5), (0,2), (0,3), (0,6), (1,2), (1,3), (1,6)]; NEARLY = 8
    def wdload(f):
        hf, T = KORD[f // 5]
        if f % 5 == 0: return f"s_add_u32 s63, s{8 + hf + (2 if T >= 5 else 0)}, {T*5120}\n buffer_load_dwordx4 {wdreg(f)}, v2, s[44:47], s63 offen"
        return f"buffer_load_dwordx4 {wdreg(f)}, v15, s[44:47], s63 offen offset:{(f%5-1)*1024}"
    kb("""
    v_pk_add_f32 v[112:113], v[112:113], v[114:115]
    v_pk_add_f32 v[116:117], v[116:117], v[118:119]
    v_pk_add_f32 v[8:9], v[112:113], v[116:117]
    v_mov_b32 v10, v8
    v_mov_b32 v11, v9
    v_permlane32_swap_b32 v8, v10
    v_permlane32_swap_b32 v9, v11
    v_add_f32 v8, v8, v10
    v_add_f32 v9, v9, v11
    """)
    RSTD = 6
    ln_scalars(kb, 8, 9, 10, RSTD, 11)
    K1_, K2_, IR2 = 20, 21, 22
    kb(f"""
    v_xor_b32 v10, 0x80000000, v10
    v_lshrrev_b32 v17, 16, v10
    v_or_b32 v16, v10, v17
    v_mov_b32 v18, 0
    v_mov_b32 v19, 0
    v_mul_f32 v{K1_}, {hex(f2u(-2*LOG2E*0.7978845608028654))}, v{RSTD}
    v_mul_f32 v{K2_}, v{RSTD}, v{RSTD}
    v_mul_f32 v{K2_}, v{K2_}, v{K1_}
    v_mul_f32 v{K2_}, {hex(f2u(0.044715))}, v{K2_}
    v_mul_f32 v{IR2}, v11, v11
    """)
    XE = 16; ACC0 = 32; NACC = 5; TMP = 112; NBF = 8; WF = 160
    steps = []
    for k, sl in enumerate(slots):
        for (c, u, pos) in sl["steps"]:
            steps.append((c, u, k, (k % 5)*SLOT + pos))
            if u == 39: steps.append((c, 40, None, CSB + c*1024))
    def epi(c):
        a = ACC0 + 16*(c % NACC); o = TMP + 16*(c % 2); L = []; W = 4; pend = []
        for p0 in range(0, 8, W):
            E = [(a + (e >> 2)*8 + (e & 3), o + 4 + e) for e in range(p0, p0 + W)]
            for g, t in E: L.append(f"v_mul_f32 v{t}, v{g}, v{g}")
            for g, t in E: L.append(f"v_fma_f32 v{t}, v{t}, v{K2_}, v{K1_}")
            for g, t in E: L.append(f"v_mul_f32 v{t}, v{t}, v{g}")
            for g, t in E: L.append(f"v_exp_f32 v{t}, v{t}")
            for g, t in E: L.append(f"v_mul_f32 v{g}, v{g}, v{g+4}")
            for g, t in E: L.append(f"v_fma_f32 v{t}, v{t}, v{IR2}, v{IR2}")
            for g, t in E: L.append(f"v_rcp_f32 v{t}, v{t}")
            L += pend
            for g, t in E: L.append(f"v_mul_f32 v{g}, v{g}, v{t}")
            pend = [f"v_cvt_pk_bf16_f32 v{o+(p0+e)//2}, v{E[e][0]}, v{E[e][0]+1}" for e in range(0, W, 2)]
        L += pend
        L = [(t, f"epi{c}") for t in L]
        sreg, off = (35, c*1024) if c < 3 else (33, (c-3)*1024)
        if c == 3: L.append(("s_add_u32 s33, s33, 3072", f"epi{c}"))
        L.append((f"buffer_store_dwordx4 {V(o,4)}, v2, s[52:55], s{sreg} offen offset:{off} sc1", "pubE" if c <= 4 else "pubB"))
        return L
    def weight(t): return sum(2 if ("exp" in l or "rcp" in l) else 1 for l in t.strip().split("\n"))
    ready = -1; fill = []; vm_next = 0; issued = 5; pfn = 0
    vmq = []
    hq = [(hload(u), None) for u in range(H0, 40)]
    while hq or early_dma:
        vmq += hq[:2]; hq = hq[2:]
        vmq += early_dma[:1]; early_dma = early_dma[1:]
    def rd(s):
        nonlocal ready, issued, pfn
        c, u, k, off = steps[s]
        if k is not None and k > ready:
            ready = k
            while any(tg == f"slot{k}" for _, tg in vmq):
                t, tg = vmq.pop(0); kb(t, tg)
            kb.wait_vm(f"slot{k}")
            if k == 12:
                assert not any(tg in ("epi4", "pubE") for _, _, tg in fill), "chunk 4 not stored yet"
                kb.wait_vm("pubE")
            kb("s_barrier")
            if k == 12: wflag(kb, f"{n}_pe", 48, "s6", 24, 25, 1)
            if k == 5: OPT['dgk'] or stampT(kb, 7)
            while issued <= k + LOOK and issued < len(slots):
                vmq.extend(dma(issued, 3)); issued += 1
            if k == 1: poll(kb, f"{n}_wd", 48, "s4", 23, 27, 1, first_issued=True, slp=8)
            if k >= OPT['pf0']:
                want = min(NPF, (k - OPT['pf0'] + 1)*OPT['pfr'])
                while pfn < want: vmq.append((wdload(pfn), None)); pfn += 1
        a, o = ("v2", off) if off < 65536 else ("v4", off - 65536)
        return f"ds_read_b128 {A(WF + 4*(s % NBF), 4)}, {a} offset:{o}"
    first = set(); pubE_at = None
    for s in range(NBF - 1): kb(rd(s))
    for s, (c, u, k, off) in enumerate(steps):
        R = rd(s + NBF - 1) if s + NBF - 1 < len(steps) else None
        d = V(ACC0 + 16*(c % NACC), 16)
        b = A(4*u, 4) if u < 40 else V(XE, 4)
        while u < 40 and any(b + "," in t for t, _ in vmq):
            t, tg = vmq.pop(0); kb(t, tg)
        if c not in first: assert not any(tg == f"epi{c-NACC}" for _, _, tg in fill), "acc reuse"
        kb(f"v_mfma_f32_32x32x16_bf16 {d}, {A(WF + 4*(s % NBF), 4)}, {b}, {d if c in first else '0'}")
        if R: kb(R)
        first.add(c)
        if u == 40: fill += [(s + 4, t, tg) for t, tg in epi(c)]
        kk = 0; budget = per_gap + (s & 1)
        if vmq and s*16 >= vm_next:
            t, tag = vmq.pop(0); kb(t, tag); kk += weight(t); vm_next = max(vm_next, s*16 - 16) + OPT['vpt']
        while fill and fill[0][0] <= s and kk + weight(fill[0][1]) <= max(budget, weight(fill[0][1]) if kk == 0 else 0):
            _, t, tag = fill.pop(0); kb(t, tag); kk += weight(t)
        if s % 2 == 0 and s + NBF + 1 < len(steps): kb(f"s_waitcnt lgkmcnt({NBF-3})")
    OPT['dgk'] or stampT(kb, 8)
    for t, tag in vmq: kb(t, tag)
    kb(f"buffer_load_dword v26, v7, s[48:51], s5 offen sc1")
    kb(f"""
    v_and_b32 v14, 15, v1            ; m
    v_lshrrev_b32 v3, 4, v1          ; c
    v_lshlrev_b32 v4, 4, v14
    v_lshl_add_u32 v4, v3, 9, v4     ; voff g  (c*512 + m*16)
    v_add_u32 v5, {108*1024}, v4
    v_lshrrev_b32 v8, 2, v1
    v_and_b32 v9, 3, v1              ; q0
    s_lshl_b32 s36, s3, 4
    v_add_u32 v8, s36, v8
    v_and_b32 v10, 31, v8
    v_lshlrev_b32 v10, 4, v10
    v_and_b32 v11, 1, v9
    v_lshl_add_u32 v10, v11, 9, v10
    v_lshrrev_b32 v11, 1, v9
    v_lshl_add_u32 v10, v11, 3, v10
    s_lshr_b32 s37, s3, 1
    s_lshl_b32 s38, s30, 1
    s_add_u32 s37, s37, s38          ; R
    s_mul_i32 s37, s37, 40
    s_mul_i32 s38, s31, 5
    s_add_u32 s37, s37, s38
    s_lshl_b32 s37, s37, 10
    s_add_u32 s38, s37, 4096
    v_mul_u32_u24 v11, 336, v8
    v_lshl_add_u32 v11, v9, 4, v11
    v_mul_u32_u24 v12, 336, v14
    v_lshl_add_u32 v12, v3, 4, v12
    s_mul_i32 s39, s3, 21504
    v_add_u32 v12, s39, v12
    v_mul_u32_u24 v13, 1280, v8
    v_lshl_add_u32 v13, v9, 3, v13
    s_mul_i32 s39, s30, {64*1280}
    s_mul_i32 s36, s31, 160
    s_add_u32 s39, s39, s36
    """)
    srd(kb, 40, P_OUT, 0, 2048*1280)
    for _, t, tag in fill: kb(t, tag)
    poll(kb, f"{n}_wb", 48, "s5", 7, 26, 1, first_issued=True)
    OPT['dgk'] or stampT(kb, 9)
    NB = 5; GB = 100; ACC = 32; HU = 112
    def gloads(i):
        b = GB + 16*(i % NB); L = []; hf, T = KORD[i]
        L.append(f"s_add_u32 s61, s{12 + hf + (2 if T >= 5 else 0)}, {T*2048}\n buffer_load_dwordx4 {A(b,4)}, v4, s[52:55], s61 offen{LD}")
        L.append(f"buffer_load_dwordx4 {A(b+4,4)}, v4, s[52:55], s61 offen offset:256{LD}")
        L.append(f"buffer_load_dwordx4 {A(b+8,4)}, v5, s[52:55], s61 offen{LD}")
        L.append(f"buffer_load_dwordx4 {A(b+12,4)}, v5, s[52:55], s61 offen offset:256{LD}")
        return L
    for i in range(2):
        for l in gloads(i): kb(l)
    kb.wait_vm("pubB"); kb("s_barrier")
    wflag(kb, f"{n}_pb", 48, "s6", 24, 25, 2)
    for i in range(2, NB - 1):
        for l in gloads(i): kb(l)
    for i in range(5):
        kb(f"buffer_load_dwordx2 {V(16+2*i,2)}, v10, s[56:59], s{37 if i < 4 else 38} offen offset:{(i&3)*1024}{LD}")
    for i in range(14):
        if i + NB - 1 == NEARLY - 2: kb(f"buffer_load_dword v26, v7, s[48:51], s5 offen sc1")
        if i + NB - 1 == NEARLY: poll(kb, f"{n}_wc", 48, "s5", 7, 26, 2, first_issued=True)
        L = gloads(i + NB - 1) if i + NB - 1 < 14 else []
        if pfn < 70:
            L = L + [wdload(f) for f in range(pfn, pfn + 5)]; pfn += 5
        if i == 12:
            for j in range(5):
                L += [f"v_lshlrev_b32 v{HU+4*j}, 16, v{16+2*j}\n v_and_b32 v{HU+4*j+1}, 0xffff0000, v{16+2*j}",
                      f"v_lshlrev_b32 v{HU+4*j+2}, 16, v{17+2*j}\n v_and_b32 v{HU+4*j+3}, 0xffff0000, v{17+2*j}"]
        b = GB + 16*(i % NB); k = 0; done = []
        for mt in range(4):
            for t in range(5):
                d = V(ACC + (mt*5+t)*4, 4)
                kb(f"v_mfma_f32_16x16x32_bf16 {d}, {wdreg(5*i+t)}, {A(b+4*mt,4)}, {'0' if i == 0 else d}")
                if k % 2 == 1 and L: kb(L.pop(0))
                if i == 13:
                    done.append(f"ds_write_b128 v12, {d} offset:{mt*16*336 + t*64}")
                    if len(done) > 6: kb(done.pop(0))
                k += 1
        assert not L
    OPT['dgk'] or stampT(kb, 10)
    for t in done: kb(t)
    kb("s_waitcnt lgkmcnt(0)\n s_barrier")
    for i in range(5):
        for w in range(4):
            kb(f"ds_read_b128 {V(ACC+(i*4+w)*4,4)}, v11 offset:{w*21504 + i*64}")
    for i in range(5):
        a = ACC + i*16; u = HU + 4*i
        kb(f"""
        v_pk_add_f32 {V(a,2)}, {V(a,2)}, {V(a+4,2)}
        v_pk_add_f32 {V(a+2,2)}, {V(a+2,2)}, {V(a+6,2)}
        v_pk_add_f32 {V(a+8,2)}, {V(a+8,2)}, {V(a+12,2)}
        v_pk_add_f32 {V(a+10,2)}, {V(a+10,2)}, {V(a+14,2)}
        v_pk_add_f32 {V(a,2)}, {V(a,2)}, {V(a+8,2)}
        v_pk_add_f32 {V(a+2,2)}, {V(a+2,2)}, {V(a+10,2)}
        v_cvt_pk_bf16_f32 v{a+4}, v{a}, v{a+1}
        v_cvt_pk_bf16_f32 v{a+5}, v{a+2}, v{a+3}
        v_lshlrev_b32 v{a}, 16, v{a+4}
        v_and_b32 v{a+1}, 0xffff0000, v{a+4}
        v_lshlrev_b32 v{a+2}, 16, v{a+5}
        v_and_b32 v{a+3}, 0xffff0000, v{a+5}
        v_pk_add_f32 {V(a,2)}, {V(a,2)}, {V(u,2)}
        v_pk_add_f32 {V(a+2,2)}, {V(a+2,2)}, {V(u+2,2)}
        v_cvt_pk_bf16_f32 v{a+4}, v{a}, v{a+1}
        v_cvt_pk_bf16_f32 v{a+5}, v{a+2}, v{a+3}
        buffer_store_dwordx2 {V(a+4,2)}, v13, s[40:43], s39 offen offset:{i*32}
        """)
    if gen.DIAG:
        kb.fence()
        kb("s_waitcnt vmcnt(0) lgkmcnt(0)")
        stampT(kb, 11)
        kb("s_memtime s[74:75]\n s_waitcnt lgkmcnt(0)\n s_sub_u32 s100, s74, s100")
        srd(kb, 40, P_WS, OFF_TS + 65536, 65536)
        kb("s_lshl_b32 s44, s2, 2\n s_add_u32 s44, s44, s3\n s_lshl_b32 s44, s44, 6")
        for i in range(13): kb(f"v_mov_b32 v{8+i}, s{76+2*i}")
        kb("v_mov_b32 v2, s44\n s_mov_b64 exec, 1")
        for i in range(4): kb(f"buffer_store_dwordx4 v[{8+4*i}:{11+4*i}], v2, s[40:43], 0 offen offset:{16*i}")

OPT.update(ped=12, rotc=0)
```

```python
import sys, os, gen
gen.DIAG = int(os.environ.get('DIAG', '0'))
import genm, phases
for kv in os.environ.get('OPT', '').split(','):
    if kv: gen.OPT[kv.split('=')[0]] = int(kv.split('=')[1])
HEADER = open("sequential_preLN__linear_attn_block__geglu_ffn__prompt.s.ref").read().split("; Override launch")[0]
HEADER = "\n".join(l[2:] if l.startswith("; ") else l[1:] for l in HEADER.strip().split("\n"))
NAME = "sequential_preLN__linear_attn_block__geglu_ffn__prompt_kernel"
ks = [genm.km(NAME)]
txt = gen.make_file(ks, HEADER).replace(f"; @launch kernel={NAME} grid", "; @launch grid")
open(sys.argv[1], "w").write(txt)
print("wrote", sys.argv[1], [(k[0].maxv, k[0].maxa, k[0].maxs) for k in ks])
```

```python
import gen
from gen import (KB, V, A, S, srd, ln_scalars, f2u, LOG2E, EPS6, BIG, Rec, k1_stats, k1_main, K3MAP, K4MAP, K1MAP, K1ROT,
                 P_X, P_WQKV, P_WO, P_GATE, P_UP, P_DOWN, P_OUT, P_DBG, P_WS, make_file)
from layouts import *
OPT = gen.OPT
FL_H, FL_G, FL_Q, FL_K = 0, 32768, 65536, 81920
FL_O, FL_U, FL_D = 77824, 78848, 79872

def stampT(kb, i):
    if gen.DIAG: kb(f"{'s_memtime' if gen.DIAG == 2 else 's_memrealtime'} s[{76+2*i}:{77+2*i}]")

def poll(kb, name, srdr, soff, vP, vQ, thr, nld=1, off2=0, first_issued=False, slp=None, eq=None, slow=None):
    ld = f"buffer_load_dword v{vQ}, v{vP}, s[{srdr}:{srdr+3}], {soff} offen sc1"
    if nld == 2: ld += f"\n buffer_load_dword v{vQ+1}, v{vP}, s[{srdr}:{srdr+3}], {soff} offen offset:{off2} sc1"
    chk = (f"v_min_u32 v{vQ}, v{vQ}, v{vQ+1}\n" if nld == 2 else "") + f"v_cmp_gt_u32 vcc, {thr}, v{vQ}"
    if eq is not None: chk = f"v_cmp_ne_u32 vcc, {eq}, v{vQ}"
    extra = f"s_cmp_eq_u32 s{slow}, 0\n s_cbranch_scc1 {name}_f\n s_sleep {OPT['slow']}\n {name}_f:" if slow else ""
    if not first_issued: kb(ld)
    kb(f"{chk}\n s_mov_b32 s7, 0\n s_cbranch_vccz {name}_ok")
    kb.uncounted = True
    kb(f"""
    {name}:
    s_sleep {slp or OPT['slp']}
    {extra}
    {ld}
    s_add_u32 s7, s7, 1
    s_waitcnt vmcnt(0)
    {chk}
    s_cmp_lt_u32 s7, 0x40000
    s_nop 3
    s_cbranch_vccz {name}_ok
    s_cbranch_scc1 {name}
    {name}_ok:
    """)
    kb.uncounted = False

def wflag(kb, lab, srdr, soff, vz, vval, val):
    kb.uncounted = True
    kb(f"s_cmp_eq_u32 s3, 0\n s_cbranch_scc0 {lab}\n {flag(srdr, soff, vz, vval, val)}\n {lab}:")
    kb.uncounted = False

def flag(srdr, soff, vz, vval, val, op="dword"):
    return f"""v_mov_b32 v{vval}, {val}
    s_mov_b64 exec, 1
    buffer_store_{op} v{vval}, v{vz}, s[{srdr}:{srdr+3}], {soff} offen sc1
    s_mov_b64 exec, -1"""

def announce(kb, lab, sidx, floff, tmp=40):
    kb(f"s_waitcnt vmcnt(0)\n s_barrier\n s_cmp_eq_u32 s3, 0\n s_cbranch_scc0 {lab}")
    poll(kb, f"{lab}_z", 52, "0", 16, 18, 1, slp=8)
    kb.uncounted = True
    srd(kb, 48, P_WS, OFF_FL + floff, 128)
    kb(f"s_lshl_b32 s{tmp}, s{sidx}, 2\n {flag(48, f's{tmp}', 16, 18, 1)}\n {lab}:")
    kb.uncounted = False

def relayout2(kb, n, nxt, wo_early, nxt2):
    ST = " sc1"; NB = 6
    kb(f"""
    v_lshrrev_b32 v2, 3, v1          ; l>>3
    v_and_b32 v3, 7, v1
    v_lshlrev_b32 v3, 4, v3
    v_lshlrev_b32 v4, 4, v1
    v_bfe_u32 v5, v1, 2, 2           ; r
    v_and_b32 v6, 3, v1              ; c'
    v_lshrrev_b32 v7, 5, v1          ; hi
    v_bfe_u32 v8, v1, 4, 1           ; nb
    s_lshl_b32 s44, s3, 10
    s_cmp_lt_u32 s29, 27
    s_cbranch_scc0 {n}_rl_notg
    v_mul_u32_u24 v9, 3456, v2
    v_add_u32 v9, v9, v3
    s_mul_i32 s43, s3, {8*3456}
    s_lshl_b32 s45, s29, 7
    s_add_u32 s43, s43, s45
    s_waitcnt lgkmcnt(0)
    """)
    srd(kb, 48, P_GATE, 0, 640*3456); srd(kb, 64, P_UP, 0, 640*3456)
    if OPT['dly']:
        srd(kb, 52, P_DBG, 0, 256); poll(kb, f"{n}_dg", 52, "0", 16, 18, 1, slp=16)
    for eta in range(2):
        for i in range(10):
            for mtx in range(2):
                kb(f"s_add_u32 m0, s44, {eta*81920 + i*4096 + mtx*40960}")
                kb(f"buffer_load_dwordx4 v9, s[{48+16*mtx}:{51+16*mtx}], s43 offen lds", f"u{eta}")
            kb(f"s_add_u32 s43, s43, {32*3456}")
    srd(kb, 56, P_WS, OFF_WGU, SZ_WGU); srd(kb, 60, P_WS, OFF_CS, SZ_CS); srd(kb, 52, P_DBG, 0, 256)
    kb(f"""
    v_lshrrev_b32 v10, 1, v6
    v_mul_u32_u24 v10, 40960, v10
    v_lshl_add_u32 v11, v7, 2, v5
    v_lshl_add_u32 v10, v11, 7, v10
    v_lshl_add_u32 v10, v8, 4, v10
    v_and_b32 v11, 1, v6
    v_lshl_add_u32 v10, v11, 3, v10
    s_lshl_b32 s45, s3, 5
    v_add_u32 v10, s45, v10
    v_add_u32 v11, 81920, v10
    v_mov_b32 v12, 0x3f803f80
    v_mov_b32 v13, 0x3f803f80
    v_mov_b32 v14, 0x3f803f80
    v_mov_b32 v15, 0x3f803f80
    s_lshl_b32 s45, s29, 2
    s_add_u32 s45, s45, s3           ; chunk j
    s_mul_i32 s46, s45, {40*1024}
    s_lshl_b32 s45, s45, 10
    """)
    for eta in range(2):
        kb.wait_vm(f"u{eta}"); kb("s_barrier")
        def rd(u):
            b = 64 + 4*(u % NB)
            kb(f"ds_read_b64_tr_b16 {V(b,2)}, v{10+eta} offset:{u*2048}")
            kb(f"ds_read_b64_tr_b16 {V(b+2,2)}, v{10+eta} offset:{u*2048+1024}")
        for u in range(NB-1): rd(u)
        acc = V(32 + 16*eta, 16)
        for u in range(20):
            if u + NB - 1 < 20: rd(u + NB - 1)
            b = 64 + 4*(u % NB)
            kb(f"v_mfma_f32_32x32x16_bf16 {acc}, v[12:15], {V(b,4)}, {'0' if u == 0 else acc}")
            kb(f"buffer_store_dwordx4 {V(b,4)}, v4, s[56:59], s46 offen offset:{(u&3)*1024}{ST}")
            if (u & 3) == 3: kb("s_add_u32 s46, s46, 4096")
    kb(f"""
    v_cmp_eq_u32 vcc, 1, v7
    v_cndmask_b32 v32, v32, v48, vcc
    v_cvt_pk_bf16_f32 v48, v32, v32
    v_lshlrev_b32 v48, 16, v48
    v_sub_f32 v33, v32, v48
    v_cvt_pk_bf16_f32 v48, v33, v33
    v_lshlrev_b32 v48, 16, v48
    v_sub_f32 v34, v33, v48
    v_cvt_pk_bf16_f32 v36, v32, v33
    v_cvt_pk_bf16_f32 v37, v34, v32
    v_cvt_pk_bf16_f32 v38, v33, v34
    v_mov_b32 v39, v36
    buffer_store_dwordx4 v[36:39], v4, s[60:63], s45 offen{ST}
    """)
    announce(kb, f"{n}_ag", 29, FL_U)
    kb(f"s_branch {nxt}\n {n}_rl_notg:")
    kb.fence()
    kb(f"""
    v_mul_u32_u24 v9, 1280, v2
    v_add_u32 v9, v9, v3
    v_lshlrev_b32 v20, 4, v7
    v_lshl_add_u32 v20, v8, 2, v20
    v_add_u32 v20, v20, v5
    v_lshlrev_b32 v20, 7, v20
    v_lshl_add_u32 v20, v6, 3, v20
    s_lshl_b32 s45, s3, 5
    v_add_u32 v20, s45, v20
    v_add_u32 v21, 0x10000, v20
    s_waitcnt lgkmcnt(0)
    """)
    srd(kb, 64, P_DOWN, 0, 1728*1280); srd(kb, 68, P_WS, OFF_WD, SZ_WD); srd(kb, 52, P_DBG, 0, 256)
    srd(kb, 48, P_WO, 0, 640*1280); srd(kb, 56, P_WS, OFF_WO, SZ_WO)
    kb(f"""
    s_cmp_gt_u32 s29, 37
    s_cselect_b32 s39, 28, 27
    s_sub_u32 s39, s29, s39          ; oj
    s_lshr_b32 s40, s39, 1           ; sigma
    s_and_b32 s41, s39, 1            ; half
    s_mul_i32 s43, s41, {320*1280}
    s_mul_i32 s45, s3, {8*1280}
    s_add_u32 s43, s43, s45
    s_lshl_b32 s45, s40, 7
    s_add_u32 s43, s43, s45
    """)
    for i in range(10):
        kb(f"s_add_u32 m0, s44, {i*4096}")
        kb(f"buffer_load_dwordx4 v9, s[48:51], s43 offen lds", "u0")
        if i < 9: kb(f"s_add_u32 s43, s43, {32*1280}")
    kb(f"""
    s_lshr_b32 s46, s3, 1
    s_lshl_b32 s47, s41, 1
    s_add_u32 s47, s47, s46          ; w' = 2*half + (w>>1)
    s_and_b32 s41, s3, 1
    """)
    for b_ in range(2):
        kb(f"""
        s_lshl_b32 s45, s40, 1
        s_add_u32 s45, s45, {b_}
        s_mul_i32 s42, s45, 52429
        s_lshr_b32 s42, s42, 18
        s_mul_i32 s43, s42, 5
        s_sub_u32 s45, s45, s43
        s_lshl_b32 s42, s42, 2
        s_add_u32 s42, s42, s47
        s_mul_i32 s42, s42, 50
        s_add_u32 s42, s42, s45
        s_mul_i32 s43, s41, 25
        s_add_u32 s42, s42, s43
        s_lshl_b32 s{74+b_}, s42, 10
        """)
    kb(f"""
    v_lshlrev_b32 v10, 7, v5
    v_lshl_add_u32 v10, v8, 5, v10
    v_lshl_add_u32 v10, v6, 3, v10
    s_mul_i32 s45, s3, {80*128}      ; rows 160*(w>>1) + 80*(w&1)
    v_add_u32 v10, s45, v10
    v_mul_u32_u24 v11, {20*128}, v7
    v_add_u32 v11, v11, v10          ; addrS
    v_lshl_add_u32 v10, v7, 9, v10   ; addrN
    """)
    seq = [(kap, b) for kap in range(5) for b in range(2)]
    kb.wait_vm("u0"); kb("s_barrier")
    def rdO(i):
        kap, b = seq[i]; bb = 64 + 4*(i % NB)
        for h in range(2):
            pi, ss = divmod(2*kap + h, 5)
            kb(f"ds_read_b64_tr_b16 {V(bb+2*h,2)}, v{11 if ss == 2 else 10} offset:{(40*pi + LOFF[ss])*128 + b*64}")
    for i in range(NB-1): rdO(i)
    for i in range(10):
        if i + NB - 1 < 10: rdO(i + NB - 1)
        kap, b = seq[i]; bb = 64 + 4*(i % NB)
        kb(f"buffer_store_dwordx4 {V(bb,4)}, v4, s[56:59], s{74+b} offen{ST}")
        kb(f"s_add_u32 s{74+b}, s{74+b}, 5120")
    announce(kb, f"{n}_ao", 39, FL_O, tmp=41)
    stampT(kb, 1)
    kb(f"""
    s_and_b32 s42, s39, 1
    s_mul_i32 s43, s42, {864*1280}
    s_mul_i32 s45, s3, {8*1280}
    s_add_u32 s43, s43, s45
    s_lshl_b32 s45, s40, 7
    s_add_u32 s43, s43, s45
    """)
    for i in range(27):
        kb(f"s_add_u32 m0, s44, {i*4096}")
        kb(f"buffer_load_dwordx4 v9, s[64:67], s43 offen lds", f"d{i//9}")
        if i < 26: kb(f"s_add_u32 s43, s43, {32*1280}")
    kb(f"""
    s_lshl_b32 s45, s40, 2
    s_add_u32 s45, s45, s3           ; nt
    s_mul_i32 s46, s45, 52429
    s_lshr_b32 s46, s46, 18
    s_mul_i32 s47, s46, 5
    s_sub_u32 s45, s45, s47          ; t
    s_mul_i32 s46, s46, 54
    s_mul_i32 s47, s42, 27
    s_add_u32 s46, s46, s47
    s_mul_i32 s46, s46, 5
    s_add_u32 s46, s46, s45
    s_lshl_b32 s72, s46, 10
    """)
    def rdD(T):
        if T % 9 == 0: kb.wait_vm(f"d{T//9}"); kb("s_barrier")
        if T == 18 and OPT['woe']: wo_early()
        b = 64 + 4*(T % NB)
        a, o = (20, T*4096) if T < 16 else (21, (T-16)*4096)
        kb(f"ds_read_b64_tr_b16 {V(b,2)}, v{a} offset:{o}")
        kb(f"ds_read_b64_tr_b16 {V(b+2,2)}, v{a} offset:{o+1024}")
    for T in range(NB-1): rdD(T)
    for T in range(27):
        if T + NB - 1 < 27: rdD(T + NB - 1)
        b = 64 + 4*(T % NB)
        kb(f"buffer_store_dwordx4 {V(b,4)}, v4, s[68:71], s72 offen{ST}")
        if T < 26: kb(f"s_add_u32 s72, s72, 5120")
    announce(kb, f"{n}_ad", 39, FL_D)
    if OPT['woe']:
        stampT(kb, 2)
        kb(f"s_mov_b32 s39, 1\n s_branch {nxt2}")
    else: kb(f"s_branch {nxt}")

AOFF = 192
def p1_loop(kb, M, areg, tail, mid):
    steps, NS, NBF, WF, issue = M["steps"], M["NS"], M["NBF"], M["WF"], M["issue"]
    SLOT, SETSPAN = M["SLOT"], M["SETSPAN"]
    import re
    def sh(t): return re.sub(r"a\[(\d+):(\d+)\]", lambda m: f"a[{int(m.group(1))+AOFF}:{int(m.group(2))+AOFF}]", t)
    nxt = areg["_free"]; amap = {}
    for k, r in areg.items():
        if k == "_free": continue
        amap[(k, 0)] = r
        for st in range(1, M["nsets"]):
            kb(f"v_add_u32 v{nxt}, {st*SETSPAN}, v{r}"); amap[(k, st)] = nxt; nxt += 1
    M["_vnext"] = nxt
    ready = -1; fill = []; issued = 2
    def lines(L): return [(l.strip(), tag) for t, tag in L for l in t.split("\n") if l.strip()]
    def sync(P):
        nonlocal ready, issued
        ready = P
        while any(tg == f"slot{P}" for _, tg in fill):
            t, tg = fill.pop(0); kb(t, tg)
        kb.wait_vm(f"slot{P}")
        kb("s_waitcnt lgkmcnt(0)\n s_barrier")
        if P == 0: stampT(kb, 1)
        while issued <= P + NS - 1 and issued < 10 and issued <= 2*P + 2:
            fill.extend(lines(issue(issued))); issued += 1
        if P in mid: fill.extend(lines(mid[P]() or []))
        sb = (P % NS)*SLOT; st = sb // SETSPAN; so0 = sb - st*SETSPAN
        for ks in range(2):
            for mt in range(2):
                kb(sh(f"ds_read_b128 {A(16*(P & 1) + 8*ks + 4*mt, 4)}, v{amap[(f'X{ks}', st)]} offset:{so0 + mt*2048}"))
    def rds(s):
        P, (key, o, hs), _ = steps[s]
        if P > ready: sync(P)
        b = WF + 4*(s % NBF); a = amap[key]
        return [sh(f"ds_read_b64_tr_b16 {A(b,2)}, v{a} offset:{o}"), sh(f"ds_read_b64_tr_b16 {A(b+2,2)}, v{a} offset:{o+hs}")]
    for s in range(NBF - 1):
        for t in rds(s): kb(t)
    tail = [l.strip() for t in tail for l in t.split("\n") if l.strip()]
    since = 99
    for s, (P, _, mm) in enumerate(steps):
        R = rds(s + NBF - 1) if s + NBF - 1 < len(steps) else []
        for i, m in enumerate(mm):
            kb(sh(m.replace("FR", A(WF + 4*(s % NBF), 4))))
            k = 2
            if R: kb(R.pop(0)); k = 1
            if i == len(mm) - 1 and s % 2 == 1 and s + NBF < len(steps):
                kb(f"s_waitcnt lgkmcnt({2*NBF - 6})"); k -= 1
            since += 1
            for _ in range(k):
                if fill and fill[0][0].startswith("buffer_load") and since < OPT['dsp']: break
                if fill:
                    t, tg = fill.pop(0); kb(t, tg)
                    if t.startswith("buffer_load"): since = 0
                elif s >= M["nside"] + 2 and tail: kb(tail.pop(0))
    for t, tg in fill: kb(t, tg)
    for t in tail: kb(t)

KVF = [f"""s_lshr_b32 s4, s31, 1
    s_lshl_b32 s4, s4, 7
    s_add_u32 s4, s4, {FL_K}""", f"""s_lshl_b32 s4, s31, 4
    s_add_u32 s4, s4, s30
    s_lshl_b32 s4, s4, 7
    s_add_u32 s4, s4, {FL_K}"""]
def km(name):
    kb = KB(name); n = "km"
    if gen.DIAG:
        for i in range(1, 11): kb(f"s_mov_b32 s{76+2*i}, 0")
        kb("s_memtime s[100:101]")
    stampT(kb, 0)
    kb(f"""
    s_cmp_ge_u32 s2, 256
    s_cbranch_scc1 {n}_end
    s_load_dwordx16 s[8:23], s[0:1], 0
    s_load_dwordx4 s[24:27], s[0:1], 64
    v_lshrrev_b32 v2, 6, v0
    v_and_b32 v1, 63, v0
    v_readfirstlane_b32 s3, v2
    s_and_b32 s28, s2, 7
    s_lshr_b32 s29, s2, 3
    s_cmp_ge_u32 s29, 26
    s_cbranch_scc1 {n}_rl
    {K1MAP[OPT['map1']]}
    {K1ROT[OPT['rot1']]}
    v_and_b32 v2, 15, v1             ; n / m
    v_lshrrev_b32 v3, 4, v1          ; c / g
    v_lshrrev_b32 v8, 3, v1
    v_and_b32 v9, 7, v1
    v_xor_b32 v9, v9, v8
    v_mul_u32_u24 v18, 1280, v8
    v_lshl_add_u32 v18, v9, 4, v18
    s_lshl_b32 s36, s30, 2
    s_add_u32 s6, s36, s3            ; R = 4rb + w
    s_mul_i32 s34, s6, {32*1280}
    s_mov_b32 s36, s34
    s_lshl_b32 s43, s3, 12
    s_cmp_ge_u32 s31, 8
    s_cbranch_scc1 {n}_q
    """)
    def wo_setup():
        srd(kb, 60, P_WS, OFF_WO, SZ_WO)
        kb(f"s_lshr_b32 s5, s2, 6\n s_lshl_b32 s5, s5, 2\n s_add_u32 s5, s5, s3\n s_mul_i32 s5, s5, {50*1024}")
    def wo_load(i, v):
        t = "s_add_u32 s5, s5, 4096\n" if (i % 4 == 0 and i > 0) else ""
        return t + f"buffer_load_dwordx4 {A(4*i,4)}, v{v}, s[60:63], s5 offen offset:{(i&3)*1024}"
    def common2():
        kb(f"""
        v_bfe_u32 v4, v1, 2, 2           ; r
        v_and_b32 v5, 3, v1              ; c'
        v_lshrrev_b32 v6, 1, v3
        v_lshlrev_b32 v6, 4, v6
        v_and_b32 v7, 1, v3
        v_lshl_add_u32 v6, v7, 2, v6
        v_add_u32 v6, v6, v4             ; p0 = 16(g>>1) + 4(g&1) + r
        v_mov_b32 v60, 0x3f803f80
        v_mov_b32 v61, 0x3f803f80
        v_mov_b32 v62, 0x3f803f80
        v_mov_b32 v63, 0x3f803f80
        v_cmp_eq_u32 s[64:65], 1, v5
        v_cmp_eq_u32 s[66:67], 2, v5
        v_cmp_eq_u32 s[68:69], 3, v5
        v_lshl_add_u32 v17, v4, 4, v2
        v_lshlrev_b32 v17, 2, v17
        v_and_b32 v8, 7, v2
        v_xor_b32 v8, v8, v3
        v_lshlrev_b32 v9, 7, v2
        v_add_u32 v9, s43, v9
        v_lshl_add_u32 v25, v8, 4, v9    ; X0
        v_xor_b32 v8, 4, v8
        v_lshl_add_u32 v19, v8, 4, v9    ; X1
        v_mov_b32 v16, 0
        v_lshlrev_b32 v200, 4, v1        ; l*16
        """)
        srd(kb, 52, P_DBG, 0, 256)
        wo_setup()
        srd(kb, 72, P_WS, OFF_FL, SZ_FL)
        kb(f"s_mov_b32 s70, {FL_O}\n v_min_u32 v201, 19, v1\n v_lshlrev_b32 v201, 2, v201")
    rdy = f"""
    s_cmp_eq_u64 vcc, 0
    s_cselect_b32 s33, 1, 0
    s_cselect_b32 s5, s5, {BIG}
    """
    def hooks(tag, wl=None):
        def hz(): kb("buffer_load_dword v59, v16, s[52:55], 0 offen sc1")
        def hp():
            poll(kb, f"{n}_z{tag}", 52, "0", 16, 59, 1, first_issued=True, slp=8)
        def ho(): kb("buffer_load_dword v59, v201, s[72:75], s70 offen sc1")
        def hw(k):
            def f():
                if k == 0: kb("v_cmp_eq_u32 vcc, 0, v59" + rdy)
                return [(wl.pop(0), None) for _ in range(OPT['qwo'])]
            return f
        H = {3: hz, 5: hp}
        if wl: H.update({OPT['qp0'] + k: hw(k) for k in range(10 - OPT['qp0'])}); H[OPT['qp0'] - 1] = ho
        return H
    for j in range(5):
        kb(f"""
        v_add_u32 v8, {64*j}, v1
        v_mul_u32_u24 v9, 6554, v8
        v_lshrrev_b32 v9, 16, v9         ; p = q/10
        v_mul_u32_u24 v10, 10, v9
        v_sub_u32 v8, v8, v10            ; chunk
        v_and_b32 v10, 19, v9
        v_bfe_u32 v11, v9, 2, 1
        v_lshl_add_u32 v10, v11, 3, v10
        v_bfe_u32 v11, v9, 3, 1
        v_lshl_add_u32 v10, v11, 2, v10
        v_mul_u32_u24 v10, 3840, v10
        v_lshl_add_u32 v{20+j}, v8, 4, v10
        """)
    kb(f"""
    s_lshr_b32 s32, s3, 1
    s_and_b32 s33, s3, 1
    s_add_u32 s43, s43, 20480
    s_mul_i32 s37, s32, {32*3840}
    s_mul_i32 s41, s33, 1280
    s_add_u32 s37, s37, s41
    s_mul_i32 s41, s31, 160
    s_add_u32 s37, s37, s41
    s_add_u32 s37, s37, 1280
    s_mul_i32 s35, s3, 5120
    s_waitcnt lgkmcnt(0)
    """)
    srd(kb, 44, P_X, 0, 2048*1280); srd(kb, 48, P_WQKV, 0, 640*3840)
    M = k1_main(kb, "kv")
    for P in range(2):
        for t, tag in M["issue"](P): kb(t, tag)
    CSX = M["NS"]*M["SLOT"]
    common2()
    ACC, XX, SM, CSA, ONES = M["ACC"], M["XX"], M["SM"], M["CSA"], M["ONES"]
    kb(f"""
    v_mul_u32_u24 v6, 160, v6
    v_lshl_add_u32 v26, v5, 3, v6    ; aN
    v_mul_u32_u24 v7, 40, v5
    v_add3_u32 v27, v6, v7, 32       ; aT
    s_mul_i32 s42, s3, 40
    v_add_u32 v28, s42, v26          ; aC
    s_mul_i32 s4, s33, 5120
    s_mul_i32 s42, s32, 10240
    s_add_u32 s4, s4, s42
    v_add_u32 v29, s4, v27           ; aC4
    v_lshlrev_b32 v8, 2, v2
    s_lshl_b32 s4, s3, 6
    s_add_u32 s4, s4, {CSX}
    v_add_u32 v9, s4, v8
    s_lshl_b32 s4, s33, 7
    s_lshl_b32 s42, s32, 6
    s_add_u32 s4, s4, s42
    s_add_u32 s4, s4, {CSX+512}
    v_add_u32 v11, s4, v8
    v_mul_u32_u24 v10, 80, v3
    """)
    tl = Rec()
    tl(f"ds_write_b32 v9, v{CSA}\n ds_write_b32 v9, v{CSA+4} offset:256\n ds_write_b32 v11, v{CSA+8}")
    tl("buffer_load_dword v57, v201, s[72:75], s70 offen sc1")
    k1_stats(tl, XX, SM, 12, 14, 192, 17)
    RS = 172; MR = 48
    for mt in range(2):
        for r in range(4):
            tl(f"ds_bpermute_b32 v{RS+4*mt+r}, v10, v{14+mt} offset:{4*r}")
            tl(f"ds_bpermute_b32 v{MR+4*mt+r}, v10, v{12+mt} offset:{4*r}")
    p1_loop(kb, M, {"N": 26, "T": 27, "C": 28, "C4": 29, "X0": 25, "X1": 19, "_free": 30}, tl.L, hooks('k'))
    assert M["_vnext"] <= 48
    stampT(kb, 2)
    kb(f"s_waitcnt lgkmcnt(0)\n s_barrier\n v_add_u32 v9, {CSX}, v8")
    CS = 26
    for t in range(8): kb(f"ds_read_b32 v{CS+2*t}, v9 offset:{64*t}")
    for i in range(2):
        kb(f"ds_read_b32 v{CS+16+2*i}, v9 offset:{512+128*i}\n ds_read_b32 v{CS+17+2*i}, v9 offset:{512+128*i+64}")
    kb(f"""
    v_cmp_eq_u32 vcc, 0, v57
    s_cmp_eq_u64 vcc, 0
    s_cselect_b32 s33, 1, 0
    s_cselect_b32 s5, s5, {BIG}
    """)
    for i in range(2): kb(f"v_add_f32 v{CS+16+2*i}, v{CS+16+2*i}, v{CS+17+2*i}")
    kb(f"""
    v_mov_b32 v56, {EPS6}
    v_mov_b32 v58, {hex(f2u(LOG2E))}
    s_mul_i32 s41, s3, 10240
    v_add_u32 v12, s41, v200
    s_lshl_b32 s41, s3, 10
    v_add_u32 v13, s41, v200
    """)
    wl = [wo_load(i, 200) for i in range(48)]
    fr = 188; cnt = 0
    for t in range(10):
        isk = t < 4 or t == 8
        LL = []
        for mt in range(2):
            a = ACC + (t*2+mt)*4; T0 = 180 + 4*mt; L = []
            for p in range(2):
                tt = T0 + 2*p
                if isk: L.append(f"v_pk_fma_f32 {V(tt,2)}, {V(MR+4*mt+2*p,2)}, {V(CS+2*t,2)}, {V(56,2)} op_sel_hi:[1,0,0] neg_lo:[1,0,0] neg_hi:[1,0,0]")
                else: L.append(f"v_pk_mul_f32 {V(tt,2)}, {V(MR+4*mt+2*p,2)}, {V(CS+2*t,2)} op_sel_hi:[1,0] neg_lo:[1,0] neg_hi:[1,0]")
            for p in range(2):
                L.append(f"v_pk_fma_f32 {V(a+2*p,2)}, {V(a+2*p,2)}, {V(RS+4*mt+2*p,2)}, {V(T0+2*p,2)}")
            if isk:
                for p in range(2): L.append(f"v_pk_mul_f32 {V(T0+2*p,2)}, {V(a+2*p,2)}, {V(58,2)} op_sel_hi:[1,0]")
                for r in range(4): L.append(f"v_exp_f32 v{T0+r}, v{T0+r} clamp")
                for r in range(4): L.append(f"v_max_f32 v{a+r}, v56, v{a+r}")
                for p in range(2): L.append(f"v_pk_add_f32 {V(a+2*p,2)}, {V(a+2*p,2)}, {V(T0+2*p,2)}")
            for p in range(2): L.append(f"v_cvt_pk_bf16_f32 v{fr+2*mt+p}, v{a+2*p}, v{a+2*p+1}")
            LL.append(L)
        for x, y in zip(*LL):
            kb(x); kb(y); cnt += 1
            if cnt % OPT['wop'] == 0: kb(wl.pop(0))
        kb(f"ds_write_b128 v12, {V(fr,4)} offset:{t*1024}")
    if OPT['dgk'] == 1: stampT(kb, 7)
    kb("s_waitcnt lgkmcnt(0)\n s_barrier")
    for w in range(4):
        b = AOFF + 16*w
        kb(f"""
        ds_read_b128 {A(b,4)}, v13 offset:{w*10240}
        ds_read_b128 {A(b+4,4)}, v13 offset:{w*10240+4096}
        ds_read_b128 {A(b+8,4)}, v200 offset:{w*10240+8192}
        ds_read_b128 {A(b+12,4)}, v200 offset:{w*10240+9216}
        """)
    kb(f"""
    v_mul_u32_u24 v9, 336, v3
    s_lshl_b32 s41, s3, 11
    s_add_u32 s41, s41, 40960
    v_add_u32 v9, s41, v9
    v_lshl_add_u32 v10, v2, 4, v9
    v_lshl_add_u32 v14, v5, 4, v9
    v_lshlrev_b32 v15, 4, v2
    v_add_u32 v15, s41, v15
    v_lshlrev_b32 v20, 4, v5
    v_add_u32 v20, s41, v20
    v_lshlrev_b32 v21, 2, v1
    v_add_u32 v22, s41, v21
    s_lshl_b32 s41, s3, 4
    s_mov_b64 s[70:71], 0xffff
    s_lshl_b64 s[70:71], s[70:71], s41
    s_lshl_b32 s41, s3, 2
    s_mov_b32 s72, 0x000f000f
    s_lshl_b32 s72, s72, s41
    s_mov_b32 s73, s72
    s_mov_b32 s74, 0x00010001
    s_mov_b32 s75, 0x00010001
    """)
    for w in range(4):
        b = AOFF + 16*w
        for i, (x, y) in enumerate([(A(b,4), A(b+4,4)), (A(b+8,4), A(b+4,4)), (A(b,4), A(b+12,4)), (A(b+8,4), A(b+12,4)),
                                    (A(b,4), V(ONES,4)), (A(b+8,4), V(ONES,4))]):
            d = V(ACC + 4*i, 4)
            kb(f"v_mfma_f32_16x16x32_bf16 {d}, {x}, {y}, {d if w else '0'}")
    srd(kb, 44, P_WS, OFF_FL, SZ_FL)
    kb(f"""
    s_lshl_b32 s41, s31, 2
    s_add_u32 s41, s41, s3           ; head
    {KVF[OPT['kdir']]}
    s_mul_i32 s41, s41, 1680
    s_add_u32 s41, s41, {OFF_KV}
    s_add_u32 s56, s{P_WS}, s41
    s_addc_u32 s57, s{P_WS+1}, 0
    s_mov_b32 s58, 1680
    s_mov_b32 s59, 0x20000
    ds_write_b128 v10, {V(ACC,4)}
    s_mov_b64 exec, s[70:71]
    ds_write_b128 v15, {V(ACC+4,4)} offset:1344
    s_mov_b64 exec, s[72:73]
    ds_write_b128 v14, {V(ACC+8,4)} offset:256
    s_and_b64 exec, s[70:71], s[72:73]
    ds_write_b128 v20, {V(ACC+12,4)} offset:{1344+256}
    s_mov_b64 exec, s[74:75]
    ds_write_b128 v9, {V(ACC+16,4)} offset:320
    s_and_b64 exec, s[70:71], s[74:75]
    ds_write_b128 v20, {V(ACC+20,4)} offset:{1344+320}
    s_mov_b64 exec, -1
    """)
    for i in range(7): kb(f"ds_read_b32 v{24+i}, v22 offset:{256*i}")
    for i in range(7): kb(f"buffer_atomic_add_f32 v{24+i}, v21, s[56:59], 0 offen offset:{256*i}", "atom")
    if OPT['dgk'] == 1: stampT(kb, 8)
    for _ in range(OPT['womid']): kb(wl.pop(0))
    if OPT['dgk'] == 1: stampT(kb, 9)
    kb.wait_vm("atom")
    if OPT['dgk'] == 1: stampT(kb, 10)
    kb("s_barrier")
    if OPT['kdir']: wflag(kb, f"{n}_ka", 44, "s4", 16, 17, 1)
    else:
        kb.uncounted = True
        kb(f"""
        s_cmp_eq_u32 s3, 0
        s_cbranch_scc0 {n}_ka
        v_mov_b32 v17, 1
        s_mov_b64 exec, 1
        buffer_atomic_add v17, v16, s[44:47], s4 offen sc0
        s_mov_b64 exec, -1
        s_waitcnt vmcnt(0)
        v_readfirstlane_b32 s42, v17
        s_add_u32 s4, s4, 512
        s_cmp_eq_u32 s42, 31
        s_cbranch_scc0 {n}_ka
        {flag(44, "s4", 16, 17, 1)}
        {n}_ka:
        """)
        kb.uncounted = False
    for t in wl: kb(t)
    kb("s_mov_b32 s39, 0")
    kb(f"s_cmp_eq_u32 s33, 0\n s_cbranch_scc1 {n}_wo\n s_branch {n}_A")
    kb(f"{n}_q:")
    kb.fence()
    for j in range(4):
        kb(f"""
        v_add_u32 v8, {4*(j&1)}, v3
        v_lshlrev_b32 v8, 1, v8
        v_xor_b32 v8, v8, v2
        v_add_u32 v9, {8*(j&1) + 4*(j>>1)}, v3
        v_mul_u32_u24 v9, 3840, v9
        v_lshl_add_u32 v{20+j}, v8, 4, v9
        """)
    kb(f"""
    s_sub_u32 s31, s31, 8            ; qc
    s_add_u32 s43, s43, 16384
    s_mul_i32 s37, s3, {16*3840}
    s_lshl_b32 s41, s31, 8
    s_add_u32 s37, s37, s41
    s_lshl_b32 s35, s3, 12
    s_waitcnt lgkmcnt(0)
    """)
    srd(kb, 44, P_X, 0, 2048*1280); srd(kb, 48, P_WQKV, 0, 640*3840)
    M = k1_main(kb, "q")
    for P in range(2):
        for t, tag in M["issue"](P): kb(t, tag)
    CSQ = M["NS"]*M["SLOT"]
    common2()
    kb(f"""
    v_and_b32 v7, 7, v6
    v_lshlrev_b32 v7, 1, v7
    v_lshlrev_b32 v6, 8, v6
    v_and_b32 v8, 1, v5
    v_lshl_add_u32 v6, v8, 3, v6
    v_lshrrev_b32 v8, 1, v5
    v_lshl_add_u32 v6, v8, 4, v6
    """)
    for t in range(8): kb(f"v_xor_b32 v9, {2*t}, v7\n v_lshl_add_u32 v{26+t}, v9, 4, v6")
    kb(f"""
    s_lshl_b32 s4, s3, 1
    v_xor_b32 v9, s4, v7
    v_lshl_add_u32 v34, v9, 4, v6
    s_add_u32 s4, s4, 8
    v_xor_b32 v9, s4, v7
    v_lshl_add_u32 v35, v9, 4, v6
    s_lshl_b32 s42, s31, 5
    """)
    SA = 160
    sa = Rec()
    for t in range(8):
        sa(f"""
        v_add_u32 v176, {4*t}, v3
        v_add_u32 v176, s42, v176
        v_mul_u32_u24 v177, 52429, v176
        v_lshrrev_b32 v177, 18, v177
        v_mul_u32_u24 v178, 5, v177
        v_sub_u32 v176, v176, v178
        v_mul_u32_u24 v177, 1280, v177
        v_lshrrev_b32 v178, 1, v176
        v_lshl_add_u32 v177, v178, 9, v177
        v_and_b32 v178, 1, v176
        v_lshl_add_u32 v177, v178, 3, v177
        v_lshrrev_b32 v178, 2, v176
        v_sub_u32 v178, 4, v178
        v_lshlrev_b32 v179, v178, v2
        v_add_u32 v{SA+2*t}, v177, v179
        v_lshlrev_b32 v179, v178, 16
        v_add_u32 v{SA+2*t+1}, v{SA+2*t}, v179
        """)
    for t in sa.L: kb(t)
    ACC, XX, SM, CSA = M["ACC"], M["XX"], M["SM"], M["CSA"]
    kb(f"""
    v_lshlrev_b32 v8, 4, v3
    v_add_u32 v8, {CSQ}, v8
    s_lshl_b32 s4, s3, 6
    v_add_u32 v9, s4, v8
    """)
    srd(kb, 56, P_WS, OFF_PQ, SZ_PQ)
    tl = Rec()
    tl(f"ds_write_b128 v9, {V(CSA,4)}\n ds_write_b128 v9, {V(CSA+4,4)} offset:256")

    k1_stats(tl, XX, SM, 52, 54, 56, 17)
    ar = {t: 26 + t for t in range(10)}; ar.update({"X0": 25, "X1": 19, "_free": 36})
    wl = [wo_load(i, 200) for i in range(48)]; cnt = 0
    p1_loop(kb, M, ar, tl.L, hooks('q', wl))
    assert M["_vnext"] <= 52
    stampT(kb, 2)
    kb(f"""
    v_mov_b32 v20, v52
    v_mov_b32 v22, v53
    v_mov_b32 v24, v54
    v_mov_b32 v26, v55
    v_mov_b32 v56, {EPS6}
    v_mov_b32 v58, {hex(f2u(LOG2E))}
    s_waitcnt lgkmcnt(0)
    s_barrier
    """)
    CS = 128
    for t in range(8): kb(f"ds_read_b128 {V(CS+4*t,4)}, v8 offset:{64*t}")
    for t in range(8):
        LL = []
        for mt in range(2):
            a = ACC + (t*2+mt)*4; T0 = 28 + 4*mt; L = []
            for p in range(2):
                L.append(f"v_pk_fma_f32 {V(T0+2*p,2)}, {V(CS+4*t+2*p,2)}, {V(20+2*mt,2)}, {V(56,2)} op_sel_hi:[1,0,0] neg_lo:[1,0,0] neg_hi:[1,0,0]")
            for p in range(2):
                L.append(f"v_pk_fma_f32 {V(a+2*p,2)}, {V(a+2*p,2)}, {V(24+2*mt,2)}, {V(T0+2*p,2)} op_sel_hi:[1,0,1]")
            for p in range(2): L.append(f"v_pk_mul_f32 {V(T0+2*p,2)}, {V(a+2*p,2)}, {V(58,2)} op_sel_hi:[1,0]")
            for r in range(4): L.append(f"v_exp_f32 v{T0+r}, v{T0+r} clamp")
            for r in range(4): L.append(f"v_max_f32 v{a+r}, v56, v{a+r}")
            for p in range(2): L.append(f"v_pk_add_f32 {V(a+2*p,2)}, {V(a+2*p,2)}, {V(T0+2*p,2)}")
            for p in range(2): L.append(f"v_cvt_pk_bf16_f32 v{a+p}, v{a+2*p}, v{a+2*p+1}")
            L.append(f"buffer_store_dwordx2 {V(a,2)}, v{SA+2*t+mt}, s[56:59], s34 offen sc1")
            LL.append(L)
        for x, y in zip(*LL):
            kb(x, "pq"); kb(y, "pq"); cnt += 1
            if cnt % OPT['wopq'] == 0 and len(wl) > 6: kb(wl.pop(0))
    srd(kb, 44, P_WS, OFF_FL, SZ_FL)
    kb(f"s_mul_i32 s4, s30, 5\n s_add_u32 s4, s4, s31\n s_lshl_b32 s4, s4, 7\n s_add_u32 s4, s4, {FL_Q}")
    for _ in range(6): kb(wl.pop(0))
    kb.wait_vm("pq"); kb("s_barrier")
    wflag(kb, f"{n}_qf", 44, "s4", 16, 17, 1)
    for t in wl: kb(t)
    kb(f"s_mov_b32 s39, 1\n s_cmp_eq_u32 s33, 0\n s_cbranch_scc0 {n}_A")
    kb(f"{n}_we:\n s_mov_b32 s39, 1\n {n}_wo:")
    kb.fence()
    wo_setup()
    srd(kb, 44, P_WS, OFF_FL, SZ_FL)
    kb(f"s_mov_b32 s70, {FL_O}\n v_min_u32 v201, 19, v1\n v_lshlrev_b32 v201, 2, v201")
    poll(kb, f"{n}_c2", 44, "s70", 201, 59, 1, slp=16)
    for i in range(48): kb(wo_load(i, 200))
    kb(f"s_branch {n}_A")
    kb(f"{n}_rl:")
    kb.fence()
    kb(f"""
    s_sub_u32 s29, s29, 26
    s_lshl_b32 s29, s29, 3
    s_add_u32 s29, s29, s28          ; 0..47
    v_mov_b32 v16, 0
    v_mov_b32 v17, 1
    s_cmp_ge_u32 s29, 40
    s_cbranch_scc0 {n}_rl_nc
    s_getpc_b64 s[44:45]
    {n}_pc:
    s_sub_u32 s44, s44, {n}_pc-{name}
    s_subb_u32 s45, s45, 0
    s_mov_b32 s46, text_end-{name}
    s_mov_b32 s47, 0x20000
    s_lshl_b32 s41, s3, 14
    v_lshlrev_b32 v4, 7, v1
    buffer_load_dword v100, v4, s[44:47], s41 offen
    s_add_u32 s41, s41, 8192
    buffer_load_dword v101, v4, s[44:47], s41 offen
    {n}_rl_nc:
    s_cmp_lg_u32 s29, 37
    s_cbranch_scc1 {n}_rl_go
    s_waitcnt lgkmcnt(0)
    """)
    kb.fence()
    srd(kb, 48, P_WS, OFF_KV, SZ_KV); srd(kb, 56, P_WS, OFF_FL, SZ_FL)
    kb("v_mov_b32 v8, 0\n v_mov_b32 v9, 0\n v_mov_b32 v10, 0\n v_mov_b32 v11, 0\n v_lshlrev_b32 v12, 4, v0\n s_mov_b32 s41, 0")
    for i in range(24):
        if i < 14: kb(f"buffer_store_dwordx4 v[8:11], v12, s[48:51], s41 offen sc1")
        if True: kb(f"buffer_store_dwordx4 v[8:11], v12, s[56:59], s41 offen sc1")
        kb("s_add_u32 s41, s41, 4096")
    srd(kb, 52, P_DBG, 0, 256)
    kb(f"""
    s_waitcnt vmcnt(0)
    s_barrier
    s_cmp_eq_u32 s3, 0
    s_cbranch_scc0 {n}_rl_x
    {flag(52, "0", 16, 18, 1)}
    s_branch {n}_rl_x
    {n}_rl_go:
    """)
    kb.fence()
    def wo_early():
        poll(kb, f"{n}_ze", 52, "0", 16, 59, 1, slp=8)
        wo_setup()
        srd(kb, 48, P_WS, OFF_FL + FL_O, 128)
        kb("v_min_u32 v201, 19, v1\n v_lshlrev_b32 v201, 2, v201")
        poll(kb, f"{n}_oe", 48, "0", 201, 59, 1, slp=8)
        for i in range(48): kb(wo_load(i, 4))
    relayout2(kb, n, f"{n}_rl_x", wo_early, f"{n}_A")
    kb(f"{n}_rl_x:")
    kb.fence()
    stampT(kb, 2)
    kb("v_lshlrev_b32 v200, 4, v1")
    poll(kb, f"{n}_zr", 52, "0", 16, 59, 1, slp=8)
    kb(f"s_cmp_lt_u32 s29, {OPT['rle']}\n s_cselect_b32 s39, 1, 0\n s_branch {n}_wo")
    kb(f"{n}_A:")
    kb.fence()
    stampT(kb, 3)
    import phases
    phases.abc(kb, n)
    kb(f"{n}_end:")
    return (kb, 256, 256, 163840)

OPT.update(h0_t=12, npf=45, pfr=5, pf0=3, vpt=34, slp=1, wop=4, womid=4, slow=16, dgk=0, kdir=0, dly=0, dsp=4, wopq=20, qwo=10, qp0=8, woe=0, rle=27)
```

```python
import gen
from genm import *

def weight(t): return sum(2 if ("v_exp" in l or "v_rcp" in l) else 1 for l in t.strip().split("\n") if l.strip())

def abc(kb, n):
    st = lambda i: (OPT['dgk'] and i in (7, 8, 9, 10)) or stampT(kb, i)
    kb(f"""
    s_lshr_b32 s29, s2, 3
    s_lshl_b32 s30, s28, 3
    s_and_b32 s31, s29, 7
    s_add_u32 s30, s30, s31          ; R
    s_lshr_b32 s31, s29, 3           ; cb
    v_and_b32 v10, 7, v1
    v_min_u32 v10, 4, v10
    v_lshlrev_b32 v10, 7, v10
    s_lshr_b32 s34, s30, 2
    s_mul_i32 s34, s34, 640
    s_add_u32 s34, s34, {FL_Q}
    """)
    srd(kb, 48, P_WS, OFF_FL, SZ_FL)
    kb(f"""
    buffer_load_dword v26, v10, s[48:51], s34 offen sc1
    v_and_b32 v2, 31, v1             ; rho / m
    v_lshrrev_b32 v3, 5, v1          ; hi
    v_lshlrev_b32 v4, 4, v1          ; l*16
    v_lshlrev_b32 v9, 3, v2
    v_add_u32 v9, 1024, v9
    v_lshl_add_u32 v9, v3, 26, v9
    s_lshl_b32 s33, s30, 5
    s_lshl_b32 s32, s3, 3
    s_add_u32 s33, s33, s32
    s_mul_i32 s33, s33, 1280
    s_mul_i32 s32, s3, {8*1680}
    {'v_and_b32 v136, 31, v1' if OPT['kdir'] else 'v_mov_b32 v136, 0'}
    v_lshlrev_b32 v136, 7, v136
    v_min_u32 v137, 26, v1
    v_lshlrev_b32 v137, 2, v137
    v_min_u32 v138, 19, v1
    v_lshlrev_b32 v138, 2, v138
    """)
    srd(kb, 40, P_WS, OFF_KV, SZ_KV); srd(kb, 44, P_WS, OFF_PQ, SZ_PQ)
    O = 16; ACC = 56; D0 = 140; KVR = 204; XU = 228; PQA = 200
    kb("s_barrier")
    poll(kb, f"{n}_wq", 48, "s34", 10, 26, 1, first_issued=True, slp=8)
    for h in range(8):
        kb(f"""
        buffer_load_dwordx4 {A(PQA+6*h,4)}, v4, s[44:47], s33 offen offset:{(h&1)*1280}
        buffer_load_dwordx2 {A(PQA+6*h+4,2)}, v9, s[44:47], s33 offen offset:{(h&1)*1280}
        """)
        if h & 1: kb("s_add_u32 s33, s33, 2560")
    kb(f"""
    s_add_u32 s5, s5, 4096
    buffer_load_dwordx4 {A(192,4)}, v4, s[60:63], s5 offen
    buffer_load_dwordx4 {A(196,4)}, v4, s[60:63], s5 offen offset:1024
    s_mov_b32 s34, {FL_U}
    s_mov_b32 s33, {FL_D}
    buffer_load_dword v28, v137, s[48:51], s34 offen sc1
        s_lshl_b32 s5, s3, {12 if OPT['kdir'] else 7}
    s_add_u32 s5, s5, {FL_K if OPT['kdir'] else FL_K + 512}
    buffer_load_dword v26, v136, s[48:51], s5 offen sc1
    s_mov_b32 s61, s39
    v_mov_b32 v7, 0x100000
    v_cmp_gt_u32 vcc, 20, v2
    v_cndmask_b32 v5, v7, v2, vcc
    v_subrev_u32 v8, 4, v2
    v_cmp_gt_u32 vcc, 24, v2
    v_cndmask_b32 v6, v7, v8, vcc
    v_cmp_gt_u32 vcc, 20, v2
    v_cndmask_b32 v6, v6, v7, vcc
    v_cmp_gt_u32 vcc, 16, v2
    v_cndmask_b32 v6, v6, v2, vcc
    v_and_b32 v8, 27, v2
    v_cmp_eq_u32 vcc, 24, v8
    v_cndmask_b32 v5, v5, 20, vcc
    v_cndmask_b32 v6, v6, 20, vcc
    v_lshlrev_b32 v5, 4, v5
    v_lshlrev_b32 v6, 4, v6
    v_lshl_add_u32 v7, v3, 26, v5
    v_lshl_add_u32 v8, v3, 26, v6
    v_mul_u32_u24 v9, 672, v3
    v_add_u32 v5, v5, v9
    v_add_u32 v6, v6, v9
    """)
    srd(kb, 52, P_X, 0, 2048*1280); srd(kb, 56, P_WS, OFF_H, SZ_H); srd(kb, 72, P_WS, OFF_ST, SZ_ST)
    srd(kb, 68, P_WS, OFF_WGU, SZ_WGU); srd(kb, 44, P_WS, OFF_WD, SZ_WD)
    RED = 81920
    kb(f"""
    v_lshrrev_b32 v10, 2, v1
    s_and_b32 s37, s3, 1
    s_lshl_b32 s37, s37, 4
    v_add_u32 v14, s37, v10          ; row
    v_and_b32 v15, 3, v1             ; q0
    v_mul_u32_u24 v10, 1280, v14
    v_lshl_add_u32 v10, v15, 3, v10  ; x voffset
    s_lshr_b32 s39, s3, 1            ; w>>1
    s_mul_i32 s35, s30, {32*1280}
    s_mul_i32 s36, s31, 320
    s_add_u32 s35, s35, s36
    s_mul_i32 s36, s39, 160
    s_add_u32 s35, s35, s36          ; x soffset
    s_mul_i32 s36, s30, 40
    s_mul_i32 s37, s31, 10
    s_add_u32 s36, s36, s37
    s_mul_i32 s37, s39, 5
    s_add_u32 s36, s36, s37
    s_lshl_b32 s36, s36, 10          ; h soffset
    s_mul_i32 s37, s3, 20480
    s_add_u32 s37, s37, {RED}
    v_lshlrev_b32 v3, 6, v3
    v_xor_b32 v11, v3, v4
    v_add_u32 v11, s37, v11
    v_xor_b32 v9, 128, v11
    v_lshlrev_b32 v13, 4, v14
    v_and_b32 v2, 1, v15
    v_lshl_add_u32 v2, v2, 9, v13
    v_lshrrev_b32 v3, 1, v15
    v_lshl_add_u32 v12, v3, 10, v2
    v_lshlrev_b32 v27, 6, v15
    v_xor_b32 v12, v27, v12          ; row ^ 4q0
    s_mul_i32 s37, s39, 10240
    s_add_u32 s37, s37, {RED}
    v_add_u32 v12, s37, v12
    v_add_u32 v14, 40960, v12
    v_lshl_add_u32 v2, v3, 3, v2     ; h voffset
    v_add_u32 v15, 1024, v4
    s_lshl_b32 s38, s30, 11
    s_lshl_b32 s37, s31, 9
    s_add_u32 s38, s38, s37
    s_lshl_b32 s37, s39, 3
    s_add_u32 s38, s38, s37
    s_lshl_b32 s4, s30, 2
    s_add_u32 s4, s4, s31
    s_lshl_b32 s4, s4, 7
    {K3MAP[OPT['map34']].replace('s30', 's64').replace('s31', 's67').replace('s32', 's37')}
    s_lshl_b32 s6, s64, 2
    s_add_u32 s6, s6, s3
    s_lshl_b32 s60, s6, 9
    s_lshl_b32 s6, s64, 4
    s_add_u32 s6, s6, s67
    s_lshl_b32 s6, s6, 7
    s_add_u32 s6, s6, {FL_G}
    s_mul_i32 s67, s67, 7            ; j0
    s_mul_i32 s65, s67, {40*1024}    ; W base
    s_lshl_b32 s66, s3, 10           ; w*1024
    v_add_u32 v139, s66, v4
    {K4MAP[OPT['map34']].replace('s30', 's16').replace('s31', 's17').replace('s33', 's18').replace('s32', 's37')}
    s_mul_i32 s8, s17, 54
    s_mul_i32 s37, s3, 14
    s_add_u32 s8, s8, s37
    s_mul_i32 s8, s8, 5120
    s_mul_i32 s12, s16, {2*108*1024}
    s_mul_i32 s37, s3, {14*2048}
    s_add_u32 s12, s12, s37
    s_cmp_eq_u32 s3, 3
    s_cselect_b32 s9, {BIG}, s8
    s_cselect_b32 s13, {BIG}, s12
    s_lshr_b32 s18, s16, 1
    s_lshl_b32 s18, s18, 2
    s_add_u32 s18, s18, s3
    s_lshl_b32 s18, s18, 9
    s_add_u32 s18, s18, {FL_G}
    """)
    P1 = 3; LOOK = 3; per_gap = OPT['pg3']
    SLOT = 24576; CSB = 5*SLOT
    slots = []
    for sg in range(5):
        slots.append(dict(steps=[(c, u, (c*8 + (u & 7))*1024) for u in range(8*sg, 8*sg+8) for c in range(P1)],
                          dma=[(c, 8*sg + 4*h, (c*8 + 4*h)*1024) for h in range(2) for c in range(P1)]))
    for c in range(P1, 7):
        for hf in range(2):
            slots.append(dict(steps=[(c, u, (u - 20*hf)*1024) for u in range(20*hf, 20*hf+20)],
                              dma=[(c, 20*hf + 4*i, 4*i*1024) for i in range(5)]))
    def dma(k):
        return [(f"s_add_u32 m0, s66, {(k%5)*SLOT + pos}\n s_add_u32 s7, s65, {(c*40 + u0)*1024}\n"
                 f"buffer_load_dwordx4 v139, s[68:71], s7 offen lds", f"slot{k}") for (c, u0, pos) in slots[k]["dma"]]
    KORD = [0, 1, 4, 5, 7, 8, 11, 12, 2, 9, 3, 6, 10, 13]; NEARLY = 8
    WDR = [V(140 + 4*i, 4) for i in range(22)] + [A(200 + 4*i, 4) for i in range(12)] + \
          [V(228 + 4*i, 4) for i in range(7)] + [A(192, 4), A(196, 4), A(248, 4), A(252, 4)] + [A(4*i, 4) for i in range(25)]
    NPA = min(OPT['npa'], 34); NPF = 45
    def wdload(f, v0):
        T = KORD[f // 5]
        if f % 5 == 0: return f"s_add_u32 s63, s{8 if T < 12 else 9}, {T*5120}\n buffer_load_dwordx4 {WDR[f]}, v{v0}, s[44:47], s63 offen"
        return f"buffer_load_dwordx4 {WDR[f]}, v15, s[44:47], s63 offen offset:{(f%5-1)*1024}"
    def kvl(p):
        L = []
        for hh in range(2):
            o = hh*1680; b = KVR + 24*(p & 1) + 12*hh
            L += [f"buffer_load_dwordx4 {V(b,4)}, v{5+hh}, s[40:43], s32 offen offset:{o}",
                  f"buffer_load_dwordx4 {V(b+4,4)}, v{5+hh}, s[40:43], s32 offen offset:{o+336}",
                  f"buffer_load_dwordx4 {V(b+8,4)}, v{7+hh}, s[40:43], s32 offen offset:{o+1344}"]
        L[-1] += "\n s_add_u32 s32, s32, 3360"
        return L
    def cvt(p):
        return [f"v_cvt_pk_bf16_f32 v{KVR+24*(p&1)+12*hh+i}, v{KVR+24*(p&1)+12*hh+2*i}, v{KVR+24*(p&1)+12*hh+2*i+1}" for i in range(6) for hh in range(2)]
    def mm(p, tail):
        L = []
        for hh in range(2):
            d = V(D0 + 32*(p & 1) + 16*hh, 16); k = KVR + 24*(p & 1) + 12*hh; q = PQA + 6*(2*p + hh)
            if not tail: L.append(f"v_mfma_f32_32x32x16_bf16 {d}, {V(k,4)}, {A(q,4)}, 0")
            else: L.append(f"v_mfma_f32_32x32x8_bf16 {d}, {V(k+4,2)}, {A(q+4,2)}, {d}")
        return L
    def post(p):
        e = D0 + 32*(p & 1); o = e + 16; dst = O + 10*p
        L = [f"v_add_f32 v{e+12}, {EPS6}, v{e+12}", f"v_add_f32 v{o+12}, {EPS6}, v{o+12}",
             f"v_rcp_f32 v{e+12}, v{e+12}", f"v_rcp_f32 v{o+12}, v{o+12}"]
        for j, src, r in [(0, e, e+12), (1, e+4, e+12), (3, o, o+12), (4, o+4, o+12)]:
            L += [f"v_mul_f32 v{src+i}, v{src+i}, v{r}" for i in range(4)]
            if j == 0: L += [f"v_mul_f32 v{e+8+i}, v{e+8+i}, v{e+12}" for i in range(4)]
            if j == 3: L += [f"v_fmac_f32 v{e+8+i}, v{o+8+i}, v{o+12}" for i in range(4)]
            L += [f"v_cvt_pk_bf16_f32 v{dst+2*j}, v{src}, v{src+1}", f"v_cvt_pk_bf16_f32 v{dst+2*j+1}, v{src+2}, v{src+3}"]
        L += [f"v_cvt_pk_bf16_f32 v{dst+4}, v{e+8}, v{e+9}", f"v_cvt_pk_bf16_f32 v{dst+5}, v{e+10}, v{e+11}"]
        return L
    def gemm(kap):
        return [f"v_mfma_f32_32x32x16_bf16 {V(ACC+16*nt,16)}, {A(4*(kap*5+nt),4)}, {V(O+4*kap,4)}, {V(ACC+16*nt,16) if kap else '0'}" for nt in range(5)]
    poll(kb, f"{n}_wu", 48, "s34", 137, 28, 1, first_issued=True, slp=8)
    ring = dma(0) + dma(1) + dma(2)
    for t, tag in ring[:OPT['ring0']]: kb(t, tag)
    ring = ring[OPT['ring0']:]
    kb(f"s_cmp_eq_u32 s61, 0\n s_cbranch_scc1 {n}_r0")
    kb.uncounted = True
    for t, tag in ring: kb(t)
    kb.uncounted = False
    kb(f"{n}_r0:")
    rgroups = [ring[i::3] for i in range(3)]
    def late_ring(i):
        if not rgroups[i]: return
        kb(f"s_cmp_eq_u32 s61, 0\n s_cbranch_scc0 {n}_r{i+1}")
        kb.uncounted = True
        for t, tag in rgroups[i]: kb(t)
        kb.uncounted = False
        kb(f"{n}_r{i+1}:")
    poll(kb, f"{n}_wk", 48, "s5", 136, 26, 1, first_issued=True, slow=61, slp=2)
    st(4)
    for t in kvl(0) + kvl(1): kb(t)
    fq = []
    vq = []
    def run(M, need=(), add=(), vadd=(), delay=0):
        while any(g in need for g, _, _ in fq):
            g, t, tag = fq.pop(0); kb(t, tag)
        vq.extend(vadd)
        for i, m in enumerate(M):
            if i == delay:
                for g, L in add: fq.extend((g, t, None) for t in L)
            kb(m); k = 0
            if vq: t, tag = vq.pop(0); kb(t, tag); k += weight(t)
            while fq and k + weight(fq[0][1]) <= 6:
                g, t, tag = fq.pop(0); kb(t, tag); k += weight(t)
        if delay >= len(M):
            for g, L in add: fq.extend((g, t, None) for t in L)
    nt_ = lambda L: [(t, None) for t in L]
    for t in cvt(0): kb(t)
    if OPT['dgk'] == 2: stampT(kb, 7)
    run(mm(0, False), add=[("c1", cvt(1))])
    run(mm(0, True), need=("c1",), vadd=nt_(kvl(2)))
    run(mm(1, False), add=[("p0", post(0))], delay=1)
    run(mm(1, True))
    run(gemm(0), need=("p0",), add=[("c2", cvt(2)), ("p1", post(1))], vadd=nt_(kvl(3)))
    run(mm(2, False), need=("c2",))
    late_ring(0)
    run(gemm(1))
    run(mm(2, True))
    run(gemm(2), need=("p1",), add=[("c3", cvt(3)), ("p2", post(2))], delay=1)
    late_ring(1)
    run(mm(3, False), need=("c3",))
    run(gemm(3))
    xl = [(f"buffer_load_dwordx2 {V(XU+4*i+2,2)}, v10, s[52:55], s35 offen offset:{i*32}", None) for i in range(5)]
    run(mm(3, True), vadd=xl)
    run(gemm(4), add=[("p3", post(3))], delay=1, vadd=[("buffer_load_dword v137, v138, s[48:51], s33 offen sc1", None)])
    late_ring(2)
    run(gemm(5), need=("p2",))
    run(gemm(6))
    if OPT['dgk'] == 2: stampT(kb, 8)
    poll(kb, f"{n}_wd", 48, "s33", 138, 137, 1, first_issued=True, slp=8)
    xu = []
    for i in range(5):
        u = XU + 4*i
        xu += [f"v_lshlrev_b32 v{u}, 16, v{u+2}", f"v_and_b32 v{u+1}, 0xffff0000, v{u+2}", f"v_lshlrev_b32 v{u+2}, 16, v{u+3}", f"v_and_b32 v{u+3}, 0xffff0000, v{u+3}"]
    pfn = 0
    wall = [(wdload(f, 4), None) for f in range(NPA)]; pfn = NPA
    wds = wall[:OPT['a1']]; wall = wall[OPT['a1']:]
    for nt in range(5):
        d = V(ACC + 16*nt, 16)
        W = [f"ds_write_b128 v{9 if q & 1 else 11}, {V(ACC+16*(nt-1)+4*q,4)} offset:{((nt-1)*4+q)*1024}" for q in range(4)] if nt else []
        run([f"v_mfma_f32_32x32x16_bf16 {d}, {A(4*(kap*5+nt),4)}, {V(O+4*kap,4)}, {d}" for kap in (7, 8, 9)],
            need=("p3",), add=[("w", W), ("x", xu if nt == 1 else [])], delay=2 if nt else 0, vadd=wds if nt == 0 else [])
    for g, t, tag in fq: kb(t, tag)
    kb("v_mov_b32 v100, 0\n v_mov_b32 v101, 0\n v_mov_b32 v102, 0\n v_mov_b32 v103, 0")
    for _ in range(4):
        if vq: t, tag = vq.pop(0); kb(t, tag)
    for q in range(4): kb(f"ds_write_b128 v{9 if q & 1 else 11}, {V(ACC+64+4*q,4)} offset:{(16+q)*1024}")
    if OPT['dgk'] == 2: stampT(kb, 9)
    kb("s_waitcnt lgkmcnt(0)\n s_barrier")
    if OPT['dgk'] == 2: stampT(kb, 10)
    T = 16
    for i in range(5):
        for w in range(4):
            a, o = ("v12", w*20480) if w < 2 else ("v14", (w-2)*20480)
            kb(f"ds_read_b128 {V(T+(i*4+w)*4,4)}, {a} offset:{o + i*2048}")
    for i in range(5):
        a = T + i*16; u = XU + 4*i
        kb(f"""
        v_pk_add_f32 {V(a,2)}, {V(a,2)}, {V(u,2)}
        v_pk_add_f32 {V(a+2,2)}, {V(a+2,2)}, {V(u+2,2)}
        v_pk_add_f32 {V(a+4,2)}, {V(a+4,2)}, {V(a+8,2)}
        v_pk_add_f32 {V(a+6,2)}, {V(a+6,2)}, {V(a+10,2)}
        v_pk_add_f32 {V(a,2)}, {V(a,2)}, {V(a+12,2)}
        v_pk_add_f32 {V(a+2,2)}, {V(a+2,2)}, {V(a+14,2)}
        v_pk_add_f32 {V(a,2)}, {V(a,2)}, {V(a+4,2)}
        v_pk_add_f32 {V(a+2,2)}, {V(a+2,2)}, {V(a+6,2)}
        v_cvt_pk_bf16_f32 v{a+4}, v{a}, v{a+1}
        v_cvt_pk_bf16_f32 v{a+5}, v{a+2}, v{a+3}
        v_pk_add_f32 v[100:101], v[100:101], {V(a,2)}
        v_pk_fma_f32 v[102:103], {V(a,2)}, {V(a,2)}, v[102:103]
        """)
        kb(f"buffer_store_dwordx2 {V(a+4,2)}, v2, s[56:59], s36 offen offset:{(i&3)*1024} sc1", "pubA")
        kb(f"""
        v_pk_add_f32 v[100:101], v[100:101], {V(a+2,2)}
        v_pk_fma_f32 v[102:103], {V(a+2,2)}, {V(a+2,2)}, v[102:103]
        """)
        if i == 3: kb("s_add_u32 s36, s36, 4096")
    kb("""
    v_add_f32 v100, v100, v101
    v_add_f32 v101, v102, v103
    v_add_f32_dpp v100, v100, v100 quad_perm:[1,0,3,2] row_mask:0xf bank_mask:0xf
    v_add_f32_dpp v101, v101, v101 quad_perm:[1,0,3,2] row_mask:0xf bank_mask:0xf
    v_add_f32_dpp v100, v100, v100 quad_perm:[2,3,0,1] row_mask:0xf bank_mask:0xf
    v_add_f32_dpp v101, v101, v101 quad_perm:[2,3,0,1] row_mask:0xf bank_mask:0xf
    s_mov_b32 exec_lo, 0x11111111
    s_mov_b32 exec_hi, 0x11111111
    """)
    kb("buffer_store_dwordx2 v[100:101], v13, s[72:75], s38 offen sc1", "pubA")
    kb("s_mov_b64 exec, -1")
    for t, tag in vq + wall[:OPT['a2']]: kb(t, tag)
    wall = [(t.replace(", v4, s[44", ", v2, s[44"), tag) for t, tag in wall[OPT['a2']:]]
    kb(f"""
    s_lshl_b32 s34, s64, 2
    s_add_u32 s34, s34, s3           ; R
    v_mov_b32 v2, v4                 ; l*16
    v_add_u32 v4, 0x10000, v2
    v_and_b32 v5, 31, v1
    v_lshlrev_b32 v5, 4, v5
    v_lshrrev_b32 v6, 5, v1
    v_lshl_add_u32 v5, v6, 10, v5
    v_and_b32 v7, 3, v1
    v_lshlrev_b32 v7, 7, v7
    v_mov_b32 v24, 0
    v_mov_b32 v3, v139
    s_lshl_b32 s36, s34, 11
    s_mul_i32 s37, s34, {40*1024}    ; h soffset
    s_mul_i32 s35, s34, 108
    s_add_u32 s35, s35, s67
    s_lshl_b32 s35, s35, 10
    s_cmp_ge_u32 s67, 105
    s_cselect_b32 s33, {BIG}, s35
    s_add_u32 s38, s67, s3
    s_lshl_b32 s38, s38, 10
    s_add_u32 s39, s38, 4096
    """)
    srd(kb, 40, P_WS, OFF_CS, SZ_CS); srd(kb, 52, P_WS, OFF_G, SZ_G)
    st(5)
    kb.wait_vm("pubA")
    kb("s_barrier")
    wflag(kb, f"{n}_pa", 48, "s4", 24, 25, 1)
    dmaB = lambda k: [(t.replace("v139", "v3"), tag) for t, tag in dma(k)]
    for t, tag in wall + dmaB(3)[:OPT['pre']]: kb(t, tag)
    poll(kb, f"{n}_wa", 48, "s60", 7, 26, 1)
    st(6)
    for i in range(2): kb(f"buffer_load_dwordx4 {V(112+4*i,4)}, v5, s[72:75], s36 offen offset:{512*i}")
    def hload(u):
        t = "s_add_u32 s37, s37, 4096\n" if (u % 4 == 0 and u > 0) else ""
        return t + f"buffer_load_dwordx4 {A(4*u,4)}, v2, s[56:59], s37 offen offset:{(u&3)*1024}"
    H0 = OPT['h0_t']
    for u in range(H0): kb(hload(u))
    early_dma = dmaB(3)[OPT['pre']:] + dmaB(4) + [
        (f"s_add_u32 m0, s66, {CSB}\n buffer_load_dwordx4 v2, s[40:43], s38 offen lds", "slot4"),
        (f"s_add_u32 m0, s66, {CSB+4096}\n buffer_load_dwordx4 v2, s[40:43], s39 offen lds", "slot4")]
    RSTD = 6; K1_, K2_, IR2 = 20, 21, 22
    ln = Rec()
    ln("""
    v_add_f32 v112, v112, v114
    v_add_f32 v113, v113, v115
    v_add_f32 v116, v116, v118
    v_add_f32 v117, v117, v119
    v_add_f32 v8, v112, v116
    v_add_f32 v9, v113, v117
    v_mov_b32 v10, v8
    v_mov_b32 v11, v9
    v_permlane32_swap_b32 v8, v10
    v_permlane32_swap_b32 v9, v11
    v_add_f32 v8, v8, v10
    v_add_f32 v9, v9, v11
    """)
    ln_scalars(ln, 8, 9, 10, RSTD, 11)
    ln(f"""
    v_xor_b32 v10, 0x80000000, v10
    v_lshrrev_b32 v17, 16, v10
    v_or_b32 v16, v10, v17
    v_mov_b32 v18, 0
    v_mov_b32 v19, 0
    v_mul_f32 v{K1_}, {hex(f2u(-2*LOG2E*0.7978845608028654))}, v{RSTD}
    v_mul_f32 v{K2_}, v{RSTD}, v{RSTD}
    v_mul_f32 v{K2_}, v{K2_}, v{K1_}
    v_mul_f32 v{K2_}, {hex(f2u(0.044715))}, v{K2_}
    v_mul_f32 v{IR2}, v11, v11
    """)
    XE = 16; ACC0 = 32; NACC = 5; TMP = 112; NBF = 8; WF = 160
    steps = []
    for k, sl in enumerate(slots):
        for (c, u, pos) in sl["steps"]:
            steps.append((c, u, k, (k % 5)*SLOT + pos))
            if u == 39: steps.append((c, 40, None, CSB + c*1024))
    def epi(c):
        a = ACC0 + 16*(c % NACC); o = TMP + 12*(c % 2); L = []; W = 4; pend = []
        for p0 in range(0, 8, W):
            E = [(a + (e >> 2)*8 + (e & 3), o + 4 + e) for e in range(p0, p0 + W)]
            for g, t in E: L.append(f"v_mul_f32 v{t}, v{g}, v{g}")
            for g, t in E: L.append(f"v_fma_f32 v{t}, v{t}, v{K2_}, v{K1_}")
            for g, t in E: L.append(f"v_mul_f32 v{t}, v{t}, v{g}")
            for g, t in E: L.append(f"v_exp_f32 v{t}, v{t}")
            for g, t in E: L.append(f"v_mul_f32 v{g}, v{g}, v{g+4}")
            for g, t in E: L.append(f"v_fma_f32 v{t}, v{t}, v{IR2}, v{IR2}")
            for g, t in E: L.append(f"v_rcp_f32 v{t}, v{t}")
            L += pend
            for g, t in E: L.append(f"v_mul_f32 v{g}, v{g}, v{t}")
            pend = [f"v_cvt_pk_bf16_f32 v{o+(p0+e)//2}, v{E[e][0]}, v{E[e][0]+1}" for e in range(0, W, 2)]
        L += pend
        L = [(t, f"epi{c}") for t in L]
        sreg, off = (35, c*1024) if c < 3 else (33, (c-3)*1024)
        if c == 3: L.append(("s_add_u32 s33, s33, 3072", f"epi{c}"))
        L.append((f"buffer_store_dwordx4 {V(o,4)}, v2, s[52:55], s{sreg} offen offset:{off} sc1", "pubE" if c <= 4 else "pubB"))
        return L
    def wdlds(f):
        j = f - 45
        if j < 8: return 131072 + j*4096, 0
        if j < 14: return 3*SLOT + (j - 8)*4096, 10
        if j < 20: return 4*SLOT + (j - 14)*4096, 11
        return (j - 20)*4096, 12
    def wddma(f):
        T = KORD[f // 5]
        return (f"s_add_u32 m0, s66, {wdlds(f)[0]}\n s_add_u32 s63, s{8 if T < 12 else 9}, {T*5120 + (f % 5)*1024}\n"
                f"buffer_load_dwordx4 v2, s[44:47], s63 offen lds", "wdl")
    ldn = 45
    ready = -1; vm_next = 0; issued = 5
    fill = [(2, l.strip(), "ln") for t in ln.L for l in t.split("\n") if l.strip()]
    vmq = []
    hq = [(hload(u), None) for u in range(H0, 40)]
    while hq or early_dma:
        vmq += hq[:2]; hq = hq[2:]
        vmq += early_dma[:1]; early_dma = early_dma[1:]
    def rd(s):
        nonlocal ready, issued, pfn, ldn
        c, u, k, off = steps[s]
        if k is not None and k > ready:
            ready = k
            while any(tg == f"slot{k}" for _, tg in vmq):
                t, tg = vmq.pop(0); kb(t, tg)
            kb.wait_vm(f"slot{k}")
            if k == 12:
                assert not any(tg in ("epi4", "pubE") for _, _, tg in fill), "chunk 4 not stored yet"
                kb.wait_vm("pubE")
            kb("s_barrier")
            if k == 12: wflag(kb, f"{n}_pe", 48, "s6", 24, 25, 1)
            if k == 5: st(7)
            while issued <= k + LOOK and issued < len(slots):
                vmq.extend(dmaB(issued)); issued += 1
            if k >= OPT['pf0']:
                want = min(NPF, pfn + OPT['pfr'])
                while pfn < want: vmq.append((wdload(pfn, 2), None)); pfn += 1
                if OPT['wlds'] and pfn == NPF:
                    m = 0
                    while ldn < 70 and wdlds(ldn)[1] <= k and m < OPT['wlr']: vmq.append(wddma(ldn)); ldn += 1; m += 1
        a, o = ("v2", off) if off < 65536 else ("v4", off - 65536)
        return f"ds_read_b128 {A(WF + 4*(s % NBF), 4)}, {a} offset:{o}"
    first = set()
    for s in range(NBF - 1): kb(rd(s))
    for s, (c, u, k, off) in enumerate(steps):
        R = rd(s + NBF - 1) if s + NBF - 1 < len(steps) else None
        d = V(ACC0 + 16*(c % NACC), 16)
        b = A(4*u, 4) if u < 40 else V(XE, 4)
        while u < 40 and any(b + "," in t for t, _ in vmq):
            t, tg = vmq.pop(0); kb(t, tg)
        if c not in first: assert not any(tg == f"epi{c-NACC}" for _, _, tg in fill), "acc reuse"
        kb(f"v_mfma_f32_32x32x16_bf16 {d}, {A(WF + 4*(s % NBF), 4)}, {b}, {d if c in first else '0'}")
        if R: kb(R)
        first.add(c)
        if u == 40: fill += [(s + 4, t, tg) for t, tg in epi(c)]
        kk = 0; budget = per_gap + (s & 1)
        if vmq and s*16 >= vm_next:
            t, tag = vmq.pop(0); kb(t, tag); kk += weight(t); vm_next = max(vm_next, s*16 - 16) + OPT['vpt']
        while fill and fill[0][0] <= s and kk + weight(fill[0][1]) <= max(budget, weight(fill[0][1]) if kk == 0 else 0):
            _, t, tag = fill.pop(0); kb(t, tag); kk += weight(t)
        if s % 2 == 0 and s + NBF + 1 < len(steps): kb(f"s_waitcnt lgkmcnt({NBF-3})")
    st(8)
    if OPT['wlds']:
        assert pfn == NPF
        while ldn < 70: vmq.append(wddma(ldn)); ldn += 1
        pfn = 70
    for t, tag in vmq: kb(t, tag)
    kb(f"buffer_load_dword v26, v7, s[48:51], s18 offen sc1")
    kb(f"""
    v_and_b32 v14, 15, v1            ; m
    v_lshrrev_b32 v3, 4, v1          ; c
    v_lshlrev_b32 v4, 4, v14
    v_lshl_add_u32 v4, v3, 9, v4     ; voff g  (c*512 + m*16)
    v_add_u32 v5, {108*1024}, v4
    """)
    for _, t, tag in fill: kb(t, tag)
    poll(kb, f"{n}_wb", 48, "s18", 7, 26, 1, first_issued=True)
    st(9)
    NB = 5; GB = 100; ACC = 32; HU = 112
    def gloads(i):
        b = GB + 16*(i % NB); T = KORD[i]
        return [f"s_add_u32 s62, s{12 if T < 12 else 13}, {T*2048}\n buffer_load_dwordx4 {A(b,4)}, v4, s[52:55], s62 offen",
                f"buffer_load_dwordx4 {A(b+4,4)}, v4, s[52:55], s62 offen offset:256",
                f"buffer_load_dwordx4 {A(b+8,4)}, v5, s[52:55], s62 offen",
                f"buffer_load_dwordx4 {A(b+12,4)}, v5, s[52:55], s62 offen offset:256"]
    for i in range(2):
        for l in gloads(i): kb(l)
    kb(f"""
    v_lshrrev_b32 v8, 2, v1
    v_and_b32 v9, 3, v1              ; q0
    s_lshl_b32 s36, s3, 4
    v_add_u32 v8, s36, v8
    v_and_b32 v10, 31, v8
    v_lshlrev_b32 v10, 4, v10
    v_and_b32 v11, 1, v9
    v_lshl_add_u32 v10, v11, 9, v10
    v_lshrrev_b32 v11, 1, v9
    v_lshl_add_u32 v10, v11, 3, v10
    s_lshr_b32 s37, s3, 1
    s_lshl_b32 s38, s16, 1
    s_add_u32 s37, s37, s38          ; R
    s_mul_i32 s37, s37, 40
    s_mul_i32 s38, s17, 5
    s_add_u32 s37, s37, s38
    s_lshl_b32 s37, s37, 10
    s_add_u32 s38, s37, 4096
    v_lshrrev_b32 v11, 2, v1
    v_lshlrev_b32 v12, 2, v9
    v_xor_b32 v11, v11, v12
    v_lshlrev_b32 v11, 4, v11
    v_lshl_add_u32 v11, v9, 8, v11
    s_mul_i32 s39, s3, 5120
    v_add_u32 v11, s39, v11
    v_add_u32 v6, 40960, v11
    v_lshlrev_b32 v12, 6, v3
    v_xor_b32 v12, v12, v2
    s_mul_i32 s39, s3, 20480
    v_add_u32 v12, s39, v12
    v_mul_u32_u24 v13, 1280, v8
    v_lshl_add_u32 v13, v9, 3, v13
    s_mul_i32 s39, s16, {64*1280}
    s_mul_i32 s36, s17, 160
    s_add_u32 s39, s39, s36
    """)
    srd(kb, 40, P_OUT, 0, 2048*1280)
    if OPT['wlds']:
        kb(f"v_add_u32 v16, s66, v2\n v_add_u32 v17, 0x10000, v16\n v_add_u32 v18, 0x20000, v16")
        kb.wait_vm("wdl")
        for f in range(45, 70):
            o = wdlds(f)[0]
            kb(f"ds_read_b128 {WDR[f]}, v{16 + (o >> 16)} offset:{o & 0xffff}")
        kb("s_waitcnt lgkmcnt(0)")
    kb.wait_vm("pubB"); kb("s_barrier")
    wflag(kb, f"{n}_pb", 48, "s6", 24, 25, 2)
    for i in range(2, NB - 1):
        for l in gloads(i): kb(l)
    for i in range(14):
        if i + NB - 1 == NEARLY - 2: kb(f"buffer_load_dword v26, v7, s[48:51], s18 offen sc1")
        if i + NB - 1 == NEARLY: poll(kb, f"{n}_wc", 48, "s18", 7, 26, 2, first_issued=True)
        L = gloads(i + NB - 1) if i + NB - 1 < 14 else []
        if pfn < 70:
            L = L + [wdload(f, 2) for f in range(pfn, min(70, pfn + 5))]; pfn = min(70, pfn + 5)
        if i == 9:
            L += [f"buffer_load_dwordx2 {V(HU+4*j+2,2)}, v10, s[56:59], s{37 if j < 4 else 38} offen offset:{(j&3)*1024}" for j in range(5)]
        if i == 12:
            for j in range(5):
                u = HU + 4*j
                L += [f"v_lshlrev_b32 v{u}, 16, v{u+2}\n v_and_b32 v{u+1}, 0xffff0000, v{u+2}",
                      f"v_lshlrev_b32 v{u+2}, 16, v{u+3}\n v_and_b32 v{u+3}, 0xffff0000, v{u+3}"]
        b = GB + 16*(i % NB); k = 0; done = []
        assert not any(WDR[5*i+t] + "," in l for t in range(5) for l in L), "w_down fragment loaded too late"
        for mt in range(4):
            for t in range(5):
                d = V(ACC + (mt*5+t)*4, 4)
                kb(f"v_mfma_f32_16x16x32_bf16 {d}, {WDR[5*i+t]}, {A(b+4*mt,4)}, {'0' if i == 0 else d}")
                if k % 2 == 1 and L: kb(L.pop(0))
                if i == 13:
                    done.append(f"ds_write_b128 v12, {d} offset:{(mt*5 + t)*1024}")
                    if len(done) > 6: kb(done.pop(0))
                k += 1
        assert not L
    st(10)
    for t in done: kb(t)
    kb("s_waitcnt lgkmcnt(0)\n s_barrier")
    for i in range(5):
        for w in range(4):
            kb(f"ds_read_b128 {V(ACC+(i*4+w)*4,4)}, v{11 if w < 2 else 6} offset:{(w&1)*20480 + i*1024}")
    for i in range(5):
        a = ACC + i*16; u = HU + 4*i
        kb(f"""
        v_pk_add_f32 {V(a,2)}, {V(a,2)}, {V(a+4,2)}
        v_pk_add_f32 {V(a+2,2)}, {V(a+2,2)}, {V(a+6,2)}
        v_pk_add_f32 {V(a+8,2)}, {V(a+8,2)}, {V(a+12,2)}
        v_pk_add_f32 {V(a+10,2)}, {V(a+10,2)}, {V(a+14,2)}
        v_pk_add_f32 {V(a,2)}, {V(a,2)}, {V(a+8,2)}
        v_pk_add_f32 {V(a+2,2)}, {V(a+2,2)}, {V(a+10,2)}
        v_cvt_pk_bf16_f32 v{a+4}, v{a}, v{a+1}
        v_cvt_pk_bf16_f32 v{a+5}, v{a+2}, v{a+3}
        v_lshlrev_b32 v{a}, 16, v{a+4}
        v_and_b32 v{a+1}, 0xffff0000, v{a+4}
        v_lshlrev_b32 v{a+2}, 16, v{a+5}
        v_and_b32 v{a+3}, 0xffff0000, v{a+5}
        v_pk_add_f32 {V(a,2)}, {V(a,2)}, {V(u,2)}
        v_pk_add_f32 {V(a+2,2)}, {V(a+2,2)}, {V(u+2,2)}
        v_cvt_pk_bf16_f32 v{a+4}, v{a}, v{a+1}
        v_cvt_pk_bf16_f32 v{a+5}, v{a+2}, v{a+3}
        buffer_store_dwordx2 {V(a+4,2)}, v13, s[40:43], s39 offen offset:{i*32}
        """)
    if gen.DIAG:
        kb.fence()
        kb("s_waitcnt vmcnt(0) lgkmcnt(0)")
        stampT(kb, 11)
        kb("s_memtime s[74:75]\n s_waitcnt lgkmcnt(0)\n s_sub_u32 s100, s74, s100")
        srd(kb, 40, P_WS, OFF_TS + 65536, 65536)
        kb("s_lshl_b32 s44, s2, 2\n s_add_u32 s44, s44, s3\n s_lshl_b32 s44, s44, 6")
        for i in range(13): kb(f"v_mov_b32 v{8+i}, s{76+2*i}")
        kb("v_mov_b32 v2, s44\n s_mov_b64 exec, 1")
        for i in range(4): kb(f"buffer_store_dwordx4 v[{8+4*i}:{11+4*i}], v2, s[40:43], 0 offen offset:{16*i}")

OPT.update(wlds=1, wlr=6, npa=34, a1=8, a2=10, ring0=0, pre=3, pf0=4, pfr=6, vpt=36)
```

```python
import gen
from genm import *

def weight(t): return sum(2 if ("v_exp" in l or "v_rcp" in l) else 1 for l in t.strip().split("\n") if l.strip())

def abc(kb, n):
    st = lambda i: (OPT['dgk'] and i in (7, 8, 9, 10)) or stampT(kb, i)
    kb(f"""
    s_lshr_b32 s29, s2, 3
    s_lshl_b32 s30, s28, 3
    s_and_b32 s31, s29, 7
    s_add_u32 s30, s30, s31          ; R
    s_lshr_b32 s31, s29, 3           ; cb
    v_and_b32 v10, 7, v1
    v_min_u32 v10, 4, v10
    v_lshlrev_b32 v10, 7, v10
    s_lshr_b32 s34, s30, 2
    s_mul_i32 s34, s34, 640
    s_add_u32 s34, s34, {FL_Q}
    """)
    srd(kb, 48, P_WS, OFF_FL, SZ_FL)
    kb(f"""
    buffer_load_dword v26, v10, s[48:51], s34 offen sc1
    v_and_b32 v2, 31, v1             ; rho / m
    v_lshrrev_b32 v3, 5, v1          ; hi
    v_lshlrev_b32 v4, 4, v1          ; l*16
    v_lshlrev_b32 v9, 3, v2
    v_add_u32 v9, 1024, v9
    v_lshl_add_u32 v9, v3, 26, v9
    s_lshl_b32 s33, s30, 5
    s_lshl_b32 s32, s3, 3
    s_add_u32 s33, s33, s32
    s_mul_i32 s33, s33, 1280
    s_mul_i32 s32, s3, {8*1680}
    {'v_and_b32 v136, 31, v1' if OPT['kdir'] else 'v_mov_b32 v136, 0'}
    v_lshlrev_b32 v136, 7, v136
    v_min_u32 v137, 26, v1
    v_lshlrev_b32 v137, 2, v137
    v_min_u32 v138, 19, v1
    v_lshlrev_b32 v138, 2, v138
    """)
    srd(kb, 40, P_WS, OFF_KV, SZ_KV); srd(kb, 44, P_WS, OFF_PQ, SZ_PQ)
    O = 16; ACC = 56; D0 = 140; KVR = 204; XU = 228; PQA = 200
    kb("s_barrier")
    poll(kb, f"{n}_wq", 48, "s34", 10, 26, 1, first_issued=True, slp=8)
    for h in range(8):
        kb(f"""
        buffer_load_dwordx4 {A(PQA+6*h,4)}, v4, s[44:47], s33 offen offset:{(h&1)*1280}
        buffer_load_dwordx2 {A(PQA+6*h+4,2)}, v9, s[44:47], s33 offen offset:{(h&1)*1280}
        """)
        if h & 1: kb("s_add_u32 s33, s33, 2560")
    kb(f"""
    s_add_u32 s5, s5, 4096
    buffer_load_dwordx4 {A(192,4)}, v4, s[60:63], s5 offen
    buffer_load_dwordx4 {A(196,4)}, v4, s[60:63], s5 offen offset:1024
    s_mov_b32 s34, {FL_U}
    s_mov_b32 s33, {FL_D}
    buffer_load_dword v28, v137, s[48:51], s34 offen sc1
        s_lshl_b32 s5, s3, {12 if OPT['kdir'] else 7}
    s_add_u32 s5, s5, {FL_K if OPT['kdir'] else FL_K + 512}
    buffer_load_dword v26, v136, s[48:51], s5 offen sc1
    s_mov_b32 s61, s39
    v_mov_b32 v7, 0x100000
    v_cmp_gt_u32 vcc, 20, v2
    v_cndmask_b32 v5, v7, v2, vcc
    v_subrev_u32 v8, 4, v2
    v_cmp_gt_u32 vcc, 24, v2
    v_cndmask_b32 v6, v7, v8, vcc
    v_cmp_gt_u32 vcc, 20, v2
    v_cndmask_b32 v6, v6, v7, vcc
    v_cmp_gt_u32 vcc, 16, v2
    v_cndmask_b32 v6, v6, v2, vcc
    v_and_b32 v8, 27, v2
    v_cmp_eq_u32 vcc, 24, v8
    v_cndmask_b32 v5, v5, 20, vcc
    v_cndmask_b32 v6, v6, 20, vcc
    v_lshlrev_b32 v5, 4, v5
    v_lshlrev_b32 v6, 4, v6
    v_lshl_add_u32 v7, v3, 26, v5
    v_lshl_add_u32 v8, v3, 26, v6
    v_mul_u32_u24 v9, 672, v3
    v_add_u32 v5, v5, v9
    v_add_u32 v6, v6, v9
    """)
    srd(kb, 52, P_X, 0, 2048*1280); srd(kb, 56, P_WS, OFF_H, SZ_H); srd(kb, 72, P_WS, OFF_ST, SZ_ST)
    srd(kb, 68, P_WS, OFF_WGU, SZ_WGU); srd(kb, 44, P_WS, OFF_WD, SZ_WD)
    RED = 81920
    kb(f"""
    v_lshrrev_b32 v10, 2, v1
    s_and_b32 s37, s3, 1
    s_lshl_b32 s37, s37, 4
    v_add_u32 v14, s37, v10          ; row
    v_and_b32 v15, 3, v1             ; q0
    v_mul_u32_u24 v10, 1280, v14
    v_lshl_add_u32 v10, v15, 3, v10  ; x voffset
    s_lshr_b32 s39, s3, 1            ; w>>1
    s_mul_i32 s35, s30, {32*1280}
    s_mul_i32 s36, s31, 320
    s_add_u32 s35, s35, s36
    s_mul_i32 s36, s39, 160
    s_add_u32 s35, s35, s36          ; x soffset
    s_mul_i32 s36, s30, 40
    s_mul_i32 s37, s31, 10
    s_add_u32 s36, s36, s37
    s_mul_i32 s37, s39, 5
    s_add_u32 s36, s36, s37
    s_lshl_b32 s36, s36, 10          ; h soffset
    s_mul_i32 s37, s3, 20480
    s_add_u32 s37, s37, {RED}
    v_lshlrev_b32 v3, 6, v3
    v_xor_b32 v11, v3, v4
    v_add_u32 v11, s37, v11
    v_xor_b32 v9, 128, v11
    v_lshlrev_b32 v13, 4, v14
    v_and_b32 v2, 1, v15
    v_lshl_add_u32 v2, v2, 9, v13
    v_lshrrev_b32 v3, 1, v15
    v_lshl_add_u32 v12, v3, 10, v2
    v_lshlrev_b32 v27, 6, v15
    v_xor_b32 v12, v27, v12          ; row ^ 4q0
    s_mul_i32 s37, s39, 10240
    s_add_u32 s37, s37, {RED}
    v_add_u32 v12, s37, v12
    v_add_u32 v14, 40960, v12
    v_lshl_add_u32 v2, v3, 3, v2     ; h voffset
    v_add_u32 v15, 1024, v4
    s_lshl_b32 s38, s30, 11
    s_lshl_b32 s37, s31, 9
    s_add_u32 s38, s38, s37
    s_lshl_b32 s37, s39, 3
    s_add_u32 s38, s38, s37
    s_lshl_b32 s4, s30, 2
    s_add_u32 s4, s4, s31
    s_lshl_b32 s4, s4, 7
    {K3MAP[OPT['map34']].replace('s30', 's64').replace('s31', 's67').replace('s32', 's37')}
    s_lshl_b32 s6, s64, 2
    s_add_u32 s6, s6, s3
    s_lshl_b32 s60, s6, 9
    s_lshl_b32 s6, s64, 4
    s_add_u32 s6, s6, s67
    s_lshl_b32 s6, s6, 7
    s_add_u32 s6, s6, {FL_G}
    s_mul_i32 s67, s67, 7            ; j0
    s_mul_i32 s65, s67, {40*1024}    ; W base
    s_lshl_b32 s66, s3, 10           ; w*1024
    v_add_u32 v139, s66, v4
    {K4MAP[OPT['map34']].replace('s30', 's16').replace('s31', 's17').replace('s33', 's18').replace('s32', 's37')}
    s_mul_i32 s8, s17, 54
    s_mul_i32 s37, s3, 14
    s_add_u32 s8, s8, s37
    s_mul_i32 s8, s8, 5120
    s_mul_i32 s12, s16, {2*108*1024}
    s_mul_i32 s37, s3, {14*2048}
    s_add_u32 s12, s12, s37
    s_cmp_eq_u32 s3, 3
    s_cselect_b32 s9, {BIG}, s8
    s_cselect_b32 s13, {BIG}, s12
    s_lshr_b32 s18, s16, 1
    s_lshl_b32 s18, s18, 2
    s_add_u32 s18, s18, s3
    s_lshl_b32 s18, s18, 9
    s_add_u32 s18, s18, {FL_G}
    """)
    P1 = 3; LOOK = 3; per_gap = OPT['pg3']
    SLOT = 24576; CSB = 5*SLOT
    slots = []
    for sg in range(5):
        slots.append(dict(steps=[(c, u, (c*8 + (u & 7))*1024) for u in range(8*sg, 8*sg+8) for c in range(P1)],
                          dma=[(c, 8*sg + 4*h, (c*8 + 4*h)*1024) for h in range(2) for c in range(P1)]))
    for c in range(P1, 7):
        for hf in range(2):
            slots.append(dict(steps=[(c, u, (u - 20*hf)*1024) for u in range(20*hf, 20*hf+20)],
                              dma=[(c, 20*hf + 4*i, 4*i*1024) for i in range(5)]))
    def dma(k):
        return [(f"s_add_u32 m0, s66, {(k%5)*SLOT + pos}\n s_add_u32 s7, s65, {(c*40 + u0)*1024}\n"
                 f"buffer_load_dwordx4 v139, s[68:71], s7 offen lds", f"slot{k}") for (c, u0, pos) in slots[k]["dma"]]
    KORD = [0, 1, 4, 5, 7, 8, 11, 12, 2, 9, 3, 6, 10, 13]; NEARLY = 8
    WDR = [V(140 + 4*i, 4) for i in range(22)] + [A(200 + 4*i, 4) for i in range(12)] + \
          [V(228 + 4*i, 4) for i in range(7)] + [A(192, 4), A(196, 4), A(248, 4), A(252, 4)] + [A(4*i, 4) for i in range(25)]
    NPA = min(OPT['npa'], 34); NPF = 45
    def wdload(f, v0):
        T = KORD[f // 5]
        if f % 5 == 0: return f"s_add_u32 s63, s{8 if T < 12 else 9}, {T*5120}\n buffer_load_dwordx4 {WDR[f]}, v{v0}, s[44:47], s63 offen"
        return f"buffer_load_dwordx4 {WDR[f]}, v15, s[44:47], s63 offen offset:{(f%5-1)*1024}"
    def kvl(p):
        L = []
        for hh in range(2):
            o = hh*1680; b = KVR + 24*(p & 1) + 12*hh
            L += [f"buffer_load_dwordx4 {V(b,4)}, v{5+hh}, s[40:43], s32 offen offset:{o}",
                  f"buffer_load_dwordx4 {V(b+4,4)}, v{5+hh}, s[40:43], s32 offen offset:{o+336}",
                  f"buffer_load_dwordx4 {V(b+8,4)}, v{7+hh}, s[40:43], s32 offen offset:{o+1344}"]
        L[-1] += "\n s_add_u32 s32, s32, 3360"
        return L
    def cvt(p):
        return [f"v_cvt_pk_bf16_f32 v{KVR+24*(p&1)+12*hh+i}, v{KVR+24*(p&1)+12*hh+2*i}, v{KVR+24*(p&1)+12*hh+2*i+1}" for i in range(6) for hh in range(2)]
    def mm(p, tail):
        L = []
        for hh in range(2):
            d = V(D0 + 32*(p & 1) + 16*hh, 16); k = KVR + 24*(p & 1) + 12*hh; q = PQA + 6*(2*p + hh)
            if not tail: L.append(f"v_mfma_f32_32x32x16_bf16 {d}, {V(k,4)}, {A(q,4)}, 0")
            else: L.append(f"v_mfma_f32_32x32x8_bf16 {d}, {V(k+4,2)}, {A(q+4,2)}, {d}")
        return L
    def post(p):
        e = D0 + 32*(p & 1); o = e + 16; dst = O + 10*p
        L = [f"v_add_f32 v{e+12}, {EPS6}, v{e+12}", f"v_add_f32 v{o+12}, {EPS6}, v{o+12}",
             f"v_rcp_f32 v{e+12}, v{e+12}", f"v_rcp_f32 v{o+12}, v{o+12}"]
        for j, src, r in [(0, e, e+12), (1, e+4, e+12), (3, o, o+12), (4, o+4, o+12)]:
            L += [f"v_mul_f32 v{src+i}, v{src+i}, v{r}" for i in range(4)]
            if j == 0: L += [f"v_mul_f32 v{e+8+i}, v{e+8+i}, v{e+12}" for i in range(4)]
            if j == 3: L += [f"v_fmac_f32 v{e+8+i}, v{o+8+i}, v{o+12}" for i in range(4)]
            L += [f"v_cvt_pk_bf16_f32 v{dst+2*j}, v{src}, v{src+1}", f"v_cvt_pk_bf16_f32 v{dst+2*j+1}, v{src+2}, v{src+3}"]
        L += [f"v_cvt_pk_bf16_f32 v{dst+4}, v{e+8}, v{e+9}", f"v_cvt_pk_bf16_f32 v{dst+5}, v{e+10}, v{e+11}"]
        return L
    def gemm(kap):
        return [f"v_mfma_f32_32x32x16_bf16 {V(ACC+16*nt,16)}, {A(4*(kap*5+nt),4)}, {V(O+4*kap,4)}, {V(ACC+16*nt,16) if kap else '0'}" for nt in range(5)]
    poll(kb, f"{n}_wu", 48, "s34", 137, 28, 1, first_issued=True, slp=8)
    ring = dma(0) + dma(1) + dma(2)
    for t, tag in ring[:OPT['ring0']]: kb(t, tag)
    ring = ring[OPT['ring0']:]
    kb(f"s_cmp_eq_u32 s61, 0\n s_cbranch_scc1 {n}_r0")
    kb.uncounted = True
    for t, tag in ring: kb(t)
    kb.uncounted = False
    kb(f"{n}_r0:")
    rgroups = [ring[i::3] for i in range(3)]
    def late_ring(i):
        if not rgroups[i]: return
        kb(f"s_cmp_eq_u32 s61, 0\n s_cbranch_scc0 {n}_r{i+1}")
        kb.uncounted = True
        for t, tag in rgroups[i]: kb(t)
        kb.uncounted = False
        kb(f"{n}_r{i+1}:")
    poll(kb, f"{n}_wk", 48, "s5", 136, 26, 1, first_issued=True, slow=61, slp=2)
    st(4)
    for t in kvl(0) + kvl(1): kb(t)
    fq = []
    vq = []
    def run(M, need=(), add=(), vadd=(), delay=0):
        while any(g in need for g, _, _ in fq):
            g, t, tag = fq.pop(0); kb(t, tag)
        vq.extend(vadd)
        for i, m in enumerate(M):
            if i == delay:
                for g, L in add: fq.extend((g, t, None) for t in L)
            kb(m); k = 0
            if vq: t, tag = vq.pop(0); kb(t, tag); k += weight(t)
            while fq and k + weight(fq[0][1]) <= 6:
                g, t, tag = fq.pop(0); kb(t, tag); k += weight(t)
        if delay >= len(M):
            for g, L in add: fq.extend((g, t, None) for t in L)
    nt_ = lambda L: [(t, None) for t in L]
    for t in cvt(0): kb(t)
    if OPT['dgk'] == 2: stampT(kb, 7)
    run(mm(0, False), add=[("c1", cvt(1))])
    run(mm(0, True), need=("c1",), vadd=nt_(kvl(2)))
    run(mm(1, False), add=[("p0", post(0))], delay=1)
    run(mm(1, True))
    run(gemm(0), need=("p0",), add=[("c2", cvt(2)), ("p1", post(1))], vadd=nt_(kvl(3)))
    run(mm(2, False), need=("c2",))
    late_ring(0)
    run(gemm(1))
    run(mm(2, True))
    run(gemm(2), need=("p1",), add=[("c3", cvt(3)), ("p2", post(2))], delay=1)
    late_ring(1)
    run(mm(3, False), need=("c3",))
    run(gemm(3))
    xl = [(f"buffer_load_dwordx2 {V(XU+4*i+2,2)}, v10, s[52:55], s35 offen offset:{i*32}", None) for i in range(5)]
    run(mm(3, True), vadd=xl)
    run(gemm(4), add=[("p3", post(3))], delay=1, vadd=[("buffer_load_dword v137, v138, s[48:51], s33 offen sc1", None)])
    late_ring(2)
    run(gemm(5), need=("p2",))
    run(gemm(6))
    if OPT['dgk'] == 2: stampT(kb, 8)
    poll(kb, f"{n}_wd", 48, "s33", 138, 137, 1, first_issued=True, slp=8)
    xu = []
    for i in range(5):
        u = XU + 4*i
        xu += [f"v_lshlrev_b32 v{u}, 16, v{u+2}", f"v_and_b32 v{u+1}, 0xffff0000, v{u+2}", f"v_lshlrev_b32 v{u+2}, 16, v{u+3}", f"v_and_b32 v{u+3}, 0xffff0000, v{u+3}"]
    pfn = 0
    wall = [(wdload(f, 4), None) for f in range(NPA)]; pfn = NPA
    wds = wall[:OPT['a1']]; wall = wall[OPT['a1']:]
    for nt in range(5):
        d = V(ACC + 16*nt, 16)
        W = [f"ds_write_b128 v{9 if q & 1 else 11}, {V(ACC+16*(nt-1)+4*q,4)} offset:{((nt-1)*4+q)*1024}" for q in range(4)] if nt else []
        run([f"v_mfma_f32_32x32x16_bf16 {d}, {A(4*(kap*5+nt),4)}, {V(O+4*kap,4)}, {d}" for kap in (7, 8, 9)],
            need=("p3",), add=[("w", W), ("x", xu if nt == 1 else [])], delay=2 if nt else 0, vadd=wds if nt == 0 else [])
    for g, t, tag in fq: kb(t, tag)
    kb("v_mov_b32 v100, 0\n v_mov_b32 v101, 0\n v_mov_b32 v102, 0\n v_mov_b32 v103, 0")
    for _ in range(4):
        if vq: t, tag = vq.pop(0); kb(t, tag)
    for q in range(4): kb(f"ds_write_b128 v{9 if q & 1 else 11}, {V(ACC+64+4*q,4)} offset:{(16+q)*1024}")
    if OPT['dgk'] == 2: stampT(kb, 9)
    kb("s_waitcnt lgkmcnt(0)\n s_barrier")
    if OPT['dgk'] == 2: stampT(kb, 10)
    T = 16
    for i in range(5):
        for w in range(4):
            a, o = ("v12", w*20480) if w < 2 else ("v14", (w-2)*20480)
            kb(f"ds_read_b128 {V(T+(i*4+w)*4,4)}, {a} offset:{o + i*2048}")
    for i in range(5):
        a = T + i*16; u = XU + 4*i
        kb(f"""
        v_pk_add_f32 {V(a,2)}, {V(a,2)}, {V(u,2)}
        v_pk_add_f32 {V(a+2,2)}, {V(a+2,2)}, {V(u+2,2)}
        v_pk_add_f32 {V(a+4,2)}, {V(a+4,2)}, {V(a+8,2)}
        v_pk_add_f32 {V(a+6,2)}, {V(a+6,2)}, {V(a+10,2)}
        v_pk_add_f32 {V(a,2)}, {V(a,2)}, {V(a+12,2)}
        v_pk_add_f32 {V(a+2,2)}, {V(a+2,2)}, {V(a+14,2)}
        v_pk_add_f32 {V(a,2)}, {V(a,2)}, {V(a+4,2)}
        v_pk_add_f32 {V(a+2,2)}, {V(a+2,2)}, {V(a+6,2)}
        v_cvt_pk_bf16_f32 v{a+4}, v{a}, v{a+1}
        v_cvt_pk_bf16_f32 v{a+5}, v{a+2}, v{a+3}
        v_pk_add_f32 v[100:101], v[100:101], {V(a,2)}
        v_pk_fma_f32 v[102:103], {V(a,2)}, {V(a,2)}, v[102:103]
        """)
        kb(f"buffer_store_dwordx2 {V(a+4,2)}, v2, s[56:59], s36 offen offset:{(i&3)*1024} sc1", "pubA")
        kb(f"""
        v_pk_add_f32 v[100:101], v[100:101], {V(a+2,2)}
        v_pk_fma_f32 v[102:103], {V(a+2,2)}, {V(a+2,2)}, v[102:103]
        """)
        if i == 3: kb("s_add_u32 s36, s36, 4096")
    kb("""
    v_add_f32 v100, v100, v101
    v_add_f32 v101, v102, v103
    v_add_f32_dpp v100, v100, v100 quad_perm:[1,0,3,2] row_mask:0xf bank_mask:0xf
    v_add_f32_dpp v101, v101, v101 quad_perm:[1,0,3,2] row_mask:0xf bank_mask:0xf
    v_add_f32_dpp v100, v100, v100 quad_perm:[2,3,0,1] row_mask:0xf bank_mask:0xf
    v_add_f32_dpp v101, v101, v101 quad_perm:[2,3,0,1] row_mask:0xf bank_mask:0xf
    s_mov_b32 exec_lo, 0x11111111
    s_mov_b32 exec_hi, 0x11111111
    """)
    kb("buffer_store_dwordx2 v[100:101], v13, s[72:75], s38 offen sc1", "pubA")
    kb("s_mov_b64 exec, -1")
    for t, tag in vq + wall[:OPT['a2']]: kb(t, tag)
    wall = [(t.replace(", v4, s[44", ", v2, s[44"), tag) for t, tag in wall[OPT['a2']:]]
    kb(f"""
    s_lshl_b32 s34, s64, 2
    s_add_u32 s34, s34, s3           ; R
    v_mov_b32 v2, v4                 ; l*16
    v_add_u32 v4, 0x10000, v2
    v_and_b32 v5, 31, v1
    v_lshlrev_b32 v5, 4, v5
    v_lshrrev_b32 v6, 5, v1
    v_lshl_add_u32 v5, v6, 10, v5
    v_and_b32 v7, 3, v1
    v_lshlrev_b32 v7, 7, v7
    v_mov_b32 v24, 0
    v_mov_b32 v3, v139
    s_lshl_b32 s36, s34, 11
    s_mul_i32 s37, s34, {40*1024}    ; h soffset
    s_mul_i32 s35, s34, 108
    s_add_u32 s35, s35, s67
    s_lshl_b32 s35, s35, 10
    s_cmp_ge_u32 s67, 105
    s_cselect_b32 s33, {BIG}, s35
    s_add_u32 s38, s67, s3
    s_lshl_b32 s38, s38, 10
    s_add_u32 s39, s38, 4096
    """)
    srd(kb, 40, P_WS, OFF_CS, SZ_CS); srd(kb, 52, P_WS, OFF_G, SZ_G)
    st(5)
    kb.wait_vm("pubA")
    kb("s_barrier")
    wflag(kb, f"{n}_pa", 48, "s4", 24, 25, 1)
    dmaB = lambda k: [(t.replace("v139", "v3"), tag) for t, tag in dma(k)]
    for t, tag in wall + dmaB(3)[:OPT['pre']]: kb(t, tag)
    poll(kb, f"{n}_wa", 48, "s60", 7, 26, 1)
    st(6)
    for i in range(2): kb(f"buffer_load_dwordx4 {V(112+4*i,4)}, v5, s[72:75], s36 offen offset:{512*i}")
    def hload(u):
        t = "s_add_u32 s37, s37, 4096\n" if (u % 4 == 0 and u > 0) else ""
        return t + f"buffer_load_dwordx4 {A(4*u,4)}, v2, s[56:59], s37 offen offset:{(u&3)*1024}"
    H0 = OPT['h0_t']
    for u in range(H0): kb(hload(u))
    early_dma = dmaB(3)[OPT['pre']:] + dmaB(4) + [
        (f"s_add_u32 m0, s66, {CSB}\n buffer_load_dwordx4 v2, s[40:43], s38 offen lds", "slot4"),
        (f"s_add_u32 m0, s66, {CSB+4096}\n buffer_load_dwordx4 v2, s[40:43], s39 offen lds", "slot4")]
    RSTD = 6; K1_, K2_, IR2 = 20, 21, 22
    ln = Rec()
    ln("""
    v_add_f32 v112, v112, v114
    v_add_f32 v113, v113, v115
    v_add_f32 v116, v116, v118
    v_add_f32 v117, v117, v119
    v_add_f32 v8, v112, v116
    v_add_f32 v9, v113, v117
    v_mov_b32 v10, v8
    v_mov_b32 v11, v9
    v_permlane32_swap_b32 v8, v10
    v_permlane32_swap_b32 v9, v11
    v_add_f32 v8, v8, v10
    v_add_f32 v9, v9, v11
    """)
    ln_scalars(ln, 8, 9, 10, RSTD, 11)
    ln(f"""
    v_xor_b32 v10, 0x80000000, v10
    v_lshrrev_b32 v17, 16, v10
    v_or_b32 v16, v10, v17
    v_mov_b32 v18, 0
    v_mov_b32 v19, 0
    v_mul_f32 v{K1_}, {hex(f2u(-2*LOG2E*0.7978845608028654))}, v{RSTD}
    v_mul_f32 v{K2_}, v{RSTD}, v{RSTD}
    v_mul_f32 v{K2_}, v{K2_}, v{K1_}
    v_mul_f32 v{K2_}, {hex(f2u(0.044715))}, v{K2_}
    v_mul_f32 v{IR2}, v11, v11
    """)
    XE = 16; ACC0 = 32; NACC = 5; TMP = 112; NBF = 8; WF = 160
    steps = []
    for k, sl in enumerate(slots):
        for (c, u, pos) in sl["steps"]:
            steps.append((c, u, k, (k % 5)*SLOT + pos))
            if u == 39: steps.append((c, 40, None, CSB + c*1024))
    def epi(c):
        a = ACC0 + 16*(c % NACC); o = TMP + 12*(c % 2); L = []; W = 4; pend = []
        for p0 in range(0, 8, W):
            E = [(a + (e >> 2)*8 + (e & 3), o + 4 + e) for e in range(p0, p0 + W)]
            for g, t in E: L.append(f"v_mul_f32 v{t}, v{g}, v{g}")
            for g, t in E: L.append(f"v_fma_f32 v{t}, v{t}, v{K2_}, v{K1_}")
            for g, t in E: L.append(f"v_mul_f32 v{t}, v{t}, v{g}")
            for g, t in E: L.append(f"v_exp_f32 v{t}, v{t}")
            for g, t in E: L.append(f"v_mul_f32 v{g}, v{g}, v{g+4}")
            for g, t in E: L.append(f"v_fma_f32 v{t}, v{t}, v{IR2}, v{IR2}")
            for g, t in E: L.append(f"v_rcp_f32 v{t}, v{t}")
            L += pend
            for g, t in E: L.append(f"v_mul_f32 v{g}, v{g}, v{t}")
            pend = [f"v_cvt_pk_bf16_f32 v{o+(p0+e)//2}, v{E[e][0]}, v{E[e][0]+1}" for e in range(0, W, 2)]
        L += pend
        L = [(t, f"epi{c}") for t in L]
        sreg, off = (35, c*1024) if c < 3 else (33, (c-3)*1024)
        if c == 3: L.append(("s_add_u32 s33, s33, 3072", f"epi{c}"))
        L.append((f"buffer_store_dwordx4 {V(o,4)}, v2, s[52:55], s{sreg} offen offset:{off} sc1", "pubE" if c <= 4 else "pubB"))
        return L
    def wdlds(f):
        j = f - 45
        if j < 8: return 131072 + j*4096, 0
        if j < 14: return 3*SLOT + (j - 8)*4096, 10
        if j < 20: return 4*SLOT + (j - 14)*4096, 11
        return (j - 20)*4096, 12
    def wddma(f):
        T = KORD[f // 5]
        return (f"s_add_u32 m0, s66, {wdlds(f)[0]}\n s_add_u32 s63, s{8 if T < 12 else 9}, {T*5120 + (f % 5)*1024}\n"
                f"buffer_load_dwordx4 v2, s[44:47], s63 offen lds", "wdl")
    ldn = 45
    ready = -1; vm_next = 0; issued = 5
    fill = [(2, l.strip(), "ln") for t in ln.L for l in t.split("\n") if l.strip()]
    vmq = []
    hq = [(hload(u), None) for u in range(H0, 40)]
    while hq or early_dma:
        vmq += hq[:2]; hq = hq[2:]
        vmq += early_dma[:1]; early_dma = early_dma[1:]
    def rd(s):
        nonlocal ready, issued, pfn, ldn
        c, u, k, off = steps[s]
        if k is not None and k > ready:
            ready = k
            while any(tg == f"slot{k}" for _, tg in vmq):
                t, tg = vmq.pop(0); kb(t, tg)
            kb.wait_vm(f"slot{k}")
            if k == 12:
                assert not any(tg in ("epi4", "pubE") for _, _, tg in fill), "chunk 4 not stored yet"
                kb.wait_vm("pubE")
            kb("s_barrier")
            if k == 12: wflag(kb, f"{n}_pe", 48, "s6", 24, 25, 1)
            if k == 5: st(7)
            while issued <= k + LOOK and issued < len(slots):
                vmq.extend(dmaB(issued)); issued += 1
            if k >= OPT['pf0']:
                want = min(NPF, pfn + OPT['pfr'])
                while pfn < want: vmq.append((wdload(pfn, 2), None)); pfn += 1
                if OPT['wlds'] and pfn == NPF:
                    m = 0
                    while ldn < 70 and wdlds(ldn)[1] <= k and m < OPT['wlr']: vmq.append(wddma(ldn)); ldn += 1; m += 1
        a, o = ("v2", off) if off < 65536 else ("v4", off - 65536)
        return f"ds_read_b128 {A(WF + 4*(s % NBF), 4)}, {a} offset:{o}"
    first = set()
    for s in range(NBF - 1): kb(rd(s))
    for s, (c, u, k, off) in enumerate(steps):
        R = rd(s + NBF - 1) if s + NBF - 1 < len(steps) else None
        d = V(ACC0 + 16*(c % NACC), 16)
        b = A(4*u, 4) if u < 40 else V(XE, 4)
        while u < 40 and any(b + "," in t for t, _ in vmq):
            t, tg = vmq.pop(0); kb(t, tg)
        if c not in first: assert not any(tg == f"epi{c-NACC}" for _, _, tg in fill), "acc reuse"
        kb(f"v_mfma_f32_32x32x16_bf16 {d}, {A(WF + 4*(s % NBF), 4)}, {b}, {d if c in first else '0'}")
        if R: kb(R)
        first.add(c)
        if u == 40: fill += [(s + 4, t, tg) for t, tg in epi(c)]
        kk = 0; budget = per_gap + (s & 1)
        if vmq and s*16 >= vm_next:
            t, tag = vmq.pop(0); kb(t, tag); kk += weight(t); vm_next = max(vm_next, s*16 - 16) + OPT['vpt']
        while fill and fill[0][0] <= s and kk + weight(fill[0][1]) <= max(budget, weight(fill[0][1]) if kk == 0 else 0):
            _, t, tag = fill.pop(0); kb(t, tag); kk += weight(t)
        if s % 2 == 0 and s + NBF + 1 < len(steps): kb(f"s_waitcnt lgkmcnt({NBF-3})")
    st(8)
    if OPT['wlds']:
        assert pfn == NPF
        while ldn < 70: vmq.append(wddma(ldn)); ldn += 1
        pfn = 70
    for t, tag in vmq: kb(t, tag)
    kb(f"buffer_load_dword v26, v7, s[48:51], s18 offen sc1")
    kb(f"""
    v_and_b32 v14, 15, v1            ; m
    v_lshrrev_b32 v3, 4, v1          ; c
    v_lshlrev_b32 v4, 4, v14
    v_lshl_add_u32 v4, v3, 9, v4     ; voff g  (c*512 + m*16)
    v_add_u32 v5, {108*1024}, v4
    """)
    for _, t, tag in fill: kb(t, tag)
    poll(kb, f"{n}_wb", 48, "s18", 7, 26, 1, first_issued=True)
    st(9)
    NB = 5; GB = 100; ACC = 32; HU = 112
    def gloads(i):
        b = GB + 16*(i % NB); T = KORD[i]
        return [f"s_add_u32 s62, s{12 if T < 12 else 13}, {T*2048}\n buffer_load_dwordx4 {A(b,4)}, v4, s[52:55], s62 offen",
                f"buffer_load_dwordx4 {A(b+4,4)}, v4, s[52:55], s62 offen offset:256",
                f"buffer_load_dwordx4 {A(b+8,4)}, v5, s[52:55], s62 offen",
                f"buffer_load_dwordx4 {A(b+12,4)}, v5, s[52:55], s62 offen offset:256"]
    for i in range(2):
        for l in gloads(i): kb(l)
    kb(f"""
    v_lshrrev_b32 v8, 2, v1
    v_and_b32 v9, 3, v1              ; q0
    s_lshl_b32 s36, s3, 4
    v_add_u32 v8, s36, v8
    v_and_b32 v10, 31, v8
    v_lshlrev_b32 v10, 4, v10
    v_and_b32 v11, 1, v9
    v_lshl_add_u32 v10, v11, 9, v10
    v_lshrrev_b32 v11, 1, v9
    v_lshl_add_u32 v10, v11, 3, v10
    s_lshr_b32 s37, s3, 1
    s_lshl_b32 s38, s16, 1
    s_add_u32 s37, s37, s38          ; R
    s_mul_i32 s37, s37, 40
    s_mul_i32 s38, s17, 5
    s_add_u32 s37, s37, s38
    s_lshl_b32 s37, s37, 10
    s_add_u32 s38, s37, 4096
    v_lshrrev_b32 v11, 2, v1
    v_lshlrev_b32 v12, 2, v9
    v_xor_b32 v11, v11, v12
    v_lshlrev_b32 v11, 4, v11
    v_lshl_add_u32 v11, v9, 8, v11
    s_mul_i32 s39, s3, 5120
    v_add_u32 v11, s39, v11
    v_add_u32 v6, 40960, v11
    v_lshlrev_b32 v12, 6, v3
    v_xor_b32 v12, v12, v2
    s_mul_i32 s39, s3, 20480
    v_add_u32 v12, s39, v12
    v_mul_u32_u24 v13, 1280, v8
    v_lshl_add_u32 v13, v9, 3, v13
    s_mul_i32 s39, s16, {64*1280}
    s_mul_i32 s36, s17, 160
    s_add_u32 s39, s39, s36
    """)
    srd(kb, 40, P_OUT, 0, 2048*1280)
    if OPT['wlds']:
        kb(f"v_add_u32 v16, s66, v2\n v_add_u32 v17, 0x10000, v16\n v_add_u32 v18, 0x20000, v16")
        kb.wait_vm("wdl")
        for f in range(45, 70):
            o = wdlds(f)[0]
            kb(f"ds_read_b128 {WDR[f]}, v{16 + (o >> 16)} offset:{o & 0xffff}")
        kb("s_waitcnt lgkmcnt(0)")
    kb.wait_vm("pubB"); kb("s_barrier")
    wflag(kb, f"{n}_pb", 48, "s6", 24, 25, 2)
    for i in range(2, NB - 1):
        for l in gloads(i): kb(l)
    for i in range(14):
        if i + NB - 1 == NEARLY - 2: kb(f"buffer_load_dword v26, v7, s[48:51], s18 offen sc1")
        if i + NB - 1 == NEARLY: poll(kb, f"{n}_wc", 48, "s18", 7, 26, 2, first_issued=True)
        L = gloads(i + NB - 1) if i + NB - 1 < 14 else []
        if pfn < 70:
            L = L + [wdload(f, 2) for f in range(pfn, min(70, pfn + 5))]; pfn = min(70, pfn + 5)
        if i == 9:
            L += [f"buffer_load_dwordx2 {V(HU+4*j+2,2)}, v10, s[56:59], s{37 if j < 4 else 38} offen offset:{(j&3)*1024}" for j in range(5)]
        if i == 12:
            for j in range(5):
                u = HU + 4*j
                L += [f"v_lshlrev_b32 v{u}, 16, v{u+2}\n v_and_b32 v{u+1}, 0xffff0000, v{u+2}",
                      f"v_lshlrev_b32 v{u+2}, 16, v{u+3}\n v_and_b32 v{u+3}, 0xffff0000, v{u+3}"]
        b = GB + 16*(i % NB); k = 0; done = []
        assert not any(WDR[5*i+t] + "," in l for t in range(5) for l in L), "w_down fragment loaded too late"
        for mt in range(4):
            for t in range(5):
                d = V(ACC + (mt*5+t)*4, 4)
                kb(f"v_mfma_f32_16x16x32_bf16 {d}, {WDR[5*i+t]}, {A(b+4*mt,4)}, {'0' if i == 0 else d}")
                if k % 2 == 1 and L: kb(L.pop(0))
                if i == 13:
                    done.append(f"ds_write_b128 v12, {d} offset:{(mt*5 + t)*1024}")
                    if len(done) > 6: kb(done.pop(0))
                k += 1
        assert not L
    st(10)
    for t in done: kb(t)
    kb("s_waitcnt lgkmcnt(0)\n s_barrier")
    for i in range(5):
        for w in range(4):
            kb(f"ds_read_b128 {V(ACC+(i*4+w)*4,4)}, v{11 if w < 2 else 6} offset:{(w&1)*20480 + i*1024}")
    for i in range(5):
        a = ACC + i*16; u = HU + 4*i
        kb(f"""
        v_pk_add_f32 {V(a,2)}, {V(a,2)}, {V(a+4,2)}
        v_pk_add_f32 {V(a+2,2)}, {V(a+2,2)}, {V(a+6,2)}
        v_pk_add_f32 {V(a+8,2)}, {V(a+8,2)}, {V(a+12,2)}
        v_pk_add_f32 {V(a+10,2)}, {V(a+10,2)}, {V(a+14,2)}
        v_pk_add_f32 {V(a,2)}, {V(a,2)}, {V(a+8,2)}
        v_pk_add_f32 {V(a+2,2)}, {V(a+2,2)}, {V(a+10,2)}
        v_cvt_pk_bf16_f32 v{a+4}, v{a}, v{a+1}
        v_cvt_pk_bf16_f32 v{a+5}, v{a+2}, v{a+3}
        v_lshlrev_b32 v{a}, 16, v{a+4}
        v_and_b32 v{a+1}, 0xffff0000, v{a+4}
        v_lshlrev_b32 v{a+2}, 16, v{a+5}
        v_and_b32 v{a+3}, 0xffff0000, v{a+5}
        v_pk_add_f32 {V(a,2)}, {V(a,2)}, {V(u,2)}
        v_pk_add_f32 {V(a+2,2)}, {V(a+2,2)}, {V(u+2,2)}
        v_cvt_pk_bf16_f32 v{a+4}, v{a}, v{a+1}
        v_cvt_pk_bf16_f32 v{a+5}, v{a+2}, v{a+3}
        buffer_store_dwordx2 {V(a+4,2)}, v13, s[40:43], s39 offen offset:{i*32}
        """)
    if gen.DIAG:
        kb.fence()
        kb("s_waitcnt vmcnt(0) lgkmcnt(0)")
        stampT(kb, 11)
        kb("s_memtime s[74:75]\n s_waitcnt lgkmcnt(0)\n s_sub_u32 s100, s74, s100")
        srd(kb, 40, P_WS, OFF_TS + 65536, 65536)
        kb("s_lshl_b32 s44, s2, 2\n s_add_u32 s44, s44, s3\n s_lshl_b32 s44, s44, 6")
        for i in range(13): kb(f"v_mov_b32 v{8+i}, s{76+2*i}")
        kb("v_mov_b32 v2, s44\n s_mov_b64 exec, 1")
        for i in range(4): kb(f"buffer_store_dwordx4 v[{8+4*i}:{11+4*i}], v2, s[40:43], 0 offen offset:{16*i}")
        if OPT.get('dbgout'):
            srd(kb, 44, P_DBG, 0, 256)
            kb("v_mov_b32 v2, 0\n v_not_b32 v21, v8")
            kb("buffer_atomic_umax v21, v2, s[44:47], 0 offen offset:12")
            for i in range(12): kb(f"buffer_atomic_umax v{8+i}, v2, s[44:47], 0 offen offset:{16+4*i}")

OPT.update(wlds=1, wlr=6, npa=34, a1=8, a2=10, ring0=0, pre=3, pf0=4, pfr=6, vpt=36)
```
